```python
import torch

def _softmax(x, axis=-1):
    return torch.softmax(x, dim=axis)
def _gelu(x):
    return torch.nn.functional.gelu(x, approximate="tanh")
def _silu(x):
    return torch.nn.functional.silu(x)
def _sigmoid(x):
    return torch.sigmoid(x)
def _layernorm(x, axis=-1, eps=1e-5):
    m = x.mean(dim=axis, keepdim=True)
    v = x.var(dim=axis, keepdim=True, unbiased=False)
    return (x - m) / torch.sqrt(v + eps)
def _scatter_add(tgt, idx, src, axis=0):
    return tgt.clone().index_add_(axis, idx, src)
def _segment_sum(src, seg, n):
    out = torch.zeros((n,) + src.shape[1:], dtype=src.dtype)
    return out.index_add_(0, seg, src)
def _pad(x, pw):
    flat = tuple(v for pair in reversed(pw) for v in pair)
    return torch.nn.functional.pad(x, flat)

kernel_name = 'recurrent_scan__sliding_block_cached__dense_activation_gelu__decode'

def setup_inputs():

    _w = (lambda a: (lambda t: t.to(torch.bfloat16) if t.is_floating_point() else t)(torch.as_tensor(a)))
    def _A_setup():
        B, Sq, D = 1, 1, 640
        Hq, Hkv, Sk, Dh = 32, 32, 4096, 128
        assert Hq % Hkv == 0, (Hq, Hkv)
        return {
            "x": _w((lambda *s: torch.randn(*s, dtype=torch.bfloat16) * 0.05)(B, Sq, D)),
            "k_cache": _w((lambda *s: torch.randn(*s, dtype=torch.bfloat16) * 3.2)(B, Hkv, Sk, Dh)),
            "v_cache": _w((lambda *s: torch.randn(*s, dtype=torch.bfloat16) * 3.2)(B, Hkv, Sk, Dh)),
            "wq": _w((lambda *s: torch.randn(*s, dtype=torch.bfloat16) * 3.2)(D, Hq * Dh) * (D ** -0.5)),
            "wo": _w((lambda *s: torch.randn(*s, dtype=torch.bfloat16) * 3.2)(Hq * Dh, D) * ((Hq * Dh) ** -0.5)),
        }
    _A_in = _A_setup()

    def _B_setup():
        B, S, D, F = 1, 1, 640, 1728
        return {
            "x": _w((lambda *s: torch.randn(*s, dtype=torch.bfloat16) * 0.05)(B, S, D)),
            "w1": _w((lambda *s: torch.randn(*s, dtype=torch.bfloat16) * 3.2)(D, F) * (D ** -0.5)),
            "b1": _w((lambda *s: torch.randn(*s, dtype=torch.bfloat16) * 3.2)(F) * 0.01),
            "w2": _w((lambda *s: torch.randn(*s, dtype=torch.bfloat16) * 0.4)(F, D) * (F ** -0.5)),
            "b2": _w((lambda *s: torch.randn(*s, dtype=torch.bfloat16) * 0.4)(D) * 0.01),
        }
    _B_in = _B_setup()

    return {
        "A_x": _A_in["x"],
        "A_k_cache": _A_in["k_cache"],
        "A_v_cache": _A_in["v_cache"],
        "A_wq": _A_in["wq"],
        "A_wo": _A_in["wo"],
        "B_x": _B_in["x"],
        "B_w1": _B_in["w1"],
        "B_b1": _B_in["b1"],
        "B_w2": _B_in["w2"],
        "B_b2": _B_in["b2"],
    }

def reference(A_x, A_k_cache, A_v_cache, A_wq, A_wo, B_x, B_w1, B_b1, B_w2, B_b2):
    def _A_ref(x, k_cache, v_cache, wq, wo):
        B, Sq, D = x.shape
        Hq, Dh = 32, 128
        Hkv, Sk = k_cache.shape[1], k_cache.shape[2]
        W = min(4096, max(256, Sk // 4))
        rep = Hq // Hkv
        q = (lambda x, *d: x.permute(*d))((x @ wq).reshape(B, Sq, Hq, Dh), 0, 2, 1, 3)
        k = (lambda x, n, axis: torch.repeat_interleave(x, n, dim=axis))(k_cache[:, :, Sk - W:, :], rep, axis=1)
        v = (lambda x, n, axis: torch.repeat_interleave(x, n, dim=axis))(v_cache[:, :, Sk - W:, :], rep, axis=1)
        scores = torch.einsum("bhqd,bhkd->bhqk", q, k) * (Dh ** -0.5)
        p = _softmax(scores, axis=-1)
        o = torch.einsum("bhqk,bhkd->bhqd", p, v)
        return (lambda x, *d: x.permute(*d))(o, 0, 2, 1, 3).reshape(B, Sq, Hq * Dh) @ wo

    def _B_ref(x, w1, b1, w2, b2):
        h = torch.einsum("bsd,df->bsf", x, w1) + b1
        h = _gelu(h)
        return torch.einsum("bsf,fd->bsd", h, w2) + b2

    x = A_x
    xn = _layernorm(x, axis=-1)
    s = _A_ref(xn, A_k_cache, A_v_cache, A_wq, A_wo)
    g = _silu(_B_ref(xn, B_w1, B_b1, B_w2, B_b2))
    return x + s * g
```

```python
import sys
KN = "recurrent_scan__sliding_block_cached__dense_activation_gelu__decode_kernel"

HDR_COMMENT = open("recurrent_scan__sliding_block_cached__dense_activation_gelu__decode.s.ref").read().split("; Override launch")[0]

class A:
    def __init__(self):
        self.l = []
        self.vm = []
    def __call__(self, s):
        for line in s.strip("\n").split("\n"):
            self.l.append("  " + line.strip())
    def label(self, n): self.l.append(n + ":")
    def c(self, s): self.l.append("  ; " + s)
    def vmem(self, s, tag):
        self(s); self.vm.append(tag)
    def wait_vm(self, tag):
        idx = max(i for i, t in enumerate(self.vm) if t == tag)
        n = len(self.vm) - 1 - idx
        self(f"s_waitcnt vmcnt({min(n,63)})")
        self.vm = self.vm[idx + 1:]
    def wait_vm_all(self):
        self("s_waitcnt vmcnt(0)"); self.vm = []
    def text(self): return "\n".join(self.l) + "\n"

WS_EPOCH = 0
WS_Q  = 0x1000
WS_H  = WS_Q + 32*8*1024
WS_O  = WS_H + 32*8*512
WS_ST = WS_O + 32*8*1024
WS_S  = WS_ST + 32*128
WS_Y  = WS_S + 40*32*128
WS_TS = WS_Y + 40*32*128
WS_END = WS_TS + 256*4*128
TAGC = 0x9E3779B9

def gen(nt=True, stamps=False, kpre=8, spin_limit=1<<18):
    a = A()
    NT = " nt" if nt else ""
    S_X, S_K, S_V, S_WQ, S_WO, S_W1, S_B1, S_W2, S_B2, S_OUT, S_WS = [44 + 4*i for i in range(11)]
    srd = lambda b: f"s[{b}:{b+3}]"
    sG, sJ, sW, sT = 3, 4, 5, 6
    sTmp, sTmp2, sTmp3 = 7, 8, 9
    sSpin = 10
    sMean, sRstd = 11, 12
    sWQ = [16,17,18,19,20]; sW1 = [21,22,23]; sK0, sK1 = 24, 25
    sWO = [26,27,28,29]; sW2 = [30,31]
    sScale, sLog2e = 32, 33
    sMask = 34
    sSave = 36
    sC1, sC2 = 38, 39
    sTS = 88
    vL = 1; vKV = 2; vWQo = 3; vW1o = 4; vWOm = 5; vWOe = 6; vT0 = 7; vT1 = 8; vT2 = 9; vT3 = 10; vT4=11
    vE = 12
    vX = 13
    vXq = 18
    vX1 = 23
    vXqh = 26
    vX1h = 31
    vAcc = 34
    vAcc2 = 42
    vP = 50
    vPh = 58
    vQ = 66
    vG = 70
    vM = 82
    vWQ = 96
    vW1 = 116
    vK = 128
    vV = 160
    vF = 192
    NV = 224
    def q4(b): return f"v[{b}:{b+3}]"
    def q2(b): return f"v[{b}:{b+1}]"
    nstamp = [0]
    SP = [88,90,92,94,96,98,100,40,42,12,14]
    def stamp():
        if stamps and nstamp[0] < len(SP):
            r = SP[nstamp[0]]
            a(f"s_memrealtime s[{r}:{r+1}]"); nstamp[0] += 1

    L_QP = 0
    L_HP = 2048
    L_Q  = 3072
    L_MX = 3328
    L_OP = 3584
    L_LS = 5632
    L_OT = 5888
    L_HT = 6400
    L_SP = 6656
    L_YP = 7936
    LDS = 9216

    a("s_cmp_ge_u32 s2, 256")
    a("s_cbranch_scc1 L_end")
    stamp()
    for i, b in enumerate([S_X, S_K, S_V, S_WQ, S_WO, None, S_W1, S_B1, S_W2, S_B2, S_OUT, None, S_WS]):
        if b is not None:
            a(f"s_load_dwordx2 s[{b}:{b+1}], s[0:1], {8*i}")
    sizes = {S_X:1280, S_K:33554432, S_V:33554432, S_WQ:5242880, S_WO:5242880, S_W1:2211840, S_B1:3456, S_W2:2211840, S_B2:1280, S_OUT:1280, S_WS:WS_END}
    for b, sz in sizes.items():
        a(f"s_mov_b32 s{b+2}, {sz}")
        a(f"s_mov_b32 s{b+3}, 0x20000")
    a(f"""
    v_and_b32 v{vL}, 63, v0
    v_lshrrev_b32 v{vT0}, 6, v0
    s_and_b32 s{sG}, s2, 31
    s_lshr_b32 s{sJ}, s2, 5
    v_readfirstlane_b32 s{sW}, v{vT0}
    v_lshlrev_b32 v{vKV}, 4, v{vL}
    v_lshrrev_b32 v{vT0}, 4, v{vL}            ; k4
    v_and_b32 v{vT1}, 15, v{vL}               ; c8
    v_lshlrev_b32 v{vWQo}, 13, v{vT0}
    v_lshl_add_u32 v{vWQo}, v{vT1}, 4, v{vWQo}   ; k4*8192 + c8*16
    v_lshlrev_b32 v{vT2}, 1, v{vT0}
    v_lshrrev_b32 v{vT0}, 3, v{vL}            ; r8
    v_and_b32 v{vT1}, 7, v{vL}                ; c3
    v_mul_u32_u24 v{vW1o}, 3456, v{vT0}
    v_lshl_add_u32 v{vW1o}, v{vT1}, 4, v{vW1o}   ; r8*3456 + c3*16
    v_mul_u32_u24 v{vWOm}, 1280, v{vT0}
    v_lshl_add_u32 v{vWOm}, v{vT1}, 4, v{vWOm}   ; r8*1280 + c3*16
    v_lshlrev_b32 v{vT3}, 1, v{vT0}
    v_lshrrev_b32 v{vT0}, 1, v{vL}
    v_and_b32 v{vT1}, 1, v{vL}
    v_mul_u32_u24 v{vWOe}, 1280, v{vT0}
    v_lshl_add_u32 v{vWOe}, v{vT1}, 4, v{vWOe}
    v_add_u32 v{vWOe}, 128, v{vWOe}           ; (l>>1)*1280 + 128 + (l&1)*16
    v_lshlrev_b32 v{vT4}, 2, v{vL}            ; l*4
    v_mov_b32 v{vT1}, 0
    """)
    a(f"""
    s_mul_i32 s{sTmp}, s{sJ}, 80
    s_mul_i32 s{sTmp2}, s{sW}, 20
    s_add_u32 s{sTmp}, s{sTmp}, s{sTmp2}        ; row0 = 80j+20w
    s_lshl_b32 s{sTmp3}, s{sTmp}, 1
    s_lshl_b32 s{sWQ[0]}, s{sTmp}, 13
    s_lshl_b32 s{sTmp2}, s{sG}, 8
    s_add_u32 s{sWQ[0]}, s{sWQ[0]}, s{sTmp2}
    """)
    for i in range(1, 5):
        a(f"s_add_u32 s{sWQ[i]}, s{sWQ[i-1]}, 32768")
    a(f"""
    s_mul_i32 s{sW1[0]}, s{sTmp}, 3456
    s_lshl_b32 s{sTmp2}, s{sG}, 7
    s_add_u32 s{sW1[0]}, s{sW1[0]}, s{sTmp2}
    s_add_u32 s{sW1[1]}, s{sW1[0]}, {8*3456}
    s_add_u32 s{sW1[2]}, s{sW1[0]}, {16*3456}
    s_lshl_b32 s{sK0}, s{sG}, 20
    s_lshl_b32 s{sTmp2}, s{sJ}, 15
    s_add_u32 s{sK0}, s{sK0}, s{sTmp2}
    s_lshl_b32 s{sTmp2}, s{sW}, 13
    s_add_u32 s{sK0}, s{sK0}, s{sTmp2}
    s_add_u32 s{sK0}, s{sK0}, {3072*256}
    s_add_u32 s{sK1}, s{sK0}, 4096
    s_lshl_b32 s{sTmp}, s{sG}, 7
    s_lshl_b32 s{sTmp2}, s{sW}, 5
    s_add_u32 s{sTmp}, s{sTmp}, s{sTmp2}         ; 128g+32w
    s_mul_i32 s{sWO[0]}, s{sTmp}, 1280
    s_mul_i32 s{sTmp2}, s{sJ}, 160
    s_add_u32 s{sWO[0]}, s{sWO[0]}, s{sTmp2}
    s_add_u32 s{sWO[1]}, s{sWO[0]}, 10240
    s_add_u32 s{sWO[2]}, s{sWO[0]}, 20480
    s_add_u32 s{sWO[3]}, s{sWO[0]}, 30720
    s_lshl_b32 s{sTmp}, s{sG}, 6
    s_lshl_b32 s{sC1}, s{sW}, 4
    s_add_u32 s{sTmp}, s{sTmp}, s{sC1}           ; 64g+16w
    s_mul_i32 s{sW2[0]}, s{sTmp}, 1280
    s_add_u32 s{sW2[0]}, s{sW2[0]}, s{sTmp2}
    s_add_u32 s{sW2[1]}, s{sW2[0]}, 10240
    s_mov_b32 s{sScale}, 0x3db504f3              ; 128^-0.5 (f32)
    s_mov_b32 s{sLog2e}, 0x3fb8aa3b
    s_mov_b32 s{sSpin}, 0
    s_waitcnt lgkmcnt(0)
    """)
    a.vmem(f"buffer_load_dword v{vE}, v{vT1}, {srd(S_WS)}, 0 offen sc1", "E")
    a.vmem(f"buffer_load_dwordx4 {q4(14)}, v{vKV}, {srd(S_X)}, 0 offen", "x")
    a.vmem(f"buffer_load_dword v13, v{vT4}, {srd(S_X)}, 0 offen offset:1024", "x")
    for i in range(5):
        a.vmem(f"buffer_load_ushort v{vXq+i}, v{vT2}, {srd(S_X)}, s{sTmp3} offen offset:{8*i}", "x")
    for i in range(3):
        a.vmem(f"buffer_load_ushort v{vX1+i}, v{vT3}, {srd(S_X)}, s{sTmp3} offen offset:{16*i}", "x")
    for i in range(5):
        a.vmem(f"buffer_load_dwordx4 {q4(vWQ+4*i)}, v{vWQo}, {srd(S_WQ)}, s{sWQ[i]} offen{NT}", "wq")
    a(f"s_cmp_lt_u32 s{sG}, 27")
    a(f"s_cselect_b32 s{sC2}, 1, 0")
    a(f"s_cselect_b32 s{sC1}, 0, 0x7f000000")
    for i in range(3):
        a(f"s_add_u32 s{sW1[i]}, s{sW1[i]}, s{sC1}")
    for i in range(2):
        a(f"s_add_u32 s{sW2[i]}, s{sW2[i]}, s{sC1}")
    for i in range(3):
        if i == 2:
            a("s_mov_b32 exec_hi, 0")
        a.vmem(f"buffer_load_dwordx4 {q4(vW1+4*i)}, v{vW1o}, {srd(S_W1)}, s{sW1[i]} offen{NT}", "w1")
        if i == 2:
            a("s_mov_b64 exec, -1")
    def kload(i):
        a.vmem(f"buffer_load_dwordx4 {q4(vK+4*i)}, v{vKV}, {srd(S_K)}, s{sK0 if i < 4 else sK1} offen offset:{1024*(i%4)}{NT}", f"k{i}")
    def vload(i):
        a.vmem(f"buffer_load_dwordx4 {q4(vV+4*i)}, v{vKV}, {srd(S_V)}, s{sK0 if i < 4 else sK1} offen offset:{1024*(i%4)}{NT}", f"v{i}")
    for i in range(kpre): kload(i)
    stamp()
    a.wait_vm("x")
    a(f"v_readfirstlane_b32 s{sT}, v{vE}")
    a(f"s_add_u32 s{sT}, s{sT}, {TAGC}")
    xs = list(range(vM, vM+10))
    for k, r in enumerate([14,15,16,17,13]):
        a(f"v_lshlrev_b32 v{xs[2*k]}, 16, v{r}")
        a(f"v_and_b32 v{xs[2*k+1]}, 0xffff0000, v{r}")
    def wave_sum(v, t):
        for n in (8, 4, 2, 1):
            a("s_nop 1")
            a(f"v_add_f32_dpp v{v}, v{v}, v{v} row_ror:{n} row_mask:0xf bank_mask:0xf")
        a(f"v_mov_b32 v{t}, v{v}")
        a("s_nop 1")
        a(f"v_permlane16_swap_b32 v{v}, v{t}")
        a(f"v_add_f32 v{v}, v{v}, v{t}")
        a(f"v_mov_b32 v{t}, v{v}")
        a("s_nop 1")
        a(f"v_permlane32_swap_b32 v{v}, v{t}")
        a(f"v_add_f32 v{v}, v{v}, v{t}")
    a(f"v_add_f32 v{vT0}, v{xs[0]}, v{xs[1]}")
    for k in range(2, 10):
        a(f"v_add_f32 v{vT0}, v{vT0}, v{xs[k]}")
    wave_sum(vT0, vT1)
    a(f"v_mul_f32 v{vT0}, 0x3acccccd, v{vT0}")
    for k in range(10):
        a(f"v_sub_f32 v{xs[k]}, v{xs[k]}, v{vT0}")
    a(f"v_mul_f32 v{vT2}, v{xs[0]}, v{xs[0]}")
    for k in range(1, 10):
        a(f"v_fmac_f32 v{vT2}, v{xs[k]}, v{xs[k]}")
    wave_sum(vT2, vT1)
    a(f"v_mul_f32 v{vT2}, 0x3acccccd, v{vT2}")
    def rnd(v):
        a(f"v_cvt_pk_bf16_f32 v{v}, v{v}, v{v}")
        a(f"v_and_b32 v{v}, 0xffff0000, v{v}")
    rnd(vT0); rnd(vT2)
    a(f"v_add_f32 v{vT2}, 0x3727c5ac, v{vT2}")
    rnd(vT2)
    a(f"v_sqrt_f32 v{vT2}, v{vT2}")
    a("s_nop 0")
    rnd(vT2)
    a(f"v_rcp_f32 v{vT2}, v{vT2}")
    a("s_nop 0")
    for (lo, hi) in [(vXq+i, vXqh+i) for i in range(5)] + [(vX1+i, vX1h+i) for i in range(3)]:
        a(f"v_lshlrev_b32 v{lo}, 16, v{lo}")
        a(f"v_sub_f32 v{lo}, v{lo}, v{vT0}")
        rnd(lo)
        a(f"v_mul_f32 v{lo}, v{lo}, v{vT2}")
        a(f"v_cvt_pk_bf16_f32 v{lo}, v{lo}, v{lo}")
        a(f"v_and_b32 v{hi}, 0xffff0000, v{lo}")
        a(f"v_and_b32 v{lo}, 0xffff, v{lo}")
    for i in range(kpre, 8): kload(i)
    def zero(base, n=8):
        for k in range(n): a(f"v_mov_b32 v{base+k}, 0")
    def mac8(acc, w, lo, hi):
        for k in range(4):
            a(f"v_dot2c_f32_bf16 v{acc+2*k}, v{w+k}, v{lo}")
            a(f"v_dot2c_f32_bf16 v{acc+2*k+1}, v{w+k}, v{hi}")
    def red32(x, y):
        a(f"v_permlane32_swap_b32 v{x}, v{y}")
        a(f"v_add_f32 v{x}, v{x}, v{y}")
    def red16(x, y):
        a(f"v_permlane16_swap_b32 v{x}, v{y}")
        a(f"v_add_f32 v{x}, v{x}, v{y}")
    def red8regs(acc):
        a("s_nop 2")
        red32(acc+0, acc+4); red32(acc+2, acc+6); red32(acc+1, acc+5); red32(acc+3, acc+7)
        a("s_nop 0")
        red16(acc+0, acc+2); red16(acc+1, acc+3)
    zero(vAcc); zero(vAcc2)
    a.wait_vm("wq")
    stamp()
    for i in range(5): mac8(vAcc, vWQ+4*i, vXq+i, vXqh+i)
    a.wait_vm("w1")
    for i in range(2): mac8(vAcc2, vW1+4*i, vX1+i, vX1h+i)
    a("s_mov_b32 exec_hi, 0")
    mac8(vAcc2, vW1+8, vX1+2, vX1h+2)
    a("s_mov_b64 exec, -1")
    red8regs(vAcc)
    red8regs(vAcc2)
    a("s_nop 1")
    for r in (vAcc2, vAcc2+1):
        a(f"v_add_f32_dpp v{r}, v{r}, v{r} row_ror:8 row_mask:0xf bank_mask:0xf")
    a(f"""
    v_and_b32 v{vT0}, 15, v{vL}
    v_lshlrev_b32 v{vT0}, 5, v{vT0}
    v_lshrrev_b32 v{vT1}, 4, v{vL}
    v_lshl_add_u32 v{vT0}, v{vT1}, 3, v{vT0}
    s_lshl_b32 s{sTmp}, s{sW}, 9
    v_add_u32 v{vT0}, s{sTmp}, v{vT0}
    v_and_b32 v{vT2}, 7, v{vL}
    v_lshlrev_b32 v{vT2}, 5, v{vT2}
    v_lshl_add_u32 v{vT2}, v{vT1}, 3, v{vT2}
    s_lshl_b32 s{sTmp}, s{sW}, 8
    v_add_u32 v{vT2}, s{sTmp}, v{vT2}
    ds_write_b64 v{vT0}, v[{vAcc}:{vAcc+1}] offset:{L_QP}
    ds_write_b64 v{vT2}, v[{vAcc2}:{vAcc2+1}] offset:{L_HP}
    s_waitcnt lgkmcnt(0)
    s_barrier
    """)
    a(f"v_lshlrev_b32 v{vT0}, 3, v{vL}")
    a(f"s_cmp_eq_u32 s{sW}, 0")
    a("s_cbranch_scc1 L_pubq")
    a(f"s_cmp_eq_u32 s{sW}, 1")
    a("s_cbranch_scc0 L_pub_done")
    a(f"s_cmp_eq_u32 s{sC2}, 0")
    a("s_cbranch_scc1 L_pub_done")
    a("s_mov_b32 exec_hi, 0")
    for k in range(4):
        a(f"ds_read_b64 v[{vG+2*k}:{vG+2*k+1}], v{vT0} offset:{L_HP+256*k}")
    a(f"""
    s_lshl_b32 s{sTmp}, s{sG}, 3
    s_add_u32 s{sTmp}, s{sTmp}, s{sJ}
    s_lshl_b32 s{sTmp}, s{sTmp}, 9
    s_add_u32 s{sTmp}, s{sTmp}, {WS_H}
    s_branch L_pub_common
    """)
    a.label("L_pubq")
    for k in range(4):
        a(f"ds_read_b64 v[{vG+2*k}:{vG+2*k+1}], v{vT0} offset:{L_QP+512*k}")
    a(f"""
    s_lshl_b32 s{sTmp}, s{sG}, 3
    s_add_u32 s{sTmp}, s{sTmp}, s{sJ}
    s_lshl_b32 s{sTmp}, s{sTmp}, 10
    s_add_u32 s{sTmp}, s{sTmp}, {WS_Q}
    """)
    a.label("L_pub_common")
    a(f"""
    s_waitcnt lgkmcnt(0)
    v_add_f32 v{vG}, v{vG}, v{vG+2}
    v_add_f32 v{vG+1}, v{vG+1}, v{vG+3}
    v_add_f32 v{vG+4}, v{vG+4}, v{vG+6}
    v_add_f32 v{vG+5}, v{vG+5}, v{vG+7}
    v_add_f32 v{vG+8}, v{vG}, v{vG+4}
    v_add_f32 v{vG+10}, v{vG+1}, v{vG+5}
    v_mov_b32 v{vG+9}, s{sT}
    v_mov_b32 v{vG+11}, s{sT}
    buffer_store_dwordx4 {q4(vG+8)}, v{vKV}, {srd(S_WS)}, s{sTmp} offen sc1
    s_mov_b64 exec, -1
    """)
    a.label("L_pub_done")
    stamp()
    for i in range(4): vload(i)
    a.wait_vm("k5")
    a(f"""
    v_lshrrev_b32 v{vT0}, 4, v{vL}            ; p4
    v_and_b32 v{vT1}, 15, v{vL}               ; c
    v_lshlrev_b32 v{vT0}, 10, v{vT0}
    v_lshl_add_u32 v{vM}, v{vT1}, 4, v{vT0}
    v_lshrrev_b32 v{vT0}, 3, v{vL}            ; p8
    v_and_b32 v{vT1}, 7, v{vL}
    v_lshlrev_b32 v{vT0}, 9, v{vT0}
    v_lshl_add_u32 v{vM+1}, v{vT1}, 4, v{vT0}
    s_lshl_b32 s{sTmp}, s{sG}, 13
    s_lshl_b32 s{sTmp2}, s{sW}, 8
    s_add_u32 s{sTmp}, s{sTmp}, s{sTmp2}
    s_add_u32 s{sTmp}, s{sTmp}, {WS_Q}
    s_add_u32 s{sTmp2}, s{sTmp}, 4096
    s_lshl_b32 s{sTmp3}, s{sG}, 12
    s_lshl_b32 s{sC1}, s{sW}, 7
    s_add_u32 s{sTmp3}, s{sTmp3}, s{sC1}
    s_add_u32 s{sTmp3}, s{sTmp3}, {WS_H}
    """)
    first = True
    a.label("L_pollq")
    a.vmem(f"buffer_load_dwordx4 {q4(vG)}, v{vM}, {srd(S_WS)}, s{sTmp} offen sc1", "pq")
    a.vmem(f"buffer_load_dwordx4 {q4(vG+4)}, v{vM}, {srd(S_WS)}, s{sTmp2} offen sc1", "pq")
    a.wait_vm_all()
    a(f"""
    v_xor_b32 v{vT0}, s{sT}, v{vG+1}
    v_xor_b32 v{vT1}, s{sT}, v{vG+3}
    v_xor_b32 v{vT2}, s{sT}, v{vG+5}
    v_xor_b32 v{vT3}, s{sT}, v{vG+7}
    v_or3_b32 v{vT0}, v{vT0}, v{vT1}, v{vT2}
    v_or_b32 v{vT0}, v{vT0}, v{vT3}
    v_cmp_ne_u32 vcc, 0, v{vT0}
    s_add_u32 s{sSpin}, s{sSpin}, 1
    s_cmp_gt_u32 s{sSpin}, {spin_limit}
    s_cbranch_scc1 L_pollq_done
    s_cbranch_vccnz L_pollq
    """)
    a.label("L_pollq_done")
    stamp()
    for i in range(4, 8): vload(i)
    a(f"""
    v_add_f32 v{vG}, v{vG}, v{vG+4}
    v_add_f32 v{vG+2}, v{vG+2}, v{vG+6}
    s_nop 1
    """)
    red32(vG, vG+2)
    a(f"v_mov_b32 v{vT0}, v{vG}")
    a("s_nop 1")
    red16(vG, vT0)
    a(f"""
    v_cvt_pk_bf16_f32 v{vG}, v{vG}, v{vG}
    v_and_b32 v{vT0}, 15, v{vL}
    v_lshlrev_b32 v{vT0}, 2, v{vT0}           ; 2c*2 bytes
    v_lshrrev_b32 v{vT1}, 5, v{vL}
    v_lshl_add_u32 v{vT0}, v{vT1}, 1, v{vT0}  ; + (l>>5)*2
    s_lshl_b32 s{sTmp}, s{sW}, 6
    v_add_u32 v{vT0}, s{sTmp}, v{vT0}
    ds_write_b16 v{vT0}, v{vG} offset:{L_Q}
    s_waitcnt lgkmcnt(0)
    s_barrier
    v_and_b32 v{vT0}, 15, v{vL}
    v_lshlrev_b32 v{vT0}, 4, v{vT0}
    ds_read_b128 {q4(vQ)}, v{vT0} offset:{L_Q}
    s_waitcnt lgkmcnt(0)
    """)
    for i in range(8):
        a(f"v_mov_b32 v{vP+i}, 0")
    for k in range(4):
        for i in range(8):
            a(f"v_dot2c_f32_bf16 v{vP+i}, v{vK+4*i+k}, v{vQ+k}")
    a("s_nop 2")
    for n in (8, 4, 2, 1):
        for i in range(8):
            a(f"v_add_f32_dpp v{vP+i}, v{vP+i}, v{vP+i} row_ror:{n} row_mask:0xf bank_mask:0xf")
    for i in range(0, 8, 2):
        a(f"v_cvt_pk_bf16_f32 v{vT0}, v{vP+i}, v{vP+i+1}")
        a(f"v_lshlrev_b32 v{vP+i}, 16, v{vT0}")
        a(f"v_and_b32 v{vP+i+1}, 0xffff0000, v{vT0}")
        a(f"v_mul_f32 v{vP+i}, s{sScale}, v{vP+i}")
        a(f"v_mul_f32 v{vP+i+1}, s{sScale}, v{vP+i+1}")
        a(f"v_cvt_pk_bf16_f32 v{vT0}, v{vP+i}, v{vP+i+1}")
        a(f"v_lshlrev_b32 v{vP+i}, 16, v{vT0}")
        a(f"v_and_b32 v{vP+i+1}, 0xffff0000, v{vT0}")
    a(f"v_max3_f32 v{vT0}, v{vP}, v{vP+1}, v{vP+2}")
    a(f"v_max3_f32 v{vT0}, v{vT0}, v{vP+3}, v{vP+4}")
    a(f"v_max3_f32 v{vT0}, v{vT0}, v{vP+5}, v{vP+6}")
    a(f"v_max_f32 v{vT0}, v{vT0}, v{vP+7}")
    a(f"v_mov_b32 v{vT1}, v{vT0}")
    a("s_nop 1")
    a(f"v_permlane16_swap_b32 v{vT0}, v{vT1}")
    a(f"v_max_f32 v{vT0}, v{vT0}, v{vT1}")
    a(f"v_mov_b32 v{vT1}, v{vT0}")
    a("s_nop 1")
    a(f"v_permlane32_swap_b32 v{vT0}, v{vT1}")
    a(f"v_max_f32 v{vT0}, v{vT0}, v{vT1}")
    a(f"""
    s_lshl_b32 s{sTmp}, s{sW}, 2
    v_mov_b32 v{vT1}, s{sTmp}
    ds_write_b32 v{vT1}, v{vT0} offset:{L_MX}
    s_waitcnt lgkmcnt(0)
    s_barrier
    v_mov_b32 v{vT1}, 0
    ds_read_b128 {q4(vG)}, v{vT1} offset:{L_MX}
    s_waitcnt lgkmcnt(0)
    v_max3_f32 v{vM+2}, v{vG}, v{vG+1}, v{vG+2}
    v_max_f32 v{vM+2}, v{vM+2}, v{vG+3}          ; m_j
    """)
    for i in range(8):
        a(f"v_sub_f32 v{vP+i}, v{vP+i}, v{vM+2}")
    for i in range(8):
        a(f"v_mul_f32 v{vP+i}, s{sLog2e}, v{vP+i}")
    for i in range(8):
        a(f"v_exp_f32 v{vP+i}, v{vP+i}")
    a("s_nop 0")
    a(f"v_add_f32 v{vM+3}, v{vP}, v{vP+1}")
    for i in range(2, 8):
        a(f"v_add_f32 v{vM+3}, v{vM+3}, v{vP+i}")
    a(f"v_mov_b32 v{vT1}, v{vM+3}")
    a("s_nop 1")
    red16(vM+3, vT1)
    a(f"v_mov_b32 v{vT1}, v{vM+3}")
    a("s_nop 1")
    red32(vM+3, vT1)
    for i in range(8):
        a(f"v_cvt_pk_bf16_f32 v{vP+i}, v{vP+i}, v{vP+i}")
    for i in range(8):
        a(f"v_and_b32 v{vPh+i}, 0xffff0000, v{vP+i}")
        a(f"v_and_b32 v{vP+i}, 0xffff, v{vP+i}")
    stamp()
    for i in range(4):
        a.vmem(f"buffer_load_dwordx4 {q4(vWQ+4*i)}, v{vWOm}, {srd(S_WO)}, s{sWO[i]} offen{NT}", "wo")
    a.vmem(f"buffer_load_dwordx4 {q4(vWQ+16)}, v{vWOe}, {srd(S_WO)}, s{sWO[0]} offen{NT}", "wo")
    for i in range(2):
        a.vmem(f"buffer_load_dwordx4 {q4(vW1+4*i)}, v{vWOm}, {srd(S_W2)}, s{sW2[i]} offen{NT}", "w2")
    a("s_mov_b32 exec_hi, 0")
    a.vmem(f"buffer_load_dwordx4 {q4(vW1+8)}, v{vWOe}, {srd(S_W2)}, s{sW2[0]} offen{NT}", "w2")
    a("s_mov_b64 exec, -1")
    zero(vAcc)
    for i in range(8):
        a.wait_vm(f"v{i}") if i >= 4 else None
        mac8(vAcc, vV+4*i, vP+i, vPh+i)
    red8regs(vAcc)
    a(f"""
    v_and_b32 v{vT0}, 15, v{vL}
    v_lshlrev_b32 v{vT0}, 5, v{vT0}
    v_lshrrev_b32 v{vT1}, 4, v{vL}
    v_lshl_add_u32 v{vT0}, v{vT1}, 3, v{vT0}
    s_lshl_b32 s{sTmp}, s{sW}, 9
    v_add_u32 v{vT0}, s{sTmp}, v{vT0}
    s_lshl_b32 s{sTmp}, s{sW}, 2
    v_mov_b32 v{vT1}, s{sTmp}
    ds_write_b64 v{vT0}, v[{vAcc}:{vAcc+1}] offset:{L_OP}
    ds_write_b32 v{vT1}, v{vM+3} offset:{L_LS}
    s_waitcnt lgkmcnt(0)
    s_barrier
    s_cmp_eq_u32 s{sW}, 0
    s_cbranch_scc1 L_pubo
    s_cmp_eq_u32 s{sW}, 1
    s_cbranch_scc0 L_pubo_done
    v_mov_b32 v{vT1}, 0
    ds_read_b128 {q4(vG)}, v{vT1} offset:{L_LS}
    s_waitcnt lgkmcnt(0)
    v_add_f32 v{vG}, v{vG}, v{vG+1}
    v_add_f32 v{vG+2}, v{vG+2}, v{vG+3}
    v_add_f32 v{vG+2}, v{vG}, v{vG+2}
    v_mov_b32 v{vG}, v{vM+2}
    v_mov_b32 v{vG+1}, s{sT}
    v_mov_b32 v{vG+3}, s{sT}
    s_lshl_b32 s{sTmp}, s{sG}, 7
    s_lshl_b32 s{sTmp2}, s{sJ}, 4
    s_add_u32 s{sTmp}, s{sTmp}, s{sTmp2}
    s_add_u32 s{sTmp}, s{sTmp}, {WS_ST}
    s_mov_b64 exec, 1
    buffer_store_dwordx4 {q4(vG)}, v{vT1}, {srd(S_WS)}, s{sTmp} offen sc1
    s_mov_b64 exec, -1
    s_branch L_pubo_done
    """)
    a.label("L_pubo")
    a(f"v_lshlrev_b32 v{vT0}, 3, v{vL}")
    for k in range(4):
        a(f"ds_read_b64 v[{vG+2*k}:{vG+2*k+1}], v{vT0} offset:{L_OP+512*k}")
    a(f"""
    s_lshl_b32 s{sTmp}, s{sG}, 3
    s_add_u32 s{sTmp}, s{sTmp}, s{sJ}
    s_lshl_b32 s{sTmp}, s{sTmp}, 10
    s_add_u32 s{sTmp}, s{sTmp}, {WS_O}
    s_waitcnt lgkmcnt(0)
    v_add_f32 v{vG}, v{vG}, v{vG+2}
    v_add_f32 v{vG+1}, v{vG+1}, v{vG+3}
    v_add_f32 v{vG+4}, v{vG+4}, v{vG+6}
    v_add_f32 v{vG+5}, v{vG+5}, v{vG+7}
    v_add_f32 v{vG+8}, v{vG}, v{vG+4}
    v_add_f32 v{vG+10}, v{vG+1}, v{vG+5}
    v_mov_b32 v{vG+9}, s{sT}
    v_mov_b32 v{vG+11}, s{sT}
    buffer_store_dwordx4 {q4(vG+8)}, v{vKV}, {srd(S_WS)}, s{sTmp} offen sc1
    """)
    a.label("L_pubo_done")
    stamp()
    a(f"s_cmp_eq_u32 s{sC2}, 0")
    a("s_cbranch_scc1 L_mlp_done")
    a(f"""
    s_lshl_b32 s{sTmp}, s{sG}, 7
    s_lshl_b32 s{sTmp2}, s{sW}, 5
    s_add_u32 s{sTmp}, s{sTmp}, s{sTmp2}
    v_and_b32 v{vT0}, 7, v{vL}
    v_lshlrev_b32 v{vT0}, 2, v{vT0}
    buffer_load_dword v{vM+4}, v{vT0}, {srd(S_B1)}, s{sTmp} offen
    """)
    a.label("L_pollh")
    a(f"""
    buffer_load_dwordx4 {q4(vG)}, v{vM+1}, {srd(S_WS)}, s{sTmp3} offen sc1
    s_waitcnt vmcnt(0)
    v_xor_b32 v{vT0}, s{sT}, v{vG+1}
    v_xor_b32 v{vT1}, s{sT}, v{vG+3}
    v_or_b32 v{vT0}, v{vT0}, v{vT1}
    v_cmp_ne_u32 vcc, 0, v{vT0}
    s_add_u32 s{sSpin}, s{sSpin}, 1
    s_cmp_gt_u32 s{sSpin}, {spin_limit}
    s_cbranch_scc1 L_pollh_done
    s_cbranch_vccnz L_pollh
    """)
    a.label("L_pollh_done")
    a.vm = []
    a("s_nop 1")
    for r in (vG, vG+2):
        a(f"v_add_f32_dpp v{r}, v{r}, v{r} row_ror:8 row_mask:0xf bank_mask:0xf")
    for r in (vG, vG+2):
        a(f"v_mov_b32 v{vT0}, v{r}")
        a("s_nop 1")
        red16(r, vT0)
        a(f"v_mov_b32 v{vT0}, v{r}")
        a("s_nop 1")
        red32(r, vT0)
    a(f"""
    v_cvt_pk_bf16_f32 v{vT0}, v{vG}, v{vG+2}
    v_lshlrev_b32 v{vG}, 16, v{vT0}
    v_and_b32 v{vG+1}, 0xffff0000, v{vT0}
    v_lshlrev_b32 v{vT1}, 16, v{vM+4}
    v_and_b32 v{vT2}, 0xffff0000, v{vM+4}
    v_add_f32 v{vG}, v{vG}, v{vT1}
    v_add_f32 v{vG+1}, v{vG+1}, v{vT2}
    v_cvt_pk_bf16_f32 v{vT0}, v{vG}, v{vG+1}
    v_lshlrev_b32 v{vG}, 16, v{vT0}
    v_and_b32 v{vG+1}, 0xffff0000, v{vT0}
    s_mov_b32 s{sTmp}, 0x3d372713                 ; 0.044715
    s_mov_b32 s{sTmp2}, 0xc0135761
    """)
    for r in (vG, vG+1):
        a(f"""
        v_mul_f32 v{vT0}, v{r}, v{r}
        v_mul_f32 v{vT0}, s{sTmp}, v{vT0}
        v_fma_f32 v{vT0}, v{vT0}, v{r}, v{r}        ; u + c u^3
        v_mul_f32 v{vT0}, s{sTmp2}, v{vT0}
        v_exp_f32 v{vT0}, v{vT0}
        s_nop 0
        v_add_f32 v{vT0}, 1.0, v{vT0}
        v_rcp_f32 v{vT0}, v{vT0}
        s_nop 0
        v_mul_f32 v{r}, v{r}, v{vT0}
        """)
    a(f"""
    v_cvt_pk_bf16_f32 v{vT0}, v{vG}, v{vG+1}
    v_and_b32 v{vG}, 0xffff, v{vT0}
    v_lshrrev_b32 v{vG+1}, 16, v{vT0}
    v_and_b32 v{vT0}, 7, v{vL}
    v_lshlrev_b32 v{vT0}, 3, v{vT0}
    s_lshl_b32 s{sTmp}, s{sW}, 6
    v_add_u32 v{vT0}, s{sTmp}, v{vT0}
    ds_write_b64 v{vT0}, v[{vG}:{vG+1}] offset:{L_HT}
    v_lshrrev_b32 v{vT0}, 3, v{vL}
    v_lshlrev_b32 v{vT0}, 2, v{vT0}
    v_add_u32 v{vT0}, s{sTmp}, v{vT0}             ; HT + w*64 + r8*4
    v_lshrrev_b32 v{vT1}, 1, v{vL}
    v_and_b32 v{vT1}, 15, v{vT1}
    v_lshlrev_b32 v{vT1}, 2, v{vT1}
    v_add_u32 v{vT1}, s{sTmp}, v{vT1}             ; HT + w*64 + ((l>>1)&15)*4
    s_waitcnt lgkmcnt(0)
    ds_read_b32 v{vX1}, v{vT0} offset:{L_HT}
    ds_read_b32 v{vX1+1}, v{vT0} offset:{L_HT+32}
    ds_read_b32 v{vX1+2}, v{vT1} offset:{L_HT}
    s_waitcnt lgkmcnt(0)
    """)
    for i in range(3):
        a(f"v_lshlrev_b32 v{vX1h+i}, 16, v{vX1+i}")
    zero(vAcc2); zero(vPh)
    for i in range(2): mac8(vAcc2, vW1+4*i, vX1+i, vX1h+i)
    a("s_mov_b32 exec_hi, 0")
    mac8(vPh, vW1+8, vX1+2, vX1h+2)
    a("s_mov_b64 exec, -1")
    def red_tile(accM, accE, lbase):
        red8regs(accM); red8regs(accE)
        a("s_nop 1")
        for r in (accM, accM+1):
            a(f"v_add_f32_dpp v{r}, v{r}, v{r} row_ror:8 row_mask:0xf bank_mask:0xf")
        for r in (accE, accE+1):
            a(f"v_add_f32_dpp v{r}, v{r}, v{r} row_ror:8 row_mask:0xf bank_mask:0xf")
        a("s_nop 0")
        for r in (accE, accE+1):
            a(f"v_add_f32_dpp v{r}, v{r}, v{r} row_ror:4 row_mask:0xf bank_mask:0xf")
        a("s_nop 1")
        for r in (accE, accE+1):
            a(f"v_add_f32_dpp v{r}, v{r}, v{r} quad_perm:[2,3,0,1] row_mask:0xf bank_mask:0xf")
        a(f"""
        v_lshrrev_b32 v{vT1}, 4, v{vL}
        v_and_b32 v{vT0}, 7, v{vL}
        v_lshlrev_b32 v{vT0}, 5, v{vT0}
        v_lshl_add_u32 v{vT0}, v{vT1}, 3, v{vT0}     ; c3*32 + rho*8
        v_and_b32 v{vT2}, 1, v{vL}
        v_lshlrev_b32 v{vT2}, 5, v{vT2}
        v_lshl_add_u32 v{vT2}, v{vT1}, 3, v{vT2}     ; b0*32 + rho*8
        s_mul_i32 s{sTmp}, s{sW}, 320
        v_add_u32 v{vT0}, s{sTmp}, v{vT0}
        v_add_u32 v{vT2}, s{sTmp}, v{vT2}
        ds_write_b64 v{vT0}, v[{accM}:{accM+1}] offset:{lbase}
        ds_write_b64 v{vT2}, v[{accE}:{accE+1}] offset:{lbase+256}
        """)
    red_tile(vAcc2, vPh, L_YP)
    a.label("L_mlp_done")
    stamp()
    a(f"""
    s_lshl_b32 s{sTmp}, s{sG}, 13
    s_lshl_b32 s{sTmp2}, s{sW}, 8
    s_add_u32 s{sTmp}, s{sTmp}, s{sTmp2}
    s_add_u32 s{sTmp}, s{sTmp}, {WS_O}
    s_add_u32 s{sTmp2}, s{sTmp}, 4096
    s_lshl_b32 s{sTmp3}, s{sG}, 7
    s_add_u32 s{sTmp3}, s{sTmp3}, {WS_ST}
    v_lshrrev_b32 v{vT0}, 4, v{vL}
    v_add_u32 v{vT0}, v{vT0}, v{vL}
    v_and_b32 v{vT0}, 7, v{vT0}
    v_lshlrev_b32 v{vM+5}, 4, v{vT0}              ; pi(l)*16
    """)
    a.label("L_pollo")
    a(f"""
    buffer_load_dwordx4 {q4(vG)}, v{vM}, {srd(S_WS)}, s{sTmp} offen sc1
    buffer_load_dwordx4 {q4(vG+4)}, v{vM}, {srd(S_WS)}, s{sTmp2} offen sc1
    buffer_load_dwordx4 {q4(vG+8)}, v{vM+5}, {srd(S_WS)}, s{sTmp3} offen sc1
    s_waitcnt vmcnt(0)
    v_xor_b32 v{vT0}, s{sT}, v{vG+1}
    v_xor_b32 v{vT1}, s{sT}, v{vG+3}
    v_xor_b32 v{vT2}, s{sT}, v{vG+5}
    v_xor_b32 v{vT3}, s{sT}, v{vG+7}
    v_or3_b32 v{vT0}, v{vT0}, v{vT1}, v{vT2}
    v_xor_b32 v{vT1}, s{sT}, v{vG+9}
    v_xor_b32 v{vT2}, s{sT}, v{vG+11}
    v_or3_b32 v{vT0}, v{vT0}, v{vT1}, v{vT2}
    v_or_b32 v{vT0}, v{vT0}, v{vT3}
    v_cmp_ne_u32 vcc, 0, v{vT0}
    s_add_u32 s{sSpin}, s{sSpin}, 1
    s_cmp_gt_u32 s{sSpin}, {spin_limit}
    s_cbranch_scc1 L_pollo_done
    s_cbranch_vccnz L_pollo
    """)
    a.label("L_pollo_done")
    a.vm = []
    stamp()
    a(f"v_mov_b32 v{vT0}, v{vG+8}")
    for n in (4, 2, 1):
        a("s_nop 1")
        a(f"v_max_f32_dpp v{vT0}, v{vT0}, v{vT0} row_ror:{n} row_mask:0xf bank_mask:0xf")
    a(f"""
    v_sub_f32 v{vT1}, v{vG+8}, v{vT0}
    v_mul_f32 v{vT1}, s{sLog2e}, v{vT1}
    v_exp_f32 v{vT1}, v{vT1}
    s_nop 0
    v_mul_f32 v{vT2}, v{vT1}, v{vG+10}
    """)
    for n in (4, 2, 1):
        a("s_nop 1")
        a(f"v_add_f32_dpp v{vT2}, v{vT2}, v{vT2} row_ror:{n} row_mask:0xf bank_mask:0xf")
    a(f"""
    v_rcp_f32 v{vT2}, v{vT2}
    s_nop 0
    v_mul_f32 v{vT1}, v{vT1}, v{vT2}
    s_nop 1
    v_mov_b32_dpp v{vT2}, v{vT1} row_newbcast:0 row_mask:0xf bank_mask:0xf
    v_mov_b32_dpp v{vT3}, v{vT1} row_newbcast:4 row_mask:0xf bank_mask:0xf
    v_mul_f32 v{vG}, v{vG}, v{vT2}
    v_mul_f32 v{vG+2}, v{vG+2}, v{vT2}
    v_fmac_f32 v{vG}, v{vG+4}, v{vT3}
    v_fmac_f32 v{vG+2}, v{vG+6}, v{vT3}
    s_nop 1
    """)
    red32(vG, vG+2)
    a(f"v_mov_b32 v{vT0}, v{vG}")
    a("s_nop 1")
    red16(vG, vT0)
    a(f"""
    v_cvt_pk_bf16_f32 v{vG}, v{vG}, v{vG}
    v_and_b32 v{vG}, 0xffff, v{vG}
    v_and_b32 v{vT0}, 15, v{vL}
    v_lshlrev_b32 v{vT0}, 3, v{vT0}
    v_lshrrev_b32 v{vT1}, 5, v{vL}
    v_lshl_add_u32 v{vT0}, v{vT1}, 2, v{vT0}      ; (2c + (l>>5))*4
    s_lshl_b32 s{sTmp}, s{sW}, 7
    v_add_u32 v{vT0}, s{sTmp}, v{vT0}
    ds_write_b32 v{vT0}, v{vG} offset:{L_OT}
    v_lshrrev_b32 v{vT0}, 3, v{vL}
    v_lshlrev_b32 v{vT0}, 2, v{vT0}
    v_add_u32 v{vT0}, s{sTmp}, v{vT0}
    v_lshrrev_b32 v{vT1}, 1, v{vL}
    v_lshlrev_b32 v{vT1}, 2, v{vT1}
    v_add_u32 v{vT1}, s{sTmp}, v{vT1}
    s_waitcnt lgkmcnt(0)
    """)
    for i in range(4):
        a(f"ds_read_b32 v{vXq+i}, v{vT0} offset:{L_OT+32*i}")
    a(f"ds_read_b32 v{vXq+4}, v{vT1} offset:{L_OT}")
    zero(vAcc); zero(vP)
    a("s_waitcnt lgkmcnt(0)")
    for i in range(5):
        a(f"v_lshlrev_b32 v{vXqh+i}, 16, v{vXq+i}")
    for i in range(4): mac8(vAcc, vWQ+4*i, vXq+i, vXqh+i)
    mac8(vP, vWQ+16, vXq+4, vXqh+4)
    red_tile(vAcc, vP, L_SP)
    a("s_waitcnt lgkmcnt(0)")
    a("s_barrier")
    a(f"""
    s_cmp_gt_u32 s{sW}, 1
    s_cbranch_scc1 L_pubs_done
    s_cmp_eq_u32 s{sW}, 0
    s_cbranch_scc1 L_pubs_s
    s_cmp_eq_u32 s{sC2}, 0
    s_cbranch_scc1 L_pubs_done
    s_mov_b32 s{sTmp2}, {L_YP}
    s_mov_b32 s{sTmp3}, {WS_Y}
    s_branch L_pubs_common
    """)
    a.label("L_pubs_s")
    a(f"s_mov_b32 s{sTmp2}, {L_SP}")
    a(f"s_mov_b32 s{sTmp3}, {WS_S}")
    a.label("L_pubs_common")
    a(f"""
    v_lshlrev_b32 v{vT0}, 3, v{vL}
    v_add_u32 v{vT0}, s{sTmp2}, v{vT0}
    s_mov_b32 s{sMask}, -1
    s_mov_b32 s{sMask+1}, 0xff
    s_mov_b64 exec, s[{sMask}:{sMask+1}]
    """)
    for k in range(4):
        a(f"ds_read_b64 v[{vG+2*k}:{vG+2*k+1}], v{vT0} offset:{320*k}")
    a(f"""
    v_lshrrev_b32 v{vT1}, 3, v{vL}
    v_lshlrev_b32 v{vT1}, 12, v{vT1}
    v_and_b32 v{vT2}, 7, v{vL}
    v_lshl_add_u32 v{vT1}, v{vT2}, 4, v{vT1}
    s_mul_i32 s{sTmp}, s{sJ}, {5*4096}
    s_lshl_b32 s{sTmp2}, s{sG}, 7
    s_add_u32 s{sTmp}, s{sTmp}, s{sTmp2}
    s_add_u32 s{sTmp}, s{sTmp}, s{sTmp3}
    s_waitcnt lgkmcnt(0)
    v_add_f32 v{vG}, v{vG}, v{vG+2}
    v_add_f32 v{vG+1}, v{vG+1}, v{vG+3}
    v_add_f32 v{vG+4}, v{vG+4}, v{vG+6}
    v_add_f32 v{vG+5}, v{vG+5}, v{vG+7}
    v_add_f32 v{vG+8}, v{vG}, v{vG+4}
    v_add_f32 v{vG+10}, v{vG+1}, v{vG+5}
    v_mov_b32 v{vG+9}, s{sT}
    v_mov_b32 v{vG+11}, s{sT}
    buffer_store_dwordx4 {q4(vG+8)}, v{vT1}, {srd(S_WS)}, s{sTmp} offen sc1
    s_mov_b64 exec, -1
    """)
    a.label("L_pubs_done")
    stamp()
    a(f"""
    s_cmp_lt_u32 s{sG}, 27
    s_cbranch_scc1 L_fin
    s_cmp_eq_u32 s{sW}, 2
    s_cbranch_scc0 L_fin
    s_sub_u32 s{sTmp}, s{sG}, 27
    s_lshl_b32 s{sTmp}, s{sTmp}, 3
    s_add_u32 s{sTmp}, s{sTmp}, s{sJ}             ; c = 0..39
    s_lshl_b32 s{sC1}, s{sTmp}, 5
    s_lshl_b32 s{sTmp}, s{sTmp}, 12
    s_add_u32 s{sTmp2}, s{sTmp}, {WS_Y}
    s_add_u32 s{sTmp}, s{sTmp}, {WS_S}
    v_lshlrev_b32 v{vT0}, 4, v{vL}                ; l*16 = p8*128 + c2*16
    v_and_b32 v{vT1}, 7, v{vL}
    v_lshlrev_b32 v{vT1}, 2, v{vT1}               ; c2*4
    buffer_load_dword v{vM+6}, v{vT1}, {srd(S_X)}, s{sC1} offen
    buffer_load_dword v{vM+7}, v{vT1}, {srd(S_B2)}, s{sC1} offen
    v_mov_b32 v{vF+28}, 0
    v_mov_b32 v{vF+29}, s{sT}
    v_mov_b32 v{vF+30}, 0
    v_mov_b32 v{vF+31}, s{sT}
    s_mov_b32 s{sMask}, 0xffffff
    s_mov_b32 s{sMask+1}, 0
    """)
    a.label("L_pollf")
    for i in range(4):
        a(f"buffer_load_dwordx4 {q4(vF+4*i)}, v{vT0}, {srd(S_WS)}, s{sTmp} offen offset:{1024*i} sc1")
    for i in range(3):
        a(f"buffer_load_dwordx4 {q4(vF+16+4*i)}, v{vT0}, {srd(S_WS)}, s{sTmp2} offen offset:{1024*i} sc1")
    a(f"s_mov_b64 exec, s[{sMask}:{sMask+1}]")
    a(f"buffer_load_dwordx4 {q4(vF+28)}, v{vT0}, {srd(S_WS)}, s{sTmp2} offen offset:3072 sc1")
    a("s_mov_b64 exec, -1")
    a("s_waitcnt vmcnt(0)")
    a(f"v_mov_b32 v{vT2}, 0")
    for i in range(8):
        a(f"v_xor_b32 v{vT3}, s{sT}, v{vF+4*i+1}")
        a(f"v_xor_b32 v{vT4}, s{sT}, v{vF+4*i+3}")
        a(f"v_or3_b32 v{vT2}, v{vT2}, v{vT3}, v{vT4}")
    a(f"""
    v_cmp_ne_u32 vcc, 0, v{vT2}
    s_add_u32 s{sSpin}, s{sSpin}, 1
    s_cmp_gt_u32 s{sSpin}, {spin_limit}
    s_cbranch_scc1 L_pollf_done
    s_cbranch_vccnz L_pollf
    """)
    a.label("L_pollf_done")
    for (dst, base) in ((vG, vF), (vG+2, vF+16)):
        a(f"v_add_f32 v{dst}, v{base}, v{base+4}")
        a(f"v_add_f32 v{dst+1}, v{base+2}, v{base+6}")
        a(f"v_add_f32 v{vT2}, v{base+8}, v{base+12}")
        a(f"v_add_f32 v{vT3}, v{base+10}, v{base+14}")
        a(f"v_add_f32 v{dst}, v{dst}, v{vT2}")
        a(f"v_add_f32 v{dst+1}, v{dst+1}, v{vT3}")
    a("s_nop 1")
    for r in range(vG, vG+4):
        a(f"v_add_f32_dpp v{r}, v{r}, v{r} row_ror:8 row_mask:0xf bank_mask:0xf")
    for r in range(vG, vG+4):
        a(f"v_mov_b32 v{vT2}, v{r}")
        a("s_nop 1")
        red16(r, vT2)
        a(f"v_mov_b32 v{vT2}, v{r}")
        a("s_nop 1")
        red32(r, vT2)
    a(f"""
    v_cvt_pk_bf16_f32 v{vT2}, v{vG}, v{vG+1}
    v_lshlrev_b32 v{vG}, 16, v{vT2}
    v_and_b32 v{vG+1}, 0xffff0000, v{vT2}
    v_cvt_pk_bf16_f32 v{vT2}, v{vG+2}, v{vG+3}
    v_lshlrev_b32 v{vG+2}, 16, v{vT2}
    v_and_b32 v{vG+3}, 0xffff0000, v{vT2}
    v_lshlrev_b32 v{vT2}, 16, v{vM+7}
    v_and_b32 v{vT3}, 0xffff0000, v{vM+7}
    v_add_f32 v{vG+2}, v{vG+2}, v{vT2}
    v_add_f32 v{vG+3}, v{vG+3}, v{vT3}
    v_cvt_pk_bf16_f32 v{vT2}, v{vG+2}, v{vG+3}
    v_lshlrev_b32 v{vG+2}, 16, v{vT2}
    v_and_b32 v{vG+3}, 0xffff0000, v{vT2}
    """)
    for r in (vG+2, vG+3):
        a(f"""
        v_mul_f32 v{vT2}, s{sLog2e}, v{r}
        v_sub_f32 v{vT2}, 0, v{vT2}
        v_exp_f32 v{vT2}, v{vT2}
        s_nop 0
        v_add_f32 v{vT2}, 1.0, v{vT2}
        v_rcp_f32 v{vT2}, v{vT2}
        s_nop 0
        v_mul_f32 v{r}, v{r}, v{vT2}
        """)
    a(f"""
    v_cvt_pk_bf16_f32 v{vT2}, v{vG+2}, v{vG+3}
    v_lshlrev_b32 v{vG+2}, 16, v{vT2}
    v_and_b32 v{vG+3}, 0xffff0000, v{vT2}
    v_mul_f32 v{vG}, v{vG}, v{vG+2}
    v_mul_f32 v{vG+1}, v{vG+1}, v{vG+3}
    v_cvt_pk_bf16_f32 v{vT2}, v{vG}, v{vG+1}
    v_lshlrev_b32 v{vG}, 16, v{vT2}
    v_and_b32 v{vG+1}, 0xffff0000, v{vT2}
    v_lshlrev_b32 v{vT2}, 16, v{vM+6}
    v_and_b32 v{vT3}, 0xffff0000, v{vM+6}
    v_add_f32 v{vG}, v{vG}, v{vT2}
    v_add_f32 v{vG+1}, v{vG+1}, v{vT3}
    v_cvt_pk_bf16_f32 v{vT2}, v{vG}, v{vG+1}
    s_mov_b64 exec, 0xff
    buffer_store_dword v{vT2}, v{vT1}, {srd(S_OUT)}, s{sC1} offen
    s_cmp_eq_u32 s{sC1}, 0
    s_cbranch_scc0 L_fin0
    v_mov_b32 v{vT2}, s{sT}
    v_mov_b32 v{vT3}, 0
    s_mov_b64 exec, 1
    buffer_store_dword v{vT2}, v{vT3}, {srd(S_WS)}, 0 offen sc1
    """)
    a.label("L_fin0")
    a("s_mov_b64 exec, -1")
    a.label("L_fin")
    if stamps:
        stamp()
        a("s_waitcnt lgkmcnt(0)")
        a(f"""
        s_lshl_b32 s{sTmp}, s2, 2
        s_add_u32 s{sTmp}, s{sTmp}, s{sW}
        s_lshl_b32 s{sTmp}, s{sTmp}, 7
        s_add_u32 s{sTmp}, s{sTmp}, {WS_TS}
        v_mov_b32 v{vT0}, 0
        """)
        for k in range(11):
            a(f"v_mov_b32 v{vG+k}, s{SP[k]}")
        a(f"v_mov_b32 v{vG+11}, s{sSpin}")
        a("s_mov_b64 exec, 1")
        a(f"buffer_store_dwordx4 {q4(vG)}, v{vT0}, {srd(S_WS)}, s{sTmp} offen")
        a(f"buffer_store_dwordx4 {q4(vG+4)}, v{vT0}, {srd(S_WS)}, s{sTmp} offen offset:16")
        a(f"buffer_store_dwordx4 {q4(vG+8)}, v{vT0}, {srd(S_WS)}, s{sTmp} offen offset:32")
    a.label("L_end")
    a("s_endpgm")
    body = a.text()
    src = HDR_COMMENT + f"""; Override launch geometry by editing the next line (default: block=256,
; grid=ceil(out_elems/256), lds=0). Harness parses it; keep it on one line.
; @launch grid=(256,1,1) block=(256,1,1) lds={LDS}
.amdgcn_target "amdgcn-amd-amdhsa--gfx950"
.text
.globl {KN}
.p2align 8
.type {KN},@function
{KN}:
{body}
.section .rodata,"a"
.p2align 6
.amdhsa_kernel {KN}
  .amdhsa_next_free_vgpr {NV}
  .amdhsa_next_free_sgpr 102
  .amdhsa_accum_offset {NV}
  .amdhsa_group_segment_fixed_size 0
  .amdhsa_kernarg_size 104
  .amdhsa_user_sgpr_count 2
  .amdhsa_user_sgpr_kernarg_segment_ptr 1
  .amdhsa_system_sgpr_workgroup_id_x 1
.end_amdhsa_kernel
"""
    return src

if __name__ == "__main__":
    import argparse
    p = argparse.ArgumentParser()
    p.add_argument("-o", default="k1.s")
    p.add_argument("--stamps", action="store_true")
    p.add_argument("--no-nt", action="store_true")
    p.add_argument("--kpre", type=int, default=8)
    args = p.parse_args()
    open(args.o, "w").write(gen(nt=not args.no_nt, stamps=args.stamps, kpre=args.kpre))
```

```python
import sys
KN = "recurrent_scan__sliding_block_cached__dense_activation_gelu__decode_kernel"

HDR_COMMENT = open("recurrent_scan__sliding_block_cached__dense_activation_gelu__decode.s.ref").read().split("; Override launch")[0]

class A:
    def __init__(self):
        self.l = []
        self.vm = []
    def __call__(self, s):
        for line in s.strip("\n").split("\n"):
            self.l.append("  " + line.strip())
    def label(self, n): self.l.append(n + ":")
    def c(self, s): self.l.append("  ; " + s)
    def vmem(self, s, tag):
        self(s); self.vm.append(tag)
    def wait_vm(self, tag):
        idx = max(i for i, t in enumerate(self.vm) if t == tag)
        n = len(self.vm) - 1 - idx
        self(f"s_waitcnt vmcnt({min(n,63)})")
        self.vm = self.vm[idx + 1:]
    def wait_vm_all(self):
        self("s_waitcnt vmcnt(0)"); self.vm = []
    def text(self): return "\n".join(self.l) + "\n"

WS_EPOCH = 0
WS_Q  = 0x1000
WS_H  = WS_Q + 32*8*1024
WS_O  = WS_H + 32*8*512
WS_ST = WS_O + 32*8*1024
WS_S  = WS_ST + 32*128
WS_Y  = WS_S + 40*32*128
WS_TS = WS_Y + 40*32*128
WS_END = WS_TS + 256*4*128
TAGC = 0x9E3779B9

def gen(nt=True, stamps=False, kpre=8, spin_limit=1<<18, dbg=False):
    a = A()
    NT = " nt" if nt else ""
    S_X, S_K, S_V, S_WQ, S_WO, S_W1, S_B1, S_W2, S_B2, S_OUT, S_WS = [44 + 4*i for i in range(11)]
    srd = lambda b: f"s[{b}:{b+3}]"
    sG, sJ, sW, sT = 3, 4, 5, 6
    sTmp, sTmp2, sTmp3 = 7, 8, 9
    sSpin = 10
    sMean, sRstd = 11, 12
    sWQ = [16,17,18,19,20]; sW1 = [21,22,23]; sK0, sK1 = 24, 25
    sWO = [26,27,28,29]; sW2 = [30,31]
    sScale, sLog2e = 32, 33
    sMask = 34
    sSave = 36
    sC1, sC2 = 38, 39
    sTS = 88
    vL = 1; vKV = 2; vWQo = 3; vW1o = 4; vWOm = 5; vWOe = 6; vT0 = 7; vT1 = 8; vT2 = 9; vT3 = 10; vT4=11
    vE = 12
    vX = 13
    vXq = 18
    vX1 = 23
    vXqh = 26
    vX1h = 31
    vAcc = 34
    vAcc2 = 42
    vP = 50
    vPh = 58
    vQ = 66
    vG = 70
    vM = 82
    vWQ = 96
    vW1 = 116
    vK = 128
    vV = 160
    vF = 192
    NV = 224
    def q4(b): return f"v[{b}:{b+3}]"
    def q2(b): return f"v[{b}:{b+1}]"
    nstamp = [0]
    SP = [88,90,92,94,96,98,100,40,42,12,14]
    def stamp():
        if stamps and nstamp[0] < len(SP):
            r = SP[nstamp[0]]
            a(f"s_memrealtime s[{r}:{r+1}]"); nstamp[0] += 1

    L_QP = 0
    L_HP = 2048
    L_Q  = 3072
    L_MX = 3328
    L_OP = 3584
    L_LS = 5632
    L_OT = 5888
    L_HT = 6400
    L_SP = 6656
    L_YP = 7936
    LDS = 9216

    a("s_cmp_ge_u32 s2, 256")
    a("s_cbranch_scc1 L_end")
    stamp()
    for i, b in enumerate([S_X, S_K, S_V, S_WQ, S_WO, None, S_W1, S_B1, S_W2, S_B2, S_OUT, None, S_WS]):
        if b is not None:
            a(f"s_load_dwordx2 s[{b}:{b+1}], s[0:1], {8*i}")
    sizes = {S_X:1280, S_K:33554432, S_V:33554432, S_WQ:5242880, S_WO:5242880, S_W1:2211840, S_B1:3456, S_W2:2211840, S_B2:1280, S_OUT:1280, S_WS:WS_END}
    for b, sz in sizes.items():
        a(f"s_mov_b32 s{b+2}, {sz}")
        a(f"s_mov_b32 s{b+3}, 0x20000")
    a(f"""
    v_and_b32 v{vL}, 63, v0
    v_lshrrev_b32 v{vT0}, 6, v0
    s_and_b32 s{sG}, s2, 31
    s_lshr_b32 s{sJ}, s2, 5
    v_readfirstlane_b32 s{sW}, v{vT0}
    v_lshlrev_b32 v{vKV}, 4, v{vL}
    v_lshrrev_b32 v{vT0}, 4, v{vL}            ; k4
    v_and_b32 v{vT1}, 15, v{vL}               ; c8
    v_lshlrev_b32 v{vWQo}, 13, v{vT0}
    v_lshl_add_u32 v{vWQo}, v{vT1}, 4, v{vWQo}   ; k4*8192 + c8*16
    v_lshlrev_b32 v{vT2}, 1, v{vT0}
    v_lshrrev_b32 v{vT0}, 3, v{vL}            ; r8
    v_and_b32 v{vT1}, 7, v{vL}                ; c3
    v_mul_u32_u24 v{vW1o}, 3456, v{vT0}
    v_lshl_add_u32 v{vW1o}, v{vT1}, 4, v{vW1o}   ; r8*3456 + c3*16
    v_mul_u32_u24 v{vWOm}, 1280, v{vT0}
    v_lshl_add_u32 v{vWOm}, v{vT1}, 4, v{vWOm}   ; r8*1280 + c3*16
    v_lshlrev_b32 v{vT3}, 1, v{vT0}
    v_lshrrev_b32 v{vT0}, 1, v{vL}
    v_and_b32 v{vT1}, 1, v{vL}
    v_mul_u32_u24 v{vWOe}, 1280, v{vT0}
    v_lshl_add_u32 v{vWOe}, v{vT1}, 4, v{vWOe}
    v_add_u32 v{vWOe}, 128, v{vWOe}           ; (l>>1)*1280 + 128 + (l&1)*16
    v_lshlrev_b32 v{vT4}, 2, v{vL}            ; l*4
    v_mov_b32 v{vT1}, 0
    """)
    a(f"""
    s_mul_i32 s{sTmp}, s{sJ}, 80
    s_mul_i32 s{sTmp2}, s{sW}, 20
    s_add_u32 s{sTmp}, s{sTmp}, s{sTmp2}        ; row0 = 80j+20w
    s_lshl_b32 s{sTmp3}, s{sTmp}, 1
    s_lshl_b32 s{sWQ[0]}, s{sTmp}, 13
    s_lshl_b32 s{sTmp2}, s{sG}, 8
    s_add_u32 s{sWQ[0]}, s{sWQ[0]}, s{sTmp2}
    """)
    for i in range(1, 5):
        a(f"s_add_u32 s{sWQ[i]}, s{sWQ[i-1]}, 32768")
    a(f"""
    s_mul_i32 s{sW1[0]}, s{sTmp}, 3456
    s_lshl_b32 s{sTmp2}, s{sG}, 7
    s_add_u32 s{sW1[0]}, s{sW1[0]}, s{sTmp2}
    s_add_u32 s{sW1[1]}, s{sW1[0]}, {8*3456}
    s_add_u32 s{sW1[2]}, s{sW1[0]}, {16*3456}
    s_lshl_b32 s{sK0}, s{sG}, 20
    s_lshl_b32 s{sTmp2}, s{sJ}, 15
    s_add_u32 s{sK0}, s{sK0}, s{sTmp2}
    s_lshl_b32 s{sTmp2}, s{sW}, 13
    s_add_u32 s{sK0}, s{sK0}, s{sTmp2}
    s_add_u32 s{sK0}, s{sK0}, {3072*256}
    s_add_u32 s{sK1}, s{sK0}, 4096
    s_lshl_b32 s{sTmp}, s{sG}, 7
    s_lshl_b32 s{sTmp2}, s{sW}, 5
    s_add_u32 s{sTmp}, s{sTmp}, s{sTmp2}         ; 128g+32w
    s_mul_i32 s{sWO[0]}, s{sTmp}, 1280
    s_mul_i32 s{sTmp2}, s{sJ}, 160
    s_add_u32 s{sWO[0]}, s{sWO[0]}, s{sTmp2}
    s_add_u32 s{sWO[1]}, s{sWO[0]}, 10240
    s_add_u32 s{sWO[2]}, s{sWO[0]}, 20480
    s_add_u32 s{sWO[3]}, s{sWO[0]}, 30720
    s_lshl_b32 s{sTmp}, s{sG}, 6
    s_lshl_b32 s{sC1}, s{sW}, 4
    s_add_u32 s{sTmp}, s{sTmp}, s{sC1}           ; 64g+16w
    s_mul_i32 s{sW2[0]}, s{sTmp}, 1280
    s_add_u32 s{sW2[0]}, s{sW2[0]}, s{sTmp2}
    s_add_u32 s{sW2[1]}, s{sW2[0]}, 10240
    s_mov_b32 s{sScale}, 0x3db504f3              ; 128^-0.5 (f32)
    s_mov_b32 s{sLog2e}, 0x3fb8aa3b
    s_mov_b32 s{sSpin}, 0
    s_waitcnt lgkmcnt(0)
    """)
    a.vmem(f"buffer_load_dword v{vE}, v{vT1}, {srd(S_WS)}, 0 offen sc1", "E")
    a.vmem(f"buffer_load_dwordx4 {q4(14)}, v{vKV}, {srd(S_X)}, 0 offen", "x")
    a.vmem(f"buffer_load_dword v13, v{vT4}, {srd(S_X)}, 0 offen offset:1024", "x")
    for i in range(5):
        a.vmem(f"buffer_load_ushort v{vXq+i}, v{vT2}, {srd(S_X)}, s{sTmp3} offen offset:{8*i}", "x")
    for i in range(3):
        a.vmem(f"buffer_load_ushort v{vX1+i}, v{vT3}, {srd(S_X)}, s{sTmp3} offen offset:{16*i}", "x")
    for i in range(5):
        a.vmem(f"buffer_load_dwordx4 {q4(vWQ+4*i)}, v{vWQo}, {srd(S_WQ)}, s{sWQ[i]} offen{NT}", "wq")
    a(f"s_cmp_lt_u32 s{sG}, 27")
    a(f"s_cselect_b32 s{sC2}, 1, 0")
    a(f"s_cselect_b32 s{sC1}, 0, 0x7f000000")
    for i in range(3):
        a(f"s_add_u32 s{sW1[i]}, s{sW1[i]}, s{sC1}")
    for i in range(2):
        a(f"s_add_u32 s{sW2[i]}, s{sW2[i]}, s{sC1}")
    for i in range(3):
        if i == 2:
            a("s_mov_b32 exec_hi, 0")
        a.vmem(f"buffer_load_dwordx4 {q4(vW1+4*i)}, v{vW1o}, {srd(S_W1)}, s{sW1[i]} offen{NT}", "w1")
        if i == 2:
            a("s_mov_b64 exec, -1")
    def kload(i):
        a.vmem(f"buffer_load_dwordx4 {q4(vK+4*i)}, v{vKV}, {srd(S_K)}, s{sK0 if i < 4 else sK1} offen offset:{1024*(i%4)}{NT}", f"k{i}")
    def vload(i):
        a.vmem(f"buffer_load_dwordx4 {q4(vV+4*i)}, v{vKV}, {srd(S_V)}, s{sK0 if i < 4 else sK1} offen offset:{1024*(i%4)}{NT}", f"v{i}")
    for i in range(kpre): kload(i)
    stamp()
    a.wait_vm("x")
    a(f"v_readfirstlane_b32 s{sT}, v{vE}")
    a(f"s_add_u32 s{sT}, s{sT}, {TAGC}")
    xs = list(range(vM, vM+10))
    for k, r in enumerate([14,15,16,17,13]):
        a(f"v_lshlrev_b32 v{xs[2*k]}, 16, v{r}")
        a(f"v_and_b32 v{xs[2*k+1]}, 0xffff0000, v{r}")
    def wave_sum(v, t):
        for n in (8, 4, 2, 1):
            a("s_nop 1")
            a(f"v_add_f32_dpp v{v}, v{v}, v{v} row_ror:{n} row_mask:0xf bank_mask:0xf")
        a(f"v_mov_b32 v{t}, v{v}")
        a("s_nop 1")
        a(f"v_permlane16_swap_b32 v{v}, v{t}")
        a(f"v_add_f32 v{v}, v{v}, v{t}")
        a(f"v_mov_b32 v{t}, v{v}")
        a("s_nop 1")
        a(f"v_permlane32_swap_b32 v{v}, v{t}")
        a(f"v_add_f32 v{v}, v{v}, v{t}")
    a(f"v_add_f32 v{vT0}, v{xs[0]}, v{xs[1]}")
    for k in range(2, 10):
        a(f"v_add_f32 v{vT0}, v{vT0}, v{xs[k]}")
    wave_sum(vT0, vT1)
    a(f"v_mul_f32 v{vT0}, 0x3acccccd, v{vT0}")
    for k in range(10):
        a(f"v_sub_f32 v{xs[k]}, v{xs[k]}, v{vT0}")
    a(f"v_mul_f32 v{vT2}, v{xs[0]}, v{xs[0]}")
    for k in range(1, 10):
        a(f"v_fmac_f32 v{vT2}, v{xs[k]}, v{xs[k]}")
    wave_sum(vT2, vT1)
    a(f"v_mul_f32 v{vT2}, 0x3acccccd, v{vT2}")
    def rnd(v):
        a(f"v_cvt_pk_bf16_f32 v{v}, v{v}, v{v}")
        a(f"v_and_b32 v{v}, 0xffff0000, v{v}")
    rnd(vT0); rnd(vT2)
    a(f"v_add_f32 v{vT2}, 0x3727c5ac, v{vT2}")
    rnd(vT2)
    a(f"v_sqrt_f32 v{vT2}, v{vT2}")
    a("s_nop 0")
    rnd(vT2)
    a(f"v_rcp_f32 v{vT2}, v{vT2}")
    a("s_nop 0")
    for (lo, hi) in [(vXq+i, vXqh+i) for i in range(5)] + [(vX1+i, vX1h+i) for i in range(3)]:
        a(f"v_lshlrev_b32 v{lo}, 16, v{lo}")
        a(f"v_sub_f32 v{lo}, v{lo}, v{vT0}")
        rnd(lo)
        a(f"v_mul_f32 v{lo}, v{lo}, v{vT2}")
        a(f"v_cvt_pk_bf16_f32 v{lo}, v{lo}, v{lo}")
        a(f"v_and_b32 v{hi}, 0xffff0000, v{lo}")
        a(f"v_and_b32 v{lo}, 0xffff, v{lo}")
    for i in range(kpre, 8): kload(i)
    def zero(base, n=8):
        for k in range(n): a(f"v_mov_b32 v{base+k}, 0")
    def mac8(acc, w, lo, hi):
        for k in range(4):
            a(f"v_dot2c_f32_bf16 v{acc+2*k}, v{w+k}, v{lo}")
            a(f"v_dot2c_f32_bf16 v{acc+2*k+1}, v{w+k}, v{hi}")
    def red32(x, y):
        a(f"v_permlane32_swap_b32 v{x}, v{y}")
        a(f"v_add_f32 v{x}, v{x}, v{y}")
    def red16(x, y):
        a(f"v_permlane16_swap_b32 v{x}, v{y}")
        a(f"v_add_f32 v{x}, v{x}, v{y}")
    def red8regs(acc):
        a("s_nop 2")
        red32(acc+0, acc+4); red32(acc+2, acc+6); red32(acc+1, acc+5); red32(acc+3, acc+7)
        a("s_nop 0")
        red16(acc+0, acc+2); red16(acc+1, acc+3)
    zero(vAcc); zero(vAcc2)
    a.wait_vm("wq")
    stamp()
    for i in range(5): mac8(vAcc, vWQ+4*i, vXq+i, vXqh+i)
    a.wait_vm("w1")
    for i in range(2): mac8(vAcc2, vW1+4*i, vX1+i, vX1h+i)
    a("s_mov_b32 exec_hi, 0")
    mac8(vAcc2, vW1+8, vX1+2, vX1h+2)
    a("s_mov_b64 exec, -1")
    red8regs(vAcc)
    red8regs(vAcc2)
    a("s_nop 1")
    for r in (vAcc2, vAcc2+1):
        a(f"v_add_f32_dpp v{r}, v{r}, v{r} row_ror:8 row_mask:0xf bank_mask:0xf")
    a(f"""
    v_and_b32 v{vT0}, 15, v{vL}
    v_lshlrev_b32 v{vT0}, 5, v{vT0}
    v_lshrrev_b32 v{vT1}, 4, v{vL}
    v_lshl_add_u32 v{vT0}, v{vT1}, 3, v{vT0}
    s_lshl_b32 s{sTmp}, s{sW}, 9
    v_add_u32 v{vT0}, s{sTmp}, v{vT0}
    v_and_b32 v{vT2}, 7, v{vL}
    v_lshlrev_b32 v{vT2}, 5, v{vT2}
    v_lshl_add_u32 v{vT2}, v{vT1}, 3, v{vT2}
    s_lshl_b32 s{sTmp}, s{sW}, 8
    v_add_u32 v{vT2}, s{sTmp}, v{vT2}
    ds_write_b64 v{vT0}, v[{vAcc}:{vAcc+1}] offset:{L_QP}
    ds_write_b64 v{vT2}, v[{vAcc2}:{vAcc2+1}] offset:{L_HP}
    s_waitcnt lgkmcnt(0)
    s_barrier
    """)
    a(f"v_lshlrev_b32 v{vT0}, 3, v{vL}")
    a(f"s_cmp_eq_u32 s{sW}, 0")
    a("s_cbranch_scc1 L_pubq")
    a(f"s_cmp_eq_u32 s{sW}, 1")
    a("s_cbranch_scc0 L_pub_done")
    a(f"s_cmp_eq_u32 s{sC2}, 0")
    a("s_cbranch_scc1 L_pub_done")
    a("s_mov_b32 exec_hi, 0")
    for k in range(4):
        a(f"ds_read_b64 v[{vG+2*k}:{vG+2*k+1}], v{vT0} offset:{L_HP+256*k}")
    a(f"""
    s_lshl_b32 s{sTmp}, s{sG}, 3
    s_add_u32 s{sTmp}, s{sTmp}, s{sJ}
    s_lshl_b32 s{sTmp}, s{sTmp}, 9
    s_add_u32 s{sTmp}, s{sTmp}, {WS_H}
    s_branch L_pub_common
    """)
    a.label("L_pubq")
    for k in range(4):
        a(f"ds_read_b64 v[{vG+2*k}:{vG+2*k+1}], v{vT0} offset:{L_QP+512*k}")
    a(f"""
    s_lshl_b32 s{sTmp}, s{sG}, 3
    s_add_u32 s{sTmp}, s{sTmp}, s{sJ}
    s_lshl_b32 s{sTmp}, s{sTmp}, 10
    s_add_u32 s{sTmp}, s{sTmp}, {WS_Q}
    """)
    a.label("L_pub_common")
    a(f"""
    s_waitcnt lgkmcnt(0)
    v_add_f32 v{vG}, v{vG}, v{vG+2}
    v_add_f32 v{vG+1}, v{vG+1}, v{vG+3}
    v_add_f32 v{vG+4}, v{vG+4}, v{vG+6}
    v_add_f32 v{vG+5}, v{vG+5}, v{vG+7}
    v_add_f32 v{vG+8}, v{vG}, v{vG+4}
    v_add_f32 v{vG+10}, v{vG+1}, v{vG+5}
    v_mov_b32 v{vG+9}, s{sT}
    v_mov_b32 v{vG+11}, s{sT}
    buffer_store_dwordx4 {q4(vG+8)}, v{vKV}, {srd(S_WS)}, s{sTmp} offen sc1
    s_mov_b64 exec, -1
    """)
    a.label("L_pub_done")
    stamp()
    for i in range(4): vload(i)
    a.wait_vm("k5")
    a(f"""
    v_lshrrev_b32 v{vT0}, 4, v{vL}            ; p4
    v_and_b32 v{vT1}, 15, v{vL}               ; c
    v_lshlrev_b32 v{vT0}, 10, v{vT0}
    v_lshl_add_u32 v{vM}, v{vT1}, 4, v{vT0}
    v_lshrrev_b32 v{vT0}, 3, v{vL}            ; p8
    v_and_b32 v{vT1}, 7, v{vL}
    v_lshlrev_b32 v{vT0}, 9, v{vT0}
    v_lshl_add_u32 v{vM+1}, v{vT1}, 4, v{vT0}
    s_lshl_b32 s{sTmp}, s{sG}, 13
    s_lshl_b32 s{sTmp2}, s{sW}, 8
    s_add_u32 s{sTmp}, s{sTmp}, s{sTmp2}
    s_add_u32 s{sTmp}, s{sTmp}, {WS_Q}
    s_add_u32 s{sTmp2}, s{sTmp}, 4096
    s_lshl_b32 s{sTmp3}, s{sG}, 12
    s_lshl_b32 s{sC1}, s{sW}, 7
    s_add_u32 s{sTmp3}, s{sTmp3}, s{sC1}
    s_add_u32 s{sTmp3}, s{sTmp3}, {WS_H}
    """)
    first = True
    a.label("L_pollq")
    a.vmem(f"buffer_load_dwordx4 {q4(vG)}, v{vM}, {srd(S_WS)}, s{sTmp} offen sc1", "pq")
    a.vmem(f"buffer_load_dwordx4 {q4(vG+4)}, v{vM}, {srd(S_WS)}, s{sTmp2} offen sc1", "pq")
    a.wait_vm_all()
    a(f"""
    v_xor_b32 v{vT0}, s{sT}, v{vG+1}
    v_xor_b32 v{vT1}, s{sT}, v{vG+3}
    v_xor_b32 v{vT2}, s{sT}, v{vG+5}
    v_xor_b32 v{vT3}, s{sT}, v{vG+7}
    v_or3_b32 v{vT0}, v{vT0}, v{vT1}, v{vT2}
    v_or_b32 v{vT0}, v{vT0}, v{vT3}
    v_cmp_ne_u32 vcc, 0, v{vT0}
    s_add_u32 s{sSpin}, s{sSpin}, 1
    s_cmp_gt_u32 s{sSpin}, {spin_limit}
    s_cbranch_scc1 L_pollq_done
    s_cbranch_vccnz L_pollq
    """)
    a.label("L_pollq_done")
    stamp()
    for i in range(4, 8): vload(i)
    a(f"""
    v_add_f32 v{vG}, v{vG}, v{vG+4}
    v_add_f32 v{vG+2}, v{vG+2}, v{vG+6}
    s_nop 1
    """)
    red32(vG, vG+2)
    a(f"v_mov_b32 v{vT0}, v{vG}")
    a("s_nop 1")
    red16(vG, vT0)
    a(f"""
    v_cvt_pk_bf16_f32 v{vG}, v{vG}, v{vG}
    v_and_b32 v{vT0}, 15, v{vL}
    v_lshlrev_b32 v{vT0}, 2, v{vT0}           ; 2c*2 bytes
    v_lshrrev_b32 v{vT1}, 5, v{vL}
    v_lshl_add_u32 v{vT0}, v{vT1}, 1, v{vT0}  ; + (l>>5)*2
    s_lshl_b32 s{sTmp}, s{sW}, 6
    v_add_u32 v{vT0}, s{sTmp}, v{vT0}
    ds_write_b16 v{vT0}, v{vG} offset:{L_Q}
    s_waitcnt lgkmcnt(0)
    s_barrier
    v_and_b32 v{vT0}, 15, v{vL}
    v_lshlrev_b32 v{vT0}, 4, v{vT0}
    ds_read_b128 {q4(vQ)}, v{vT0} offset:{L_Q}
    s_waitcnt lgkmcnt(0)
    """)
    for i in range(8):
        a(f"v_mov_b32 v{vP+i}, 0")
    for k in range(4):
        for i in range(8):
            a(f"v_dot2c_f32_bf16 v{vP+i}, v{vK+4*i+k}, v{vQ+k}")
    a("s_nop 2")
    for n in (8, 4, 2, 1):
        for i in range(8):
            a(f"v_add_f32_dpp v{vP+i}, v{vP+i}, v{vP+i} row_ror:{n} row_mask:0xf bank_mask:0xf")
    for i in range(0, 8, 2):
        a(f"v_cvt_pk_bf16_f32 v{vT0}, v{vP+i}, v{vP+i+1}")
        a(f"v_lshlrev_b32 v{vP+i}, 16, v{vT0}")
        a(f"v_and_b32 v{vP+i+1}, 0xffff0000, v{vT0}")
        a(f"v_mul_f32 v{vP+i}, s{sScale}, v{vP+i}")
        a(f"v_mul_f32 v{vP+i+1}, s{sScale}, v{vP+i+1}")
        a(f"v_cvt_pk_bf16_f32 v{vT0}, v{vP+i}, v{vP+i+1}")
        a(f"v_lshlrev_b32 v{vP+i}, 16, v{vT0}")
        a(f"v_and_b32 v{vP+i+1}, 0xffff0000, v{vT0}")
    a(f"v_max3_f32 v{vT0}, v{vP}, v{vP+1}, v{vP+2}")
    a(f"v_max3_f32 v{vT0}, v{vT0}, v{vP+3}, v{vP+4}")
    a(f"v_max3_f32 v{vT0}, v{vT0}, v{vP+5}, v{vP+6}")
    a(f"v_max_f32 v{vT0}, v{vT0}, v{vP+7}")
    a(f"v_mov_b32 v{vT1}, v{vT0}")
    a("s_nop 1")
    a(f"v_permlane16_swap_b32 v{vT0}, v{vT1}")
    a(f"v_max_f32 v{vT0}, v{vT0}, v{vT1}")
    a(f"v_mov_b32 v{vT1}, v{vT0}")
    a("s_nop 1")
    a(f"v_permlane32_swap_b32 v{vT0}, v{vT1}")
    a(f"v_max_f32 v{vT0}, v{vT0}, v{vT1}")
    a(f"""
    s_lshl_b32 s{sTmp}, s{sW}, 2
    v_mov_b32 v{vT1}, s{sTmp}
    ds_write_b32 v{vT1}, v{vT0} offset:{L_MX}
    s_waitcnt lgkmcnt(0)
    s_barrier
    v_mov_b32 v{vT1}, 0
    ds_read_b128 {q4(vG)}, v{vT1} offset:{L_MX}
    s_waitcnt lgkmcnt(0)
    v_max3_f32 v{vM+2}, v{vG}, v{vG+1}, v{vG+2}
    v_max_f32 v{vM+2}, v{vM+2}, v{vG+3}          ; m_j
    """)
    for i in range(8):
        a(f"v_sub_f32 v{vP+i}, v{vP+i}, v{vM+2}")
    for i in range(8):
        a(f"v_mul_f32 v{vP+i}, s{sLog2e}, v{vP+i}")
    for i in range(8):
        a(f"v_exp_f32 v{vP+i}, v{vP+i}")
    a("s_nop 0")
    a(f"v_add_f32 v{vM+3}, v{vP}, v{vP+1}")
    for i in range(2, 8):
        a(f"v_add_f32 v{vM+3}, v{vM+3}, v{vP+i}")
    a(f"v_mov_b32 v{vT1}, v{vM+3}")
    a("s_nop 1")
    red16(vM+3, vT1)
    a(f"v_mov_b32 v{vT1}, v{vM+3}")
    a("s_nop 1")
    red32(vM+3, vT1)
    for i in range(8):
        a(f"v_cvt_pk_bf16_f32 v{vP+i}, v{vP+i}, v{vP+i}")
    for i in range(8):
        a(f"v_and_b32 v{vPh+i}, 0xffff0000, v{vP+i}")
        a(f"v_and_b32 v{vP+i}, 0xffff, v{vP+i}")
    stamp()
    for i in range(4):
        a.vmem(f"buffer_load_dwordx4 {q4(vWQ+4*i)}, v{vWOm}, {srd(S_WO)}, s{sWO[i]} offen{NT}", "wo")
    a.vmem(f"buffer_load_dwordx4 {q4(vWQ+16)}, v{vWOe}, {srd(S_WO)}, s{sWO[0]} offen{NT}", "wo")
    for i in range(2):
        a.vmem(f"buffer_load_dwordx4 {q4(vW1+4*i)}, v{vWOm}, {srd(S_W2)}, s{sW2[i]} offen{NT}", "w2")
    a("s_mov_b32 exec_hi, 0")
    a.vmem(f"buffer_load_dwordx4 {q4(vW1+8)}, v{vWOe}, {srd(S_W2)}, s{sW2[0]} offen{NT}", "w2")
    a("s_mov_b64 exec, -1")
    zero(vAcc)
    for i in range(8):
        a.wait_vm(f"v{i}") if i >= 4 else None
        mac8(vAcc, vV+4*i, vP+i, vPh+i)
    red8regs(vAcc)
    a(f"""
    v_and_b32 v{vT0}, 15, v{vL}
    v_lshlrev_b32 v{vT0}, 5, v{vT0}
    v_lshrrev_b32 v{vT1}, 4, v{vL}
    v_lshl_add_u32 v{vT0}, v{vT1}, 3, v{vT0}
    s_lshl_b32 s{sTmp}, s{sW}, 9
    v_add_u32 v{vT0}, s{sTmp}, v{vT0}
    s_lshl_b32 s{sTmp}, s{sW}, 2
    v_mov_b32 v{vT1}, s{sTmp}
    ds_write_b64 v{vT0}, v[{vAcc}:{vAcc+1}] offset:{L_OP}
    ds_write_b32 v{vT1}, v{vM+3} offset:{L_LS}
    s_waitcnt lgkmcnt(0)
    s_barrier
    s_cmp_eq_u32 s{sW}, 0
    s_cbranch_scc1 L_pubo
    s_cmp_eq_u32 s{sW}, 1
    s_cbranch_scc0 L_pubo_done
    v_mov_b32 v{vT1}, 0
    ds_read_b128 {q4(vG)}, v{vT1} offset:{L_LS}
    s_waitcnt lgkmcnt(0)
    v_add_f32 v{vG}, v{vG}, v{vG+1}
    v_add_f32 v{vG+2}, v{vG+2}, v{vG+3}
    v_add_f32 v{vG+2}, v{vG}, v{vG+2}
    v_mov_b32 v{vG}, v{vM+2}
    v_mov_b32 v{vG+1}, s{sT}
    v_mov_b32 v{vG+3}, s{sT}
    s_lshl_b32 s{sTmp}, s{sG}, 7
    s_lshl_b32 s{sTmp2}, s{sJ}, 4
    s_add_u32 s{sTmp}, s{sTmp}, s{sTmp2}
    s_add_u32 s{sTmp}, s{sTmp}, {WS_ST}
    s_mov_b64 exec, 1
    buffer_store_dwordx4 {q4(vG)}, v{vT1}, {srd(S_WS)}, s{sTmp} offen sc1
    s_mov_b64 exec, -1
    s_branch L_pubo_done
    """)
    a.label("L_pubo")
    a(f"v_lshlrev_b32 v{vT0}, 3, v{vL}")
    for k in range(4):
        a(f"ds_read_b64 v[{vG+2*k}:{vG+2*k+1}], v{vT0} offset:{L_OP+512*k}")
    a(f"""
    s_lshl_b32 s{sTmp}, s{sG}, 3
    s_add_u32 s{sTmp}, s{sTmp}, s{sJ}
    s_lshl_b32 s{sTmp}, s{sTmp}, 10
    s_add_u32 s{sTmp}, s{sTmp}, {WS_O}
    s_waitcnt lgkmcnt(0)
    v_add_f32 v{vG}, v{vG}, v{vG+2}
    v_add_f32 v{vG+1}, v{vG+1}, v{vG+3}
    v_add_f32 v{vG+4}, v{vG+4}, v{vG+6}
    v_add_f32 v{vG+5}, v{vG+5}, v{vG+7}
    v_add_f32 v{vG+8}, v{vG}, v{vG+4}
    v_add_f32 v{vG+10}, v{vG+1}, v{vG+5}
    v_mov_b32 v{vG+9}, s{sT}
    v_mov_b32 v{vG+11}, s{sT}
    buffer_store_dwordx4 {q4(vG+8)}, v{vKV}, {srd(S_WS)}, s{sTmp} offen sc1
    """)
    a.label("L_pubo_done")
    stamp()
    a(f"s_cmp_eq_u32 s{sC2}, 0")
    a("s_cbranch_scc1 L_mlp_done")
    a(f"""
    s_lshl_b32 s{sTmp}, s{sG}, 7
    s_lshl_b32 s{sTmp2}, s{sW}, 5
    s_add_u32 s{sTmp}, s{sTmp}, s{sTmp2}
    v_and_b32 v{vT0}, 7, v{vL}
    v_lshlrev_b32 v{vT0}, 2, v{vT0}
    buffer_load_dword v{vM+4}, v{vT0}, {srd(S_B1)}, s{sTmp} offen
    """)
    a.label("L_pollh")
    a(f"""
    buffer_load_dwordx4 {q4(vG)}, v{vM+1}, {srd(S_WS)}, s{sTmp3} offen sc1
    s_waitcnt vmcnt(0)
    v_xor_b32 v{vT0}, s{sT}, v{vG+1}
    v_xor_b32 v{vT1}, s{sT}, v{vG+3}
    v_or_b32 v{vT0}, v{vT0}, v{vT1}
    v_cmp_ne_u32 vcc, 0, v{vT0}
    s_add_u32 s{sSpin}, s{sSpin}, 1
    s_cmp_gt_u32 s{sSpin}, {spin_limit}
    s_cbranch_scc1 L_pollh_done
    s_cbranch_vccnz L_pollh
    """)
    a.label("L_pollh_done")
    a.vm = []
    a("s_nop 1")
    for r in (vG, vG+2):
        a(f"v_add_f32_dpp v{r}, v{r}, v{r} row_ror:8 row_mask:0xf bank_mask:0xf")
    for r in (vG, vG+2):
        a(f"v_mov_b32 v{vT0}, v{r}")
        a("s_nop 1")
        red16(r, vT0)
        a(f"v_mov_b32 v{vT0}, v{r}")
        a("s_nop 1")
        red32(r, vT0)
    a(f"""
    v_cvt_pk_bf16_f32 v{vT0}, v{vG}, v{vG+2}
    v_lshlrev_b32 v{vG}, 16, v{vT0}
    v_and_b32 v{vG+1}, 0xffff0000, v{vT0}
    v_lshlrev_b32 v{vT1}, 16, v{vM+4}
    v_and_b32 v{vT2}, 0xffff0000, v{vM+4}
    v_add_f32 v{vG}, v{vG}, v{vT1}
    v_add_f32 v{vG+1}, v{vG+1}, v{vT2}
    v_cvt_pk_bf16_f32 v{vT0}, v{vG}, v{vG+1}
    v_lshlrev_b32 v{vG}, 16, v{vT0}
    v_and_b32 v{vG+1}, 0xffff0000, v{vT0}
    s_mov_b32 s{sTmp}, 0x3d372713                 ; 0.044715
    s_mov_b32 s{sTmp2}, 0xc0135761
    """)
    for r in (vG, vG+1):
        a(f"""
        v_mul_f32 v{vT0}, v{r}, v{r}
        v_mul_f32 v{vT0}, s{sTmp}, v{vT0}
        v_fma_f32 v{vT0}, v{vT0}, v{r}, v{r}        ; u + c u^3
        v_mul_f32 v{vT0}, s{sTmp2}, v{vT0}
        v_exp_f32 v{vT0}, v{vT0}
        s_nop 0
        v_add_f32 v{vT0}, 1.0, v{vT0}
        v_rcp_f32 v{vT0}, v{vT0}
        s_nop 0
        v_mul_f32 v{r}, v{r}, v{vT0}
        """)
    a(f"""
    v_cvt_pk_bf16_f32 v{vT0}, v{vG}, v{vG+1}
    v_and_b32 v{vG}, 0xffff, v{vT0}
    v_lshrrev_b32 v{vG+1}, 16, v{vT0}
    v_and_b32 v{vT0}, 7, v{vL}
    v_lshlrev_b32 v{vT0}, 3, v{vT0}
    s_lshl_b32 s{sTmp}, s{sW}, 6
    v_add_u32 v{vT0}, s{sTmp}, v{vT0}
    ds_write_b64 v{vT0}, v[{vG}:{vG+1}] offset:{L_HT}
    v_lshrrev_b32 v{vT0}, 3, v{vL}
    v_lshlrev_b32 v{vT0}, 2, v{vT0}
    v_add_u32 v{vT0}, s{sTmp}, v{vT0}             ; HT + w*64 + r8*4
    v_lshrrev_b32 v{vT1}, 1, v{vL}
    v_and_b32 v{vT1}, 15, v{vT1}
    v_lshlrev_b32 v{vT1}, 2, v{vT1}
    v_add_u32 v{vT1}, s{sTmp}, v{vT1}             ; HT + w*64 + ((l>>1)&15)*4
    s_waitcnt lgkmcnt(0)
    ds_read_b32 v{vX1}, v{vT0} offset:{L_HT}
    ds_read_b32 v{vX1+1}, v{vT0} offset:{L_HT+32}
    ds_read_b32 v{vX1+2}, v{vT1} offset:{L_HT}
    s_waitcnt lgkmcnt(0)
    """)
    for i in range(3):
        a(f"v_lshlrev_b32 v{vX1h+i}, 16, v{vX1+i}")
    zero(vAcc2); zero(vPh)
    for i in range(2): mac8(vAcc2, vW1+4*i, vX1+i, vX1h+i)
    a("s_mov_b32 exec_hi, 0")
    mac8(vPh, vW1+8, vX1+2, vX1h+2)
    a("s_mov_b64 exec, -1")
    def red_tile(accM, accE, lbase):
        red8regs(accM); red8regs(accE)
        a("s_nop 1")
        for r in (accM, accM+1):
            a(f"v_add_f32_dpp v{r}, v{r}, v{r} row_ror:8 row_mask:0xf bank_mask:0xf")
        for r in (accE, accE+1):
            a(f"v_add_f32_dpp v{r}, v{r}, v{r} row_ror:8 row_mask:0xf bank_mask:0xf")
        a("s_nop 0")
        for r in (accE, accE+1):
            a(f"v_add_f32_dpp v{r}, v{r}, v{r} row_ror:4 row_mask:0xf bank_mask:0xf")
        a("s_nop 1")
        for r in (accE, accE+1):
            a(f"v_add_f32_dpp v{r}, v{r}, v{r} quad_perm:[2,3,0,1] row_mask:0xf bank_mask:0xf")
        a(f"""
        v_lshrrev_b32 v{vT1}, 4, v{vL}
        v_and_b32 v{vT0}, 7, v{vL}
        v_lshlrev_b32 v{vT0}, 5, v{vT0}
        v_lshl_add_u32 v{vT0}, v{vT1}, 3, v{vT0}     ; c3*32 + rho*8
        v_and_b32 v{vT2}, 1, v{vL}
        v_lshlrev_b32 v{vT2}, 5, v{vT2}
        v_lshl_add_u32 v{vT2}, v{vT1}, 3, v{vT2}     ; b0*32 + rho*8
        s_mul_i32 s{sTmp}, s{sW}, 320
        v_add_u32 v{vT0}, s{sTmp}, v{vT0}
        v_add_u32 v{vT2}, s{sTmp}, v{vT2}
        ds_write_b64 v{vT0}, v[{accM}:{accM+1}] offset:{lbase}
        ds_write_b64 v{vT2}, v[{accE}:{accE+1}] offset:{lbase+256}
        """)
    red_tile(vAcc2, vPh, L_YP)
    a.label("L_mlp_done")
    stamp()
    a(f"""
    s_lshl_b32 s{sTmp}, s{sG}, 13
    s_lshl_b32 s{sTmp2}, s{sW}, 8
    s_add_u32 s{sTmp}, s{sTmp}, s{sTmp2}
    s_add_u32 s{sTmp}, s{sTmp}, {WS_O}
    s_add_u32 s{sTmp2}, s{sTmp}, 4096
    s_lshl_b32 s{sTmp3}, s{sG}, 7
    s_add_u32 s{sTmp3}, s{sTmp3}, {WS_ST}
    v_lshrrev_b32 v{vT0}, 4, v{vL}
    v_add_u32 v{vT0}, v{vT0}, v{vL}
    v_and_b32 v{vT0}, 7, v{vT0}
    v_lshlrev_b32 v{vM+5}, 4, v{vT0}              ; pi(l)*16
    """)
    a.label("L_pollo")
    a(f"""
    buffer_load_dwordx4 {q4(vG)}, v{vM}, {srd(S_WS)}, s{sTmp} offen sc1
    buffer_load_dwordx4 {q4(vG+4)}, v{vM}, {srd(S_WS)}, s{sTmp2} offen sc1
    buffer_load_dwordx4 {q4(vG+8)}, v{vM+5}, {srd(S_WS)}, s{sTmp3} offen sc1
    s_waitcnt vmcnt(0)
    v_xor_b32 v{vT0}, s{sT}, v{vG+1}
    v_xor_b32 v{vT1}, s{sT}, v{vG+3}
    v_xor_b32 v{vT2}, s{sT}, v{vG+5}
    v_xor_b32 v{vT3}, s{sT}, v{vG+7}
    v_or3_b32 v{vT0}, v{vT0}, v{vT1}, v{vT2}
    v_xor_b32 v{vT1}, s{sT}, v{vG+9}
    v_xor_b32 v{vT2}, s{sT}, v{vG+11}
    v_or3_b32 v{vT0}, v{vT0}, v{vT1}, v{vT2}
    v_or_b32 v{vT0}, v{vT0}, v{vT3}
    v_cmp_ne_u32 vcc, 0, v{vT0}
    s_add_u32 s{sSpin}, s{sSpin}, 1
    s_cmp_gt_u32 s{sSpin}, {spin_limit}
    s_cbranch_scc1 L_pollo_done
    s_cbranch_vccnz L_pollo
    """)
    a.label("L_pollo_done")
    a.vm = []
    stamp()
    a(f"v_mov_b32 v{vT0}, v{vG+8}")
    for n in (4, 2, 1):
        a("s_nop 1")
        a(f"v_max_f32_dpp v{vT0}, v{vT0}, v{vT0} row_ror:{n} row_mask:0xf bank_mask:0xf")
    a(f"""
    v_sub_f32 v{vT1}, v{vG+8}, v{vT0}
    v_mul_f32 v{vT1}, s{sLog2e}, v{vT1}
    v_exp_f32 v{vT1}, v{vT1}
    s_nop 0
    v_mul_f32 v{vT2}, v{vT1}, v{vG+10}
    """)
    for n in (4, 2, 1):
        a("s_nop 1")
        a(f"v_add_f32_dpp v{vT2}, v{vT2}, v{vT2} row_ror:{n} row_mask:0xf bank_mask:0xf")
    a(f"""
    v_rcp_f32 v{vT2}, v{vT2}
    s_nop 0
    v_mul_f32 v{vT1}, v{vT1}, v{vT2}
    s_nop 1
    v_mov_b32_dpp v{vT2}, v{vT1} row_newbcast:0 row_mask:0xf bank_mask:0xf
    v_mov_b32_dpp v{vT3}, v{vT1} row_newbcast:4 row_mask:0xf bank_mask:0xf
    v_mul_f32 v{vG}, v{vG}, v{vT2}
    v_mul_f32 v{vG+2}, v{vG+2}, v{vT2}
    v_fmac_f32 v{vG}, v{vG+4}, v{vT3}
    v_fmac_f32 v{vG+2}, v{vG+6}, v{vT3}
    s_nop 1
    """)
    red32(vG, vG+2)
    a(f"v_mov_b32 v{vT0}, v{vG}")
    a("s_nop 1")
    red16(vG, vT0)
    a(f"""
    v_cvt_pk_bf16_f32 v{vG}, v{vG}, v{vG}
    v_and_b32 v{vG}, 0xffff, v{vG}
    v_and_b32 v{vT0}, 15, v{vL}
    v_lshlrev_b32 v{vT0}, 3, v{vT0}
    v_lshrrev_b32 v{vT1}, 5, v{vL}
    v_lshl_add_u32 v{vT0}, v{vT1}, 2, v{vT0}      ; (2c + (l>>5))*4
    s_lshl_b32 s{sTmp}, s{sW}, 7
    v_add_u32 v{vT0}, s{sTmp}, v{vT0}
    ds_write_b32 v{vT0}, v{vG} offset:{L_OT}
    v_lshrrev_b32 v{vT0}, 3, v{vL}
    v_lshlrev_b32 v{vT0}, 2, v{vT0}
    v_add_u32 v{vT0}, s{sTmp}, v{vT0}
    v_lshrrev_b32 v{vT1}, 1, v{vL}
    v_lshlrev_b32 v{vT1}, 2, v{vT1}
    v_add_u32 v{vT1}, s{sTmp}, v{vT1}
    s_waitcnt lgkmcnt(0)
    """)
    for i in range(4):
        a(f"ds_read_b32 v{vXq+i}, v{vT0} offset:{L_OT+32*i}")
    a(f"ds_read_b32 v{vXq+4}, v{vT1} offset:{L_OT}")
    zero(vAcc); zero(vP)
    a("s_waitcnt lgkmcnt(0)")
    for i in range(5):
        a(f"v_lshlrev_b32 v{vXqh+i}, 16, v{vXq+i}")
    for i in range(4): mac8(vAcc, vWQ+4*i, vXq+i, vXqh+i)
    mac8(vP, vWQ+16, vXq+4, vXqh+4)
    red_tile(vAcc, vP, L_SP)
    a("s_waitcnt lgkmcnt(0)")
    a("s_barrier")
    a(f"""
    s_cmp_gt_u32 s{sW}, 1
    s_cbranch_scc1 L_pubs_done
    s_cmp_eq_u32 s{sW}, 0
    s_cbranch_scc1 L_pubs_s
    s_cmp_eq_u32 s{sC2}, 0
    s_cbranch_scc1 L_pubs_done
    s_mov_b32 s{sTmp2}, {L_YP}
    s_mov_b32 s{sTmp3}, {WS_Y}
    s_branch L_pubs_common
    """)
    a.label("L_pubs_s")
    a(f"s_mov_b32 s{sTmp2}, {L_SP}")
    a(f"s_mov_b32 s{sTmp3}, {WS_S}")
    a.label("L_pubs_common")
    a(f"""
    v_lshlrev_b32 v{vT0}, 3, v{vL}
    v_add_u32 v{vT0}, s{sTmp2}, v{vT0}
    s_mov_b32 s{sMask}, -1
    s_mov_b32 s{sMask+1}, 0xff
    s_mov_b64 exec, s[{sMask}:{sMask+1}]
    """)
    for k in range(4):
        a(f"ds_read_b64 v[{vG+2*k}:{vG+2*k+1}], v{vT0} offset:{320*k}")
    a(f"""
    v_lshrrev_b32 v{vT1}, 3, v{vL}
    v_lshlrev_b32 v{vT1}, 12, v{vT1}
    v_and_b32 v{vT2}, 7, v{vL}
    v_lshl_add_u32 v{vT1}, v{vT2}, 4, v{vT1}
    s_mul_i32 s{sTmp}, s{sJ}, {5*4096}
    s_lshl_b32 s{sTmp2}, s{sG}, 7
    s_add_u32 s{sTmp}, s{sTmp}, s{sTmp2}
    s_add_u32 s{sTmp}, s{sTmp}, s{sTmp3}
    s_waitcnt lgkmcnt(0)
    v_add_f32 v{vG}, v{vG}, v{vG+2}
    v_add_f32 v{vG+1}, v{vG+1}, v{vG+3}
    v_add_f32 v{vG+4}, v{vG+4}, v{vG+6}
    v_add_f32 v{vG+5}, v{vG+5}, v{vG+7}
    v_add_f32 v{vG+8}, v{vG}, v{vG+4}
    v_add_f32 v{vG+10}, v{vG+1}, v{vG+5}
    v_mov_b32 v{vG+9}, s{sT}
    v_mov_b32 v{vG+11}, s{sT}
    buffer_store_dwordx4 {q4(vG+8)}, v{vT1}, {srd(S_WS)}, s{sTmp} offen sc1
    s_mov_b64 exec, -1
    """)
    a.label("L_pubs_done")
    stamp()
    a(f"""
    s_cmp_lt_u32 s{sG}, 27
    s_cbranch_scc1 L_fin
    s_cmp_eq_u32 s{sW}, 2
    s_cbranch_scc0 L_fin
    s_sub_u32 s{sTmp}, s{sG}, 27
    s_lshl_b32 s{sTmp}, s{sTmp}, 3
    s_add_u32 s{sTmp}, s{sTmp}, s{sJ}             ; c = 0..39
    s_lshl_b32 s{sC1}, s{sTmp}, 5
    s_lshl_b32 s{sTmp}, s{sTmp}, 12
    s_add_u32 s{sTmp2}, s{sTmp}, {WS_Y}
    s_add_u32 s{sTmp}, s{sTmp}, {WS_S}
    v_lshlrev_b32 v{vT0}, 4, v{vL}                ; l*16 = p8*128 + c2*16
    v_and_b32 v{vT1}, 7, v{vL}
    v_lshlrev_b32 v{vT1}, 2, v{vT1}               ; c2*4
    buffer_load_dword v{vM+6}, v{vT1}, {srd(S_X)}, s{sC1} offen
    buffer_load_dword v{vM+7}, v{vT1}, {srd(S_B2)}, s{sC1} offen
    v_mov_b32 v{vF+28}, 0
    v_mov_b32 v{vF+29}, s{sT}
    v_mov_b32 v{vF+30}, 0
    v_mov_b32 v{vF+31}, s{sT}
    s_mov_b32 s{sMask}, 0xffffff
    s_mov_b32 s{sMask+1}, 0
    """)
    a.label("L_pollf")
    for i in range(4):
        a(f"buffer_load_dwordx4 {q4(vF+4*i)}, v{vT0}, {srd(S_WS)}, s{sTmp} offen offset:{1024*i} sc1")
    for i in range(3):
        a(f"buffer_load_dwordx4 {q4(vF+16+4*i)}, v{vT0}, {srd(S_WS)}, s{sTmp2} offen offset:{1024*i} sc1")
    a(f"s_mov_b64 exec, s[{sMask}:{sMask+1}]")
    a(f"buffer_load_dwordx4 {q4(vF+28)}, v{vT0}, {srd(S_WS)}, s{sTmp2} offen offset:3072 sc1")
    a("s_mov_b64 exec, -1")
    a("s_waitcnt vmcnt(0)")
    a(f"v_mov_b32 v{vT2}, 0")
    for i in range(8):
        a(f"v_xor_b32 v{vT3}, s{sT}, v{vF+4*i+1}")
        a(f"v_xor_b32 v{vT4}, s{sT}, v{vF+4*i+3}")
        a(f"v_or3_b32 v{vT2}, v{vT2}, v{vT3}, v{vT4}")
    a(f"""
    v_cmp_ne_u32 vcc, 0, v{vT2}
    s_add_u32 s{sSpin}, s{sSpin}, 1
    s_cmp_gt_u32 s{sSpin}, {spin_limit}
    s_cbranch_scc1 L_pollf_done
    s_cbranch_vccnz L_pollf
    """)
    a.label("L_pollf_done")
    for (dst, base) in ((vG, vF), (vG+2, vF+16)):
        a(f"v_add_f32 v{dst}, v{base}, v{base+4}")
        a(f"v_add_f32 v{dst+1}, v{base+2}, v{base+6}")
        a(f"v_add_f32 v{vT2}, v{base+8}, v{base+12}")
        a(f"v_add_f32 v{vT3}, v{base+10}, v{base+14}")
        a(f"v_add_f32 v{dst}, v{dst}, v{vT2}")
        a(f"v_add_f32 v{dst+1}, v{dst+1}, v{vT3}")
    a("s_nop 1")
    for r in range(vG, vG+4):
        a(f"v_add_f32_dpp v{r}, v{r}, v{r} row_ror:8 row_mask:0xf bank_mask:0xf")
    for r in range(vG, vG+4):
        a(f"v_mov_b32 v{vT2}, v{r}")
        a("s_nop 1")
        red16(r, vT2)
        a(f"v_mov_b32 v{vT2}, v{r}")
        a("s_nop 1")
        red32(r, vT2)
    a(f"""
    v_cvt_pk_bf16_f32 v{vT2}, v{vG}, v{vG+1}
    v_lshlrev_b32 v{vG}, 16, v{vT2}
    v_and_b32 v{vG+1}, 0xffff0000, v{vT2}
    v_cvt_pk_bf16_f32 v{vT2}, v{vG+2}, v{vG+3}
    v_lshlrev_b32 v{vG+2}, 16, v{vT2}
    v_and_b32 v{vG+3}, 0xffff0000, v{vT2}
    v_lshlrev_b32 v{vT2}, 16, v{vM+7}
    v_and_b32 v{vT3}, 0xffff0000, v{vM+7}
    v_add_f32 v{vG+2}, v{vG+2}, v{vT2}
    v_add_f32 v{vG+3}, v{vG+3}, v{vT3}
    v_cvt_pk_bf16_f32 v{vT2}, v{vG+2}, v{vG+3}
    v_lshlrev_b32 v{vG+2}, 16, v{vT2}
    v_and_b32 v{vG+3}, 0xffff0000, v{vT2}
    """)
    for r in (vG+2, vG+3):
        a(f"""
        v_mul_f32 v{vT2}, s{sLog2e}, v{r}
        v_sub_f32 v{vT2}, 0, v{vT2}
        v_exp_f32 v{vT2}, v{vT2}
        s_nop 0
        v_add_f32 v{vT2}, 1.0, v{vT2}
        v_rcp_f32 v{vT2}, v{vT2}
        s_nop 0
        v_mul_f32 v{r}, v{r}, v{vT2}
        """)
    a(f"""
    v_cvt_pk_bf16_f32 v{vT2}, v{vG+2}, v{vG+3}
    v_lshlrev_b32 v{vG+2}, 16, v{vT2}
    v_and_b32 v{vG+3}, 0xffff0000, v{vT2}
    v_mul_f32 v{vG}, v{vG}, v{vG+2}
    v_mul_f32 v{vG+1}, v{vG+1}, v{vG+3}
    v_cvt_pk_bf16_f32 v{vT2}, v{vG}, v{vG+1}
    v_lshlrev_b32 v{vG}, 16, v{vT2}
    v_and_b32 v{vG+1}, 0xffff0000, v{vT2}
    v_lshlrev_b32 v{vT2}, 16, v{vM+6}
    v_and_b32 v{vT3}, 0xffff0000, v{vM+6}
    v_add_f32 v{vG}, v{vG}, v{vT2}
    v_add_f32 v{vG+1}, v{vG+1}, v{vT3}
    v_cvt_pk_bf16_f32 v{vT2}, v{vG}, v{vG+1}
    s_mov_b64 exec, 0xff
    buffer_store_dword v{vT2}, v{vT1}, {srd(S_OUT)}, s{sC1} offen
    s_cmp_eq_u32 s{sC1}, 0
    s_cbranch_scc0 L_fin0
    v_mov_b32 v{vT2}, s{sT}
    v_mov_b32 v{vT3}, 0
    s_mov_b64 exec, 1
    buffer_store_dword v{vT2}, v{vT3}, {srd(S_WS)}, 0 offen sc1
    """)
    a.label("L_fin0")
    a("s_mov_b64 exec, -1")
    a.label("L_fin")
    if stamps and dbg:
        stamp()
        a("s_load_dwordx2 s[44:45], s[0:1], 88")
        a("s_waitcnt lgkmcnt(0)")
        a("s_mov_b32 s46, 256")
        a("s_mov_b32 s47, 0x20000")
        for k in range(11):
            a(f"v_writelane_b32 v{vG}, s{SP[k]}, {k}")
        a(f"s_not_b32 s{sTmp}, s{SP[0]}")
        a(f"v_writelane_b32 v{vG}, s{sTmp}, 11")
        a(f"v_writelane_b32 v{vG}, s{sSpin}, 12")
        a(f"v_lshlrev_b32 v{vT0}, 2, v{vL}")
        a("s_mov_b64 exec, 0x1fff")
        a(f"buffer_atomic_umax v{vG}, v{vT0}, s[44:47], 0 offen")
    elif stamps:
        stamp()
        a("s_waitcnt lgkmcnt(0)")
        a(f"""
        s_lshl_b32 s{sTmp}, s2, 2
        s_add_u32 s{sTmp}, s{sTmp}, s{sW}
        s_lshl_b32 s{sTmp}, s{sTmp}, 7
        s_add_u32 s{sTmp}, s{sTmp}, {WS_TS}
        v_mov_b32 v{vT0}, 0
        """)
        for k in range(11):
            a(f"v_mov_b32 v{vG+k}, s{SP[k]}")
        a(f"v_mov_b32 v{vG+11}, s{sSpin}")
        a("s_mov_b64 exec, 1")
        a(f"buffer_store_dwordx4 {q4(vG)}, v{vT0}, {srd(S_WS)}, s{sTmp} offen")
        a(f"buffer_store_dwordx4 {q4(vG+4)}, v{vT0}, {srd(S_WS)}, s{sTmp} offen offset:16")
        a(f"buffer_store_dwordx4 {q4(vG+8)}, v{vT0}, {srd(S_WS)}, s{sTmp} offen offset:32")
    a.label("L_end")
    a("s_endpgm")
    body = a.text()
    src = HDR_COMMENT + f"""; Override launch geometry by editing the next line (default: block=256,
; grid=ceil(out_elems/256), lds=0). Harness parses it; keep it on one line.
; @launch grid=(256,1,1) block=(256,1,1) lds={LDS}
.amdgcn_target "amdgcn-amd-amdhsa--gfx950"
.text
.globl {KN}
.p2align 8
.type {KN},@function
{KN}:
{body}
.section .rodata,"a"
.p2align 6
.amdhsa_kernel {KN}
  .amdhsa_next_free_vgpr {NV}
  .amdhsa_next_free_sgpr 102
  .amdhsa_accum_offset {NV}
  .amdhsa_group_segment_fixed_size 0
  .amdhsa_kernarg_size 104
  .amdhsa_user_sgpr_count 2
  .amdhsa_user_sgpr_kernarg_segment_ptr 1
  .amdhsa_system_sgpr_workgroup_id_x 1
.end_amdhsa_kernel
"""
    return src

if __name__ == "__main__":
    import argparse
    p = argparse.ArgumentParser()
    p.add_argument("-o", default="k1.s")
    p.add_argument("--stamps", action="store_true")
    p.add_argument("--no-nt", action="store_true")
    p.add_argument("--kpre", type=int, default=8)
    p.add_argument("--dbg", action="store_true")
    args = p.parse_args()
    open(args.o, "w").write(gen(nt=not args.no_nt, stamps=args.stamps, kpre=args.kpre, dbg=args.dbg))
```

```python
import sys
KN = "recurrent_scan__sliding_block_cached__dense_activation_gelu__decode_kernel"

HDR_COMMENT = open("recurrent_scan__sliding_block_cached__dense_activation_gelu__decode.s.ref").read().split("; Override launch")[0]

class A:
    def __init__(self):
        self.l = []
        self.vm = []
    def __call__(self, s):
        for line in s.strip("\n").split("\n"):
            self.l.append("  " + line.strip())
    def label(self, n): self.l.append(n + ":")
    def c(self, s): self.l.append("  ; " + s)
    def vmem(self, s, tag):
        self(s); self.vm.append(tag)
    def wait_vm(self, tag):
        idx = max(i for i, t in enumerate(self.vm) if t == tag)
        n = len(self.vm) - 1 - idx
        self(f"s_waitcnt vmcnt({min(n,63)})")
        self.vm = self.vm[idx + 1:]
    def wait_vm_all(self):
        self("s_waitcnt vmcnt(0)"); self.vm = []
    def text(self): return "\n".join(self.l) + "\n"

WS_EPOCH = 0
WS_Q  = 0x1000
WS_H  = WS_Q + 32*8*1024
WS_O  = WS_H + 32*8*512
WS_ST = WS_O + 32*8*1024
WS_S  = WS_ST + 32*128
WS_Y  = WS_S + 40*32*128
WS_TS = WS_Y + 40*32*128
WS_END = WS_TS + 256*4*128
TAGC = 0x9E3779B9

def gen(nt=True, stamps=False, kpre=8, spin_limit=1<<18, dbg=False, touch=False):
    a = A()
    NT = " nt" if nt else ""
    S_X, S_K, S_V, S_WQ, S_WO, S_W1, S_B1, S_W2, S_B2, S_OUT, S_WS = [44 + 4*i for i in range(11)]
    srd = lambda b: f"s[{b}:{b+3}]"
    sG, sJ, sW, sT = 3, 4, 5, 6
    sTmp, sTmp2, sTmp3 = 7, 8, 9
    sSpin = 10
    sMean, sRstd = 11, 12
    sWQ = [16,17,18,19,20]; sW1 = [21,22,23]; sK0, sK1 = 24, 25
    sWO = [26,27,28,29]; sW2 = [30,31]
    sScale, sLog2e = 32, 33
    sMask = 34
    sSave = 36
    sC1, sC2 = 38, 39
    sTS = 88
    vL = 1; vKV = 2; vWQo = 3; vW1o = 4; vWOm = 5; vWOe = 6; vT0 = 7; vT1 = 8; vT2 = 9; vT3 = 10; vT4=11
    vE = 12
    vX = 13
    vXq = 18
    vX1 = 23
    vXqh = 26
    vX1h = 31
    vAcc = 34
    vAcc2 = 42
    vP = 50
    vPh = 58
    vQ = 66
    vG = 70
    vM = 82
    vWQ = 96
    vW1 = 116
    vK = 128
    vV = 160
    vF = 192
    NV = 224
    def q4(b): return f"v[{b}:{b+3}]"
    def q2(b): return f"v[{b}:{b+1}]"
    nstamp = [0]
    SP = [88,90,92,94,96,98,100,40,42,12,14]
    def stamp():
        if stamps and nstamp[0] < len(SP):
            r = SP[nstamp[0]]
            a(f"s_memrealtime s[{r}:{r+1}]"); nstamp[0] += 1

    L_QP = 0
    L_HP = 2048
    L_Q  = 3072
    L_MX = 3328
    L_OP = 3584
    L_LS = 5632
    L_OT = 5888
    L_HT = 6400
    L_SP = 6656
    L_YP = 7936
    LDS = 9216

    a("s_cmp_ge_u32 s2, 256")
    a("s_cbranch_scc1 L_end")
    stamp()
    for i, b in enumerate([S_X, S_K, S_V, S_WQ, S_WO, None, S_W1, S_B1, S_W2, S_B2, S_OUT, None, S_WS]):
        if b is not None:
            a(f"s_load_dwordx2 s[{b}:{b+1}], s[0:1], {8*i}")
    sizes = {S_X:1280, S_K:33554432, S_V:33554432, S_WQ:5242880, S_WO:5242880, S_W1:2211840, S_B1:3456, S_W2:2211840, S_B2:1280, S_OUT:1280, S_WS:WS_END}
    for b, sz in sizes.items():
        a(f"s_mov_b32 s{b+2}, {sz}")
        a(f"s_mov_b32 s{b+3}, 0x20000")
    a(f"""
    v_and_b32 v{vL}, 63, v0
    v_lshrrev_b32 v{vT0}, 6, v0
    s_and_b32 s{sG}, s2, 31
    s_lshr_b32 s{sJ}, s2, 5
    v_readfirstlane_b32 s{sW}, v{vT0}
    v_lshlrev_b32 v{vKV}, 4, v{vL}
    v_lshrrev_b32 v{vT0}, 4, v{vL}            ; k4
    v_and_b32 v{vT1}, 15, v{vL}               ; c8
    v_lshlrev_b32 v{vWQo}, 13, v{vT0}
    v_lshl_add_u32 v{vWQo}, v{vT1}, 4, v{vWQo}   ; k4*8192 + c8*16
    v_lshlrev_b32 v{vT2}, 1, v{vT0}
    v_lshrrev_b32 v{vT0}, 3, v{vL}            ; r8
    v_and_b32 v{vT1}, 7, v{vL}                ; c3
    v_mul_u32_u24 v{vW1o}, 3456, v{vT0}
    v_lshl_add_u32 v{vW1o}, v{vT1}, 4, v{vW1o}   ; r8*3456 + c3*16
    v_mul_u32_u24 v{vWOm}, 1280, v{vT0}
    v_lshl_add_u32 v{vWOm}, v{vT1}, 4, v{vWOm}   ; r8*1280 + c3*16
    v_lshlrev_b32 v{vT3}, 1, v{vT0}
    v_lshrrev_b32 v{vT0}, 1, v{vL}
    v_and_b32 v{vT1}, 1, v{vL}
    v_mul_u32_u24 v{vWOe}, 1280, v{vT0}
    v_lshl_add_u32 v{vWOe}, v{vT1}, 4, v{vWOe}
    v_add_u32 v{vWOe}, 128, v{vWOe}           ; (l>>1)*1280 + 128 + (l&1)*16
    v_lshlrev_b32 v{vT4}, 2, v{vL}            ; l*4
    v_mov_b32 v{vT1}, 0
    """)
    a(f"""
    s_mul_i32 s{sTmp}, s{sJ}, 80
    s_mul_i32 s{sTmp2}, s{sW}, 20
    s_add_u32 s{sTmp}, s{sTmp}, s{sTmp2}        ; row0 = 80j+20w
    s_lshl_b32 s{sTmp3}, s{sTmp}, 1
    s_lshl_b32 s{sWQ[0]}, s{sTmp}, 13
    s_lshl_b32 s{sTmp2}, s{sG}, 8
    s_add_u32 s{sWQ[0]}, s{sWQ[0]}, s{sTmp2}
    """)
    for i in range(1, 5):
        a(f"s_add_u32 s{sWQ[i]}, s{sWQ[i-1]}, 32768")
    a(f"""
    s_mul_i32 s{sW1[0]}, s{sTmp}, 3456
    s_lshl_b32 s{sTmp2}, s{sG}, 7
    s_add_u32 s{sW1[0]}, s{sW1[0]}, s{sTmp2}
    s_add_u32 s{sW1[1]}, s{sW1[0]}, {8*3456}
    s_add_u32 s{sW1[2]}, s{sW1[0]}, {16*3456}
    s_lshl_b32 s{sK0}, s{sG}, 20
    s_lshl_b32 s{sTmp2}, s{sJ}, 15
    s_add_u32 s{sK0}, s{sK0}, s{sTmp2}
    s_lshl_b32 s{sTmp2}, s{sW}, 13
    s_add_u32 s{sK0}, s{sK0}, s{sTmp2}
    s_add_u32 s{sK0}, s{sK0}, {3072*256}
    s_add_u32 s{sK1}, s{sK0}, 4096
    s_lshl_b32 s{sTmp}, s{sG}, 7
    s_lshl_b32 s{sTmp2}, s{sW}, 5
    s_add_u32 s{sTmp}, s{sTmp}, s{sTmp2}         ; 128g+32w
    s_mul_i32 s{sWO[0]}, s{sTmp}, 1280
    s_mul_i32 s{sTmp2}, s{sJ}, 160
    s_add_u32 s{sWO[0]}, s{sWO[0]}, s{sTmp2}
    s_add_u32 s{sWO[1]}, s{sWO[0]}, 10240
    s_add_u32 s{sWO[2]}, s{sWO[0]}, 20480
    s_add_u32 s{sWO[3]}, s{sWO[0]}, 30720
    s_lshl_b32 s{sTmp}, s{sG}, 6
    s_lshl_b32 s{sC1}, s{sW}, 4
    s_add_u32 s{sTmp}, s{sTmp}, s{sC1}           ; 64g+16w
    s_mul_i32 s{sW2[0]}, s{sTmp}, 1280
    s_add_u32 s{sW2[0]}, s{sW2[0]}, s{sTmp2}
    s_add_u32 s{sW2[1]}, s{sW2[0]}, 10240
    s_mov_b32 s{sScale}, 0x3db504f3              ; 128^-0.5 (f32)
    s_mov_b32 s{sLog2e}, 0x3fb8aa3b
    s_mov_b32 s{sSpin}, 0
    s_waitcnt lgkmcnt(0)
    """)
    a.vmem(f"buffer_load_dword v{vE}, v{vT1}, {srd(S_WS)}, 0 offen sc1", "E")
    if touch:
        a(f"""
        s_lshl_b32 s{sC1}, s{sG}, 7
        s_lshl_b32 s{sTmp2}, s{sW}, 5
        s_add_u32 s{sC1}, s{sC1}, s{sTmp2}
        v_and_b32 v{vF+40-32}, 7, v{vL}
        v_lshlrev_b32 v{vF+8}, 2, v{vF+8}
        """)
        a.vmem(f"buffer_load_dword v{vF+9}, v{vF+8}, {srd(S_B1)}, s{sC1} offen", "t")
        a(f"""
        s_sub_u32 s{sC1}, s{sG}, 27
        s_lshl_b32 s{sC1}, s{sC1}, 3
        s_add_u32 s{sC1}, s{sC1}, s{sJ}
        s_lshl_b32 s{sC1}, s{sC1}, 5
        """)
        a.vmem(f"buffer_load_dword v{vF+10}, v{vF+8}, {srd(S_B2)}, s{sC1} offen", "t")
        a.vmem(f"buffer_load_dword v{vF+11}, v{vF+8}, {srd(S_X)}, s{sC1} offen", "t")
        a.vmem(f"buffer_load_dword v{vF+12}, v{vT1}, {srd(S_OUT)}, 0 offen", "t")
        a.vmem(f"buffer_load_dword v{vF+13}, v{vT1}, {srd(S_V)}, s{sK0} offen", "t")
        a.vmem(f"buffer_load_dword v{vF+14}, v{vT1}, {srd(S_WO)}, s{sWO[0]} offen", "t")
        a.vmem(f"buffer_load_dword v{vF+15}, v{vT1}, {srd(S_W2)}, s{sW2[0]} offen", "t")
        a.vmem(f"buffer_load_dword v{vF+16}, v{vT1}, {srd(S_B2)}, 0 offen", "t")
    a.vmem(f"buffer_load_dwordx4 {q4(14)}, v{vKV}, {srd(S_X)}, 0 offen", "x")
    a.vmem(f"buffer_load_dword v13, v{vT4}, {srd(S_X)}, 0 offen offset:1024", "x")
    for i in range(5):
        a.vmem(f"buffer_load_ushort v{vXq+i}, v{vT2}, {srd(S_X)}, s{sTmp3} offen offset:{8*i}", "x")
    for i in range(3):
        a.vmem(f"buffer_load_ushort v{vX1+i}, v{vT3}, {srd(S_X)}, s{sTmp3} offen offset:{16*i}", "x")
    for i in range(5):
        a.vmem(f"buffer_load_dwordx4 {q4(vWQ+4*i)}, v{vWQo}, {srd(S_WQ)}, s{sWQ[i]} offen{NT}", "wq")
    a(f"s_cmp_lt_u32 s{sG}, 27")
    a(f"s_cselect_b32 s{sC2}, 1, 0")
    a(f"s_cselect_b32 s{sC1}, 0, 0x7f000000")
    for i in range(3):
        a(f"s_add_u32 s{sW1[i]}, s{sW1[i]}, s{sC1}")
    for i in range(2):
        a(f"s_add_u32 s{sW2[i]}, s{sW2[i]}, s{sC1}")
    for i in range(3):
        if i == 2:
            a("s_mov_b32 exec_hi, 0")
        a.vmem(f"buffer_load_dwordx4 {q4(vW1+4*i)}, v{vW1o}, {srd(S_W1)}, s{sW1[i]} offen{NT}", "w1")
        if i == 2:
            a("s_mov_b64 exec, -1")
    def kload(i):
        a.vmem(f"buffer_load_dwordx4 {q4(vK+4*i)}, v{vKV}, {srd(S_K)}, s{sK0 if i < 4 else sK1} offen offset:{1024*(i%4)}{NT}", f"k{i}")
    def vload(i):
        a.vmem(f"buffer_load_dwordx4 {q4(vV+4*i)}, v{vKV}, {srd(S_V)}, s{sK0 if i < 4 else sK1} offen offset:{1024*(i%4)}{NT}", f"v{i}")
    for i in range(kpre): kload(i)
    stamp()
    a.wait_vm("x")
    a(f"v_readfirstlane_b32 s{sT}, v{vE}")
    a(f"s_add_u32 s{sT}, s{sT}, {TAGC}")
    xs = list(range(vM, vM+10))
    for k, r in enumerate([14,15,16,17,13]):
        a(f"v_lshlrev_b32 v{xs[2*k]}, 16, v{r}")
        a(f"v_and_b32 v{xs[2*k+1]}, 0xffff0000, v{r}")
    def wave_sum(v, t):
        for n in (8, 4, 2, 1):
            a("s_nop 1")
            a(f"v_add_f32_dpp v{v}, v{v}, v{v} row_ror:{n} row_mask:0xf bank_mask:0xf")
        a(f"v_mov_b32 v{t}, v{v}")
        a("s_nop 1")
        a(f"v_permlane16_swap_b32 v{v}, v{t}")
        a(f"v_add_f32 v{v}, v{v}, v{t}")
        a(f"v_mov_b32 v{t}, v{v}")
        a("s_nop 1")
        a(f"v_permlane32_swap_b32 v{v}, v{t}")
        a(f"v_add_f32 v{v}, v{v}, v{t}")
    a(f"v_add_f32 v{vT0}, v{xs[0]}, v{xs[1]}")
    for k in range(2, 10):
        a(f"v_add_f32 v{vT0}, v{vT0}, v{xs[k]}")
    wave_sum(vT0, vT1)
    a(f"v_mul_f32 v{vT0}, 0x3acccccd, v{vT0}")
    for k in range(10):
        a(f"v_sub_f32 v{xs[k]}, v{xs[k]}, v{vT0}")
    a(f"v_mul_f32 v{vT2}, v{xs[0]}, v{xs[0]}")
    for k in range(1, 10):
        a(f"v_fmac_f32 v{vT2}, v{xs[k]}, v{xs[k]}")
    wave_sum(vT2, vT1)
    a(f"v_mul_f32 v{vT2}, 0x3acccccd, v{vT2}")
    def rnd(v):
        a(f"v_cvt_pk_bf16_f32 v{v}, v{v}, v{v}")
        a(f"v_and_b32 v{v}, 0xffff0000, v{v}")
    rnd(vT0); rnd(vT2)
    a(f"v_add_f32 v{vT2}, 0x3727c5ac, v{vT2}")
    rnd(vT2)
    a(f"v_sqrt_f32 v{vT2}, v{vT2}")
    a("s_nop 0")
    rnd(vT2)
    a(f"v_rcp_f32 v{vT2}, v{vT2}")
    a("s_nop 0")
    for (lo, hi) in [(vXq+i, vXqh+i) for i in range(5)] + [(vX1+i, vX1h+i) for i in range(3)]:
        a(f"v_lshlrev_b32 v{lo}, 16, v{lo}")
        a(f"v_sub_f32 v{lo}, v{lo}, v{vT0}")
        rnd(lo)
        a(f"v_mul_f32 v{lo}, v{lo}, v{vT2}")
        a(f"v_cvt_pk_bf16_f32 v{lo}, v{lo}, v{lo}")
        a(f"v_and_b32 v{hi}, 0xffff0000, v{lo}")
        a(f"v_and_b32 v{lo}, 0xffff, v{lo}")
    for i in range(kpre, 8): kload(i)
    def zero(base, n=8):
        for k in range(n): a(f"v_mov_b32 v{base+k}, 0")
    def mac8(acc, w, lo, hi):
        for k in range(4):
            a(f"v_dot2c_f32_bf16 v{acc+2*k}, v{w+k}, v{lo}")
            a(f"v_dot2c_f32_bf16 v{acc+2*k+1}, v{w+k}, v{hi}")
    def red32(x, y):
        a(f"v_permlane32_swap_b32 v{x}, v{y}")
        a(f"v_add_f32 v{x}, v{x}, v{y}")
    def red16(x, y):
        a(f"v_permlane16_swap_b32 v{x}, v{y}")
        a(f"v_add_f32 v{x}, v{x}, v{y}")
    def red8regs(acc):
        a("s_nop 2")
        red32(acc+0, acc+4); red32(acc+2, acc+6); red32(acc+1, acc+5); red32(acc+3, acc+7)
        a("s_nop 0")
        red16(acc+0, acc+2); red16(acc+1, acc+3)
    zero(vAcc); zero(vAcc2)
    a.wait_vm("wq")
    stamp()
    for i in range(5): mac8(vAcc, vWQ+4*i, vXq+i, vXqh+i)
    a.wait_vm("w1")
    for i in range(2): mac8(vAcc2, vW1+4*i, vX1+i, vX1h+i)
    a("s_mov_b32 exec_hi, 0")
    mac8(vAcc2, vW1+8, vX1+2, vX1h+2)
    a("s_mov_b64 exec, -1")
    red8regs(vAcc)
    red8regs(vAcc2)
    a("s_nop 1")
    for r in (vAcc2, vAcc2+1):
        a(f"v_add_f32_dpp v{r}, v{r}, v{r} row_ror:8 row_mask:0xf bank_mask:0xf")
    a(f"""
    v_and_b32 v{vT0}, 15, v{vL}
    v_lshlrev_b32 v{vT0}, 5, v{vT0}
    v_lshrrev_b32 v{vT1}, 4, v{vL}
    v_lshl_add_u32 v{vT0}, v{vT1}, 3, v{vT0}
    s_lshl_b32 s{sTmp}, s{sW}, 9
    v_add_u32 v{vT0}, s{sTmp}, v{vT0}
    v_and_b32 v{vT2}, 7, v{vL}
    v_lshlrev_b32 v{vT2}, 5, v{vT2}
    v_lshl_add_u32 v{vT2}, v{vT1}, 3, v{vT2}
    s_lshl_b32 s{sTmp}, s{sW}, 8
    v_add_u32 v{vT2}, s{sTmp}, v{vT2}
    ds_write_b64 v{vT0}, v[{vAcc}:{vAcc+1}] offset:{L_QP}
    ds_write_b64 v{vT2}, v[{vAcc2}:{vAcc2+1}] offset:{L_HP}
    s_waitcnt lgkmcnt(0)
    s_barrier
    """)
    a(f"v_lshlrev_b32 v{vT0}, 3, v{vL}")
    a(f"s_cmp_eq_u32 s{sW}, 0")
    a("s_cbranch_scc1 L_pubq")
    a(f"s_cmp_eq_u32 s{sW}, 1")
    a("s_cbranch_scc0 L_pub_done")
    a(f"s_cmp_eq_u32 s{sC2}, 0")
    a("s_cbranch_scc1 L_pub_done")
    a("s_mov_b32 exec_hi, 0")
    for k in range(4):
        a(f"ds_read_b64 v[{vG+2*k}:{vG+2*k+1}], v{vT0} offset:{L_HP+256*k}")
    a(f"""
    s_lshl_b32 s{sTmp}, s{sG}, 3
    s_add_u32 s{sTmp}, s{sTmp}, s{sJ}
    s_lshl_b32 s{sTmp}, s{sTmp}, 9
    s_add_u32 s{sTmp}, s{sTmp}, {WS_H}
    s_branch L_pub_common
    """)
    a.label("L_pubq")
    for k in range(4):
        a(f"ds_read_b64 v[{vG+2*k}:{vG+2*k+1}], v{vT0} offset:{L_QP+512*k}")
    a(f"""
    s_lshl_b32 s{sTmp}, s{sG}, 3
    s_add_u32 s{sTmp}, s{sTmp}, s{sJ}
    s_lshl_b32 s{sTmp}, s{sTmp}, 10
    s_add_u32 s{sTmp}, s{sTmp}, {WS_Q}
    """)
    a.label("L_pub_common")
    a(f"""
    s_waitcnt lgkmcnt(0)
    v_add_f32 v{vG}, v{vG}, v{vG+2}
    v_add_f32 v{vG+1}, v{vG+1}, v{vG+3}
    v_add_f32 v{vG+4}, v{vG+4}, v{vG+6}
    v_add_f32 v{vG+5}, v{vG+5}, v{vG+7}
    v_add_f32 v{vG+8}, v{vG}, v{vG+4}
    v_add_f32 v{vG+10}, v{vG+1}, v{vG+5}
    v_mov_b32 v{vG+9}, s{sT}
    v_mov_b32 v{vG+11}, s{sT}
    buffer_store_dwordx4 {q4(vG+8)}, v{vKV}, {srd(S_WS)}, s{sTmp} offen sc1
    s_mov_b64 exec, -1
    """)
    a.label("L_pub_done")
    stamp()
    for i in range(4): vload(i)
    a.wait_vm("k5")
    a(f"""
    v_lshrrev_b32 v{vT0}, 4, v{vL}            ; p4
    v_and_b32 v{vT1}, 15, v{vL}               ; c
    v_lshlrev_b32 v{vT0}, 10, v{vT0}
    v_lshl_add_u32 v{vM}, v{vT1}, 4, v{vT0}
    v_lshrrev_b32 v{vT0}, 3, v{vL}            ; p8
    v_and_b32 v{vT1}, 7, v{vL}
    v_lshlrev_b32 v{vT0}, 9, v{vT0}
    v_lshl_add_u32 v{vM+1}, v{vT1}, 4, v{vT0}
    s_lshl_b32 s{sTmp}, s{sG}, 13
    s_lshl_b32 s{sTmp2}, s{sW}, 8
    s_add_u32 s{sTmp}, s{sTmp}, s{sTmp2}
    s_add_u32 s{sTmp}, s{sTmp}, {WS_Q}
    s_add_u32 s{sTmp2}, s{sTmp}, 4096
    s_lshl_b32 s{sTmp3}, s{sG}, 12
    s_lshl_b32 s{sC1}, s{sW}, 7
    s_add_u32 s{sTmp3}, s{sTmp3}, s{sC1}
    s_add_u32 s{sTmp3}, s{sTmp3}, {WS_H}
    """)
    first = True
    a.label("L_pollq")
    a.vmem(f"buffer_load_dwordx4 {q4(vG)}, v{vM}, {srd(S_WS)}, s{sTmp} offen sc1", "pq")
    a.vmem(f"buffer_load_dwordx4 {q4(vG+4)}, v{vM}, {srd(S_WS)}, s{sTmp2} offen sc1", "pq")
    a.wait_vm_all()
    a(f"""
    v_xor_b32 v{vT0}, s{sT}, v{vG+1}
    v_xor_b32 v{vT1}, s{sT}, v{vG+3}
    v_xor_b32 v{vT2}, s{sT}, v{vG+5}
    v_xor_b32 v{vT3}, s{sT}, v{vG+7}
    v_or3_b32 v{vT0}, v{vT0}, v{vT1}, v{vT2}
    v_or_b32 v{vT0}, v{vT0}, v{vT3}
    v_cmp_ne_u32 vcc, 0, v{vT0}
    s_add_u32 s{sSpin}, s{sSpin}, 1
    s_cmp_gt_u32 s{sSpin}, {spin_limit}
    s_cbranch_scc1 L_pollq_done
    s_cbranch_vccnz L_pollq
    """)
    a.label("L_pollq_done")
    stamp()
    for i in range(4, 8): vload(i)
    a(f"""
    v_add_f32 v{vG}, v{vG}, v{vG+4}
    v_add_f32 v{vG+2}, v{vG+2}, v{vG+6}
    s_nop 1
    """)
    red32(vG, vG+2)
    a(f"v_mov_b32 v{vT0}, v{vG}")
    a("s_nop 1")
    red16(vG, vT0)
    a(f"""
    v_cvt_pk_bf16_f32 v{vG}, v{vG}, v{vG}
    v_and_b32 v{vT0}, 15, v{vL}
    v_lshlrev_b32 v{vT0}, 2, v{vT0}           ; 2c*2 bytes
    v_lshrrev_b32 v{vT1}, 5, v{vL}
    v_lshl_add_u32 v{vT0}, v{vT1}, 1, v{vT0}  ; + (l>>5)*2
    s_lshl_b32 s{sTmp}, s{sW}, 6
    v_add_u32 v{vT0}, s{sTmp}, v{vT0}
    ds_write_b16 v{vT0}, v{vG} offset:{L_Q}
    s_waitcnt lgkmcnt(0)
    s_barrier
    v_and_b32 v{vT0}, 15, v{vL}
    v_lshlrev_b32 v{vT0}, 4, v{vT0}
    ds_read_b128 {q4(vQ)}, v{vT0} offset:{L_Q}
    s_waitcnt lgkmcnt(0)
    """)
    for i in range(8):
        a(f"v_mov_b32 v{vP+i}, 0")
    for k in range(4):
        for i in range(8):
            a(f"v_dot2c_f32_bf16 v{vP+i}, v{vK+4*i+k}, v{vQ+k}")
    a("s_nop 2")
    for n in (8, 4, 2, 1):
        for i in range(8):
            a(f"v_add_f32_dpp v{vP+i}, v{vP+i}, v{vP+i} row_ror:{n} row_mask:0xf bank_mask:0xf")
    for i in range(0, 8, 2):
        a(f"v_cvt_pk_bf16_f32 v{vT0}, v{vP+i}, v{vP+i+1}")
        a(f"v_lshlrev_b32 v{vP+i}, 16, v{vT0}")
        a(f"v_and_b32 v{vP+i+1}, 0xffff0000, v{vT0}")
        a(f"v_mul_f32 v{vP+i}, s{sScale}, v{vP+i}")
        a(f"v_mul_f32 v{vP+i+1}, s{sScale}, v{vP+i+1}")
        a(f"v_cvt_pk_bf16_f32 v{vT0}, v{vP+i}, v{vP+i+1}")
        a(f"v_lshlrev_b32 v{vP+i}, 16, v{vT0}")
        a(f"v_and_b32 v{vP+i+1}, 0xffff0000, v{vT0}")
    a(f"v_max3_f32 v{vT0}, v{vP}, v{vP+1}, v{vP+2}")
    a(f"v_max3_f32 v{vT0}, v{vT0}, v{vP+3}, v{vP+4}")
    a(f"v_max3_f32 v{vT0}, v{vT0}, v{vP+5}, v{vP+6}")
    a(f"v_max_f32 v{vT0}, v{vT0}, v{vP+7}")
    a(f"v_mov_b32 v{vT1}, v{vT0}")
    a("s_nop 1")
    a(f"v_permlane16_swap_b32 v{vT0}, v{vT1}")
    a(f"v_max_f32 v{vT0}, v{vT0}, v{vT1}")
    a(f"v_mov_b32 v{vT1}, v{vT0}")
    a("s_nop 1")
    a(f"v_permlane32_swap_b32 v{vT0}, v{vT1}")
    a(f"v_max_f32 v{vT0}, v{vT0}, v{vT1}")
    a(f"""
    s_lshl_b32 s{sTmp}, s{sW}, 2
    v_mov_b32 v{vT1}, s{sTmp}
    ds_write_b32 v{vT1}, v{vT0} offset:{L_MX}
    s_waitcnt lgkmcnt(0)
    s_barrier
    v_mov_b32 v{vT1}, 0
    ds_read_b128 {q4(vG)}, v{vT1} offset:{L_MX}
    s_waitcnt lgkmcnt(0)
    v_max3_f32 v{vM+2}, v{vG}, v{vG+1}, v{vG+2}
    v_max_f32 v{vM+2}, v{vM+2}, v{vG+3}          ; m_j
    """)
    for i in range(8):
        a(f"v_sub_f32 v{vP+i}, v{vP+i}, v{vM+2}")
    for i in range(8):
        a(f"v_mul_f32 v{vP+i}, s{sLog2e}, v{vP+i}")
    for i in range(8):
        a(f"v_exp_f32 v{vP+i}, v{vP+i}")
    a("s_nop 0")
    a(f"v_add_f32 v{vM+3}, v{vP}, v{vP+1}")
    for i in range(2, 8):
        a(f"v_add_f32 v{vM+3}, v{vM+3}, v{vP+i}")
    a(f"v_mov_b32 v{vT1}, v{vM+3}")
    a("s_nop 1")
    red16(vM+3, vT1)
    a(f"v_mov_b32 v{vT1}, v{vM+3}")
    a("s_nop 1")
    red32(vM+3, vT1)
    for i in range(8):
        a(f"v_cvt_pk_bf16_f32 v{vP+i}, v{vP+i}, v{vP+i}")
    for i in range(8):
        a(f"v_and_b32 v{vPh+i}, 0xffff0000, v{vP+i}")
        a(f"v_and_b32 v{vP+i}, 0xffff, v{vP+i}")
    stamp()
    for i in range(4):
        a.vmem(f"buffer_load_dwordx4 {q4(vWQ+4*i)}, v{vWOm}, {srd(S_WO)}, s{sWO[i]} offen{NT}", "wo")
    a.vmem(f"buffer_load_dwordx4 {q4(vWQ+16)}, v{vWOe}, {srd(S_WO)}, s{sWO[0]} offen{NT}", "wo")
    for i in range(2):
        a.vmem(f"buffer_load_dwordx4 {q4(vW1+4*i)}, v{vWOm}, {srd(S_W2)}, s{sW2[i]} offen{NT}", "w2")
    a("s_mov_b32 exec_hi, 0")
    a.vmem(f"buffer_load_dwordx4 {q4(vW1+8)}, v{vWOe}, {srd(S_W2)}, s{sW2[0]} offen{NT}", "w2")
    a("s_mov_b64 exec, -1")
    zero(vAcc)
    for i in range(8):
        a.wait_vm(f"v{i}") if i >= 4 else None
        mac8(vAcc, vV+4*i, vP+i, vPh+i)
    red8regs(vAcc)
    a(f"""
    v_and_b32 v{vT0}, 15, v{vL}
    v_lshlrev_b32 v{vT0}, 5, v{vT0}
    v_lshrrev_b32 v{vT1}, 4, v{vL}
    v_lshl_add_u32 v{vT0}, v{vT1}, 3, v{vT0}
    s_lshl_b32 s{sTmp}, s{sW}, 9
    v_add_u32 v{vT0}, s{sTmp}, v{vT0}
    s_lshl_b32 s{sTmp}, s{sW}, 2
    v_mov_b32 v{vT1}, s{sTmp}
    ds_write_b64 v{vT0}, v[{vAcc}:{vAcc+1}] offset:{L_OP}
    ds_write_b32 v{vT1}, v{vM+3} offset:{L_LS}
    s_waitcnt lgkmcnt(0)
    s_barrier
    s_cmp_eq_u32 s{sW}, 0
    s_cbranch_scc1 L_pubo
    s_cmp_eq_u32 s{sW}, 1
    s_cbranch_scc0 L_pubo_done
    v_mov_b32 v{vT1}, 0
    ds_read_b128 {q4(vG)}, v{vT1} offset:{L_LS}
    s_waitcnt lgkmcnt(0)
    v_add_f32 v{vG}, v{vG}, v{vG+1}
    v_add_f32 v{vG+2}, v{vG+2}, v{vG+3}
    v_add_f32 v{vG+2}, v{vG}, v{vG+2}
    v_mov_b32 v{vG}, v{vM+2}
    v_mov_b32 v{vG+1}, s{sT}
    v_mov_b32 v{vG+3}, s{sT}
    s_lshl_b32 s{sTmp}, s{sG}, 7
    s_lshl_b32 s{sTmp2}, s{sJ}, 4
    s_add_u32 s{sTmp}, s{sTmp}, s{sTmp2}
    s_add_u32 s{sTmp}, s{sTmp}, {WS_ST}
    s_mov_b64 exec, 1
    buffer_store_dwordx4 {q4(vG)}, v{vT1}, {srd(S_WS)}, s{sTmp} offen sc1
    s_mov_b64 exec, -1
    s_branch L_pubo_done
    """)
    a.label("L_pubo")
    a(f"v_lshlrev_b32 v{vT0}, 3, v{vL}")
    for k in range(4):
        a(f"ds_read_b64 v[{vG+2*k}:{vG+2*k+1}], v{vT0} offset:{L_OP+512*k}")
    a(f"""
    s_lshl_b32 s{sTmp}, s{sG}, 3
    s_add_u32 s{sTmp}, s{sTmp}, s{sJ}
    s_lshl_b32 s{sTmp}, s{sTmp}, 10
    s_add_u32 s{sTmp}, s{sTmp}, {WS_O}
    s_waitcnt lgkmcnt(0)
    v_add_f32 v{vG}, v{vG}, v{vG+2}
    v_add_f32 v{vG+1}, v{vG+1}, v{vG+3}
    v_add_f32 v{vG+4}, v{vG+4}, v{vG+6}
    v_add_f32 v{vG+5}, v{vG+5}, v{vG+7}
    v_add_f32 v{vG+8}, v{vG}, v{vG+4}
    v_add_f32 v{vG+10}, v{vG+1}, v{vG+5}
    v_mov_b32 v{vG+9}, s{sT}
    v_mov_b32 v{vG+11}, s{sT}
    buffer_store_dwordx4 {q4(vG+8)}, v{vKV}, {srd(S_WS)}, s{sTmp} offen sc1
    """)
    a.label("L_pubo_done")
    stamp()
    a(f"s_cmp_eq_u32 s{sC2}, 0")
    a("s_cbranch_scc1 L_mlp_done")
    a(f"""
    s_lshl_b32 s{sTmp}, s{sG}, 7
    s_lshl_b32 s{sTmp2}, s{sW}, 5
    s_add_u32 s{sTmp}, s{sTmp}, s{sTmp2}
    v_and_b32 v{vT0}, 7, v{vL}
    v_lshlrev_b32 v{vT0}, 2, v{vT0}
    buffer_load_dword v{vM+4}, v{vT0}, {srd(S_B1)}, s{sTmp} offen
    """)
    a.label("L_pollh")
    a(f"""
    buffer_load_dwordx4 {q4(vG)}, v{vM+1}, {srd(S_WS)}, s{sTmp3} offen sc1
    s_waitcnt vmcnt(0)
    v_xor_b32 v{vT0}, s{sT}, v{vG+1}
    v_xor_b32 v{vT1}, s{sT}, v{vG+3}
    v_or_b32 v{vT0}, v{vT0}, v{vT1}
    v_cmp_ne_u32 vcc, 0, v{vT0}
    s_add_u32 s{sSpin}, s{sSpin}, 1
    s_cmp_gt_u32 s{sSpin}, {spin_limit}
    s_cbranch_scc1 L_pollh_done
    s_cbranch_vccnz L_pollh
    """)
    a.label("L_pollh_done")
    a.vm = []
    a("s_nop 1")
    for r in (vG, vG+2):
        a(f"v_add_f32_dpp v{r}, v{r}, v{r} row_ror:8 row_mask:0xf bank_mask:0xf")
    for r in (vG, vG+2):
        a(f"v_mov_b32 v{vT0}, v{r}")
        a("s_nop 1")
        red16(r, vT0)
        a(f"v_mov_b32 v{vT0}, v{r}")
        a("s_nop 1")
        red32(r, vT0)
    a(f"""
    v_cvt_pk_bf16_f32 v{vT0}, v{vG}, v{vG+2}
    v_lshlrev_b32 v{vG}, 16, v{vT0}
    v_and_b32 v{vG+1}, 0xffff0000, v{vT0}
    v_lshlrev_b32 v{vT1}, 16, v{vM+4}
    v_and_b32 v{vT2}, 0xffff0000, v{vM+4}
    v_add_f32 v{vG}, v{vG}, v{vT1}
    v_add_f32 v{vG+1}, v{vG+1}, v{vT2}
    v_cvt_pk_bf16_f32 v{vT0}, v{vG}, v{vG+1}
    v_lshlrev_b32 v{vG}, 16, v{vT0}
    v_and_b32 v{vG+1}, 0xffff0000, v{vT0}
    s_mov_b32 s{sTmp}, 0x3d372713                 ; 0.044715
    s_mov_b32 s{sTmp2}, 0xc0135761
    """)
    for r in (vG, vG+1):
        a(f"""
        v_mul_f32 v{vT0}, v{r}, v{r}
        v_mul_f32 v{vT0}, s{sTmp}, v{vT0}
        v_fma_f32 v{vT0}, v{vT0}, v{r}, v{r}        ; u + c u^3
        v_mul_f32 v{vT0}, s{sTmp2}, v{vT0}
        v_exp_f32 v{vT0}, v{vT0}
        s_nop 0
        v_add_f32 v{vT0}, 1.0, v{vT0}
        v_rcp_f32 v{vT0}, v{vT0}
        s_nop 0
        v_mul_f32 v{r}, v{r}, v{vT0}
        """)
    a(f"""
    v_cvt_pk_bf16_f32 v{vT0}, v{vG}, v{vG+1}
    v_and_b32 v{vG}, 0xffff, v{vT0}
    v_lshrrev_b32 v{vG+1}, 16, v{vT0}
    v_and_b32 v{vT0}, 7, v{vL}
    v_lshlrev_b32 v{vT0}, 3, v{vT0}
    s_lshl_b32 s{sTmp}, s{sW}, 6
    v_add_u32 v{vT0}, s{sTmp}, v{vT0}
    ds_write_b64 v{vT0}, v[{vG}:{vG+1}] offset:{L_HT}
    v_lshrrev_b32 v{vT0}, 3, v{vL}
    v_lshlrev_b32 v{vT0}, 2, v{vT0}
    v_add_u32 v{vT0}, s{sTmp}, v{vT0}             ; HT + w*64 + r8*4
    v_lshrrev_b32 v{vT1}, 1, v{vL}
    v_and_b32 v{vT1}, 15, v{vT1}
    v_lshlrev_b32 v{vT1}, 2, v{vT1}
    v_add_u32 v{vT1}, s{sTmp}, v{vT1}             ; HT + w*64 + ((l>>1)&15)*4
    s_waitcnt lgkmcnt(0)
    ds_read_b32 v{vX1}, v{vT0} offset:{L_HT}
    ds_read_b32 v{vX1+1}, v{vT0} offset:{L_HT+32}
    ds_read_b32 v{vX1+2}, v{vT1} offset:{L_HT}
    s_waitcnt lgkmcnt(0)
    """)
    for i in range(3):
        a(f"v_lshlrev_b32 v{vX1h+i}, 16, v{vX1+i}")
    zero(vAcc2); zero(vPh)
    for i in range(2): mac8(vAcc2, vW1+4*i, vX1+i, vX1h+i)
    a("s_mov_b32 exec_hi, 0")
    mac8(vPh, vW1+8, vX1+2, vX1h+2)
    a("s_mov_b64 exec, -1")
    def red_tile(accM, accE, lbase):
        red8regs(accM); red8regs(accE)
        a("s_nop 1")
        for r in (accM, accM+1):
            a(f"v_add_f32_dpp v{r}, v{r}, v{r} row_ror:8 row_mask:0xf bank_mask:0xf")
        for r in (accE, accE+1):
            a(f"v_add_f32_dpp v{r}, v{r}, v{r} row_ror:8 row_mask:0xf bank_mask:0xf")
        a("s_nop 0")
        for r in (accE, accE+1):
            a(f"v_add_f32_dpp v{r}, v{r}, v{r} row_ror:4 row_mask:0xf bank_mask:0xf")
        a("s_nop 1")
        for r in (accE, accE+1):
            a(f"v_add_f32_dpp v{r}, v{r}, v{r} quad_perm:[2,3,0,1] row_mask:0xf bank_mask:0xf")
        a(f"""
        v_lshrrev_b32 v{vT1}, 4, v{vL}
        v_and_b32 v{vT0}, 7, v{vL}
        v_lshlrev_b32 v{vT0}, 5, v{vT0}
        v_lshl_add_u32 v{vT0}, v{vT1}, 3, v{vT0}     ; c3*32 + rho*8
        v_and_b32 v{vT2}, 1, v{vL}
        v_lshlrev_b32 v{vT2}, 5, v{vT2}
        v_lshl_add_u32 v{vT2}, v{vT1}, 3, v{vT2}     ; b0*32 + rho*8
        s_mul_i32 s{sTmp}, s{sW}, 320
        v_add_u32 v{vT0}, s{sTmp}, v{vT0}
        v_add_u32 v{vT2}, s{sTmp}, v{vT2}
        ds_write_b64 v{vT0}, v[{accM}:{accM+1}] offset:{lbase}
        ds_write_b64 v{vT2}, v[{accE}:{accE+1}] offset:{lbase+256}
        """)
    red_tile(vAcc2, vPh, L_YP)
    a.label("L_mlp_done")
    stamp()
    a(f"""
    s_lshl_b32 s{sTmp}, s{sG}, 13
    s_lshl_b32 s{sTmp2}, s{sW}, 8
    s_add_u32 s{sTmp}, s{sTmp}, s{sTmp2}
    s_add_u32 s{sTmp}, s{sTmp}, {WS_O}
    s_add_u32 s{sTmp2}, s{sTmp}, 4096
    s_lshl_b32 s{sTmp3}, s{sG}, 7
    s_add_u32 s{sTmp3}, s{sTmp3}, {WS_ST}
    v_lshrrev_b32 v{vT0}, 4, v{vL}
    v_add_u32 v{vT0}, v{vT0}, v{vL}
    v_and_b32 v{vT0}, 7, v{vT0}
    v_lshlrev_b32 v{vM+5}, 4, v{vT0}              ; pi(l)*16
    """)
    a.label("L_pollo")
    a(f"""
    buffer_load_dwordx4 {q4(vG)}, v{vM}, {srd(S_WS)}, s{sTmp} offen sc1
    buffer_load_dwordx4 {q4(vG+4)}, v{vM}, {srd(S_WS)}, s{sTmp2} offen sc1
    buffer_load_dwordx4 {q4(vG+8)}, v{vM+5}, {srd(S_WS)}, s{sTmp3} offen sc1
    s_waitcnt vmcnt(0)
    v_xor_b32 v{vT0}, s{sT}, v{vG+1}
    v_xor_b32 v{vT1}, s{sT}, v{vG+3}
    v_xor_b32 v{vT2}, s{sT}, v{vG+5}
    v_xor_b32 v{vT3}, s{sT}, v{vG+7}
    v_or3_b32 v{vT0}, v{vT0}, v{vT1}, v{vT2}
    v_xor_b32 v{vT1}, s{sT}, v{vG+9}
    v_xor_b32 v{vT2}, s{sT}, v{vG+11}
    v_or3_b32 v{vT0}, v{vT0}, v{vT1}, v{vT2}
    v_or_b32 v{vT0}, v{vT0}, v{vT3}
    v_cmp_ne_u32 vcc, 0, v{vT0}
    s_add_u32 s{sSpin}, s{sSpin}, 1
    s_cmp_gt_u32 s{sSpin}, {spin_limit}
    s_cbranch_scc1 L_pollo_done
    s_cbranch_vccnz L_pollo
    """)
    a.label("L_pollo_done")
    a.vm = []
    stamp()
    a(f"v_mov_b32 v{vT0}, v{vG+8}")
    for n in (4, 2, 1):
        a("s_nop 1")
        a(f"v_max_f32_dpp v{vT0}, v{vT0}, v{vT0} row_ror:{n} row_mask:0xf bank_mask:0xf")
    a(f"""
    v_sub_f32 v{vT1}, v{vG+8}, v{vT0}
    v_mul_f32 v{vT1}, s{sLog2e}, v{vT1}
    v_exp_f32 v{vT1}, v{vT1}
    s_nop 0
    v_mul_f32 v{vT2}, v{vT1}, v{vG+10}
    """)
    for n in (4, 2, 1):
        a("s_nop 1")
        a(f"v_add_f32_dpp v{vT2}, v{vT2}, v{vT2} row_ror:{n} row_mask:0xf bank_mask:0xf")
    a(f"""
    v_rcp_f32 v{vT2}, v{vT2}
    s_nop 0
    v_mul_f32 v{vT1}, v{vT1}, v{vT2}
    s_nop 1
    v_mov_b32_dpp v{vT2}, v{vT1} row_newbcast:0 row_mask:0xf bank_mask:0xf
    v_mov_b32_dpp v{vT3}, v{vT1} row_newbcast:4 row_mask:0xf bank_mask:0xf
    v_mul_f32 v{vG}, v{vG}, v{vT2}
    v_mul_f32 v{vG+2}, v{vG+2}, v{vT2}
    v_fmac_f32 v{vG}, v{vG+4}, v{vT3}
    v_fmac_f32 v{vG+2}, v{vG+6}, v{vT3}
    s_nop 1
    """)
    red32(vG, vG+2)
    a(f"v_mov_b32 v{vT0}, v{vG}")
    a("s_nop 1")
    red16(vG, vT0)
    a(f"""
    v_cvt_pk_bf16_f32 v{vG}, v{vG}, v{vG}
    v_and_b32 v{vG}, 0xffff, v{vG}
    v_and_b32 v{vT0}, 15, v{vL}
    v_lshlrev_b32 v{vT0}, 3, v{vT0}
    v_lshrrev_b32 v{vT1}, 5, v{vL}
    v_lshl_add_u32 v{vT0}, v{vT1}, 2, v{vT0}      ; (2c + (l>>5))*4
    s_lshl_b32 s{sTmp}, s{sW}, 7
    v_add_u32 v{vT0}, s{sTmp}, v{vT0}
    ds_write_b32 v{vT0}, v{vG} offset:{L_OT}
    v_lshrrev_b32 v{vT0}, 3, v{vL}
    v_lshlrev_b32 v{vT0}, 2, v{vT0}
    v_add_u32 v{vT0}, s{sTmp}, v{vT0}
    v_lshrrev_b32 v{vT1}, 1, v{vL}
    v_lshlrev_b32 v{vT1}, 2, v{vT1}
    v_add_u32 v{vT1}, s{sTmp}, v{vT1}
    s_waitcnt lgkmcnt(0)
    """)
    for i in range(4):
        a(f"ds_read_b32 v{vXq+i}, v{vT0} offset:{L_OT+32*i}")
    a(f"ds_read_b32 v{vXq+4}, v{vT1} offset:{L_OT}")
    zero(vAcc); zero(vP)
    a("s_waitcnt lgkmcnt(0)")
    for i in range(5):
        a(f"v_lshlrev_b32 v{vXqh+i}, 16, v{vXq+i}")
    for i in range(4): mac8(vAcc, vWQ+4*i, vXq+i, vXqh+i)
    mac8(vP, vWQ+16, vXq+4, vXqh+4)
    red_tile(vAcc, vP, L_SP)
    a("s_waitcnt lgkmcnt(0)")
    a("s_barrier")
    a(f"""
    s_cmp_gt_u32 s{sW}, 1
    s_cbranch_scc1 L_pubs_done
    s_cmp_eq_u32 s{sW}, 0
    s_cbranch_scc1 L_pubs_s
    s_cmp_eq_u32 s{sC2}, 0
    s_cbranch_scc1 L_pubs_done
    s_mov_b32 s{sTmp2}, {L_YP}
    s_mov_b32 s{sTmp3}, {WS_Y}
    s_branch L_pubs_common
    """)
    a.label("L_pubs_s")
    a(f"s_mov_b32 s{sTmp2}, {L_SP}")
    a(f"s_mov_b32 s{sTmp3}, {WS_S}")
    a.label("L_pubs_common")
    a(f"""
    v_lshlrev_b32 v{vT0}, 3, v{vL}
    v_add_u32 v{vT0}, s{sTmp2}, v{vT0}
    s_mov_b32 s{sMask}, -1
    s_mov_b32 s{sMask+1}, 0xff
    s_mov_b64 exec, s[{sMask}:{sMask+1}]
    """)
    for k in range(4):
        a(f"ds_read_b64 v[{vG+2*k}:{vG+2*k+1}], v{vT0} offset:{320*k}")
    a(f"""
    v_lshrrev_b32 v{vT1}, 3, v{vL}
    v_lshlrev_b32 v{vT1}, 12, v{vT1}
    v_and_b32 v{vT2}, 7, v{vL}
    v_lshl_add_u32 v{vT1}, v{vT2}, 4, v{vT1}
    s_mul_i32 s{sTmp}, s{sJ}, {5*4096}
    s_lshl_b32 s{sTmp2}, s{sG}, 7
    s_add_u32 s{sTmp}, s{sTmp}, s{sTmp2}
    s_add_u32 s{sTmp}, s{sTmp}, s{sTmp3}
    s_waitcnt lgkmcnt(0)
    v_add_f32 v{vG}, v{vG}, v{vG+2}
    v_add_f32 v{vG+1}, v{vG+1}, v{vG+3}
    v_add_f32 v{vG+4}, v{vG+4}, v{vG+6}
    v_add_f32 v{vG+5}, v{vG+5}, v{vG+7}
    v_add_f32 v{vG+8}, v{vG}, v{vG+4}
    v_add_f32 v{vG+10}, v{vG+1}, v{vG+5}
    v_mov_b32 v{vG+9}, s{sT}
    v_mov_b32 v{vG+11}, s{sT}
    buffer_store_dwordx4 {q4(vG+8)}, v{vT1}, {srd(S_WS)}, s{sTmp} offen sc1
    s_mov_b64 exec, -1
    """)
    a.label("L_pubs_done")
    stamp()
    a(f"""
    s_cmp_lt_u32 s{sG}, 27
    s_cbranch_scc1 L_fin
    s_cmp_eq_u32 s{sW}, 2
    s_cbranch_scc0 L_fin
    s_sub_u32 s{sTmp}, s{sG}, 27
    s_lshl_b32 s{sTmp}, s{sTmp}, 3
    s_add_u32 s{sTmp}, s{sTmp}, s{sJ}             ; c = 0..39
    s_lshl_b32 s{sC1}, s{sTmp}, 5
    s_lshl_b32 s{sTmp}, s{sTmp}, 12
    s_add_u32 s{sTmp2}, s{sTmp}, {WS_Y}
    s_add_u32 s{sTmp}, s{sTmp}, {WS_S}
    v_lshlrev_b32 v{vT0}, 4, v{vL}                ; l*16 = p8*128 + c2*16
    v_and_b32 v{vT1}, 7, v{vL}
    v_lshlrev_b32 v{vT1}, 2, v{vT1}               ; c2*4
    buffer_load_dword v{vM+6}, v{vT1}, {srd(S_X)}, s{sC1} offen
    buffer_load_dword v{vM+7}, v{vT1}, {srd(S_B2)}, s{sC1} offen
    v_mov_b32 v{vF+28}, 0
    v_mov_b32 v{vF+29}, s{sT}
    v_mov_b32 v{vF+30}, 0
    v_mov_b32 v{vF+31}, s{sT}
    s_mov_b32 s{sMask}, 0xffffff
    s_mov_b32 s{sMask+1}, 0
    """)
    a.label("L_pollf")
    for i in range(4):
        a(f"buffer_load_dwordx4 {q4(vF+4*i)}, v{vT0}, {srd(S_WS)}, s{sTmp} offen offset:{1024*i} sc1")
    for i in range(3):
        a(f"buffer_load_dwordx4 {q4(vF+16+4*i)}, v{vT0}, {srd(S_WS)}, s{sTmp2} offen offset:{1024*i} sc1")
    a(f"s_mov_b64 exec, s[{sMask}:{sMask+1}]")
    a(f"buffer_load_dwordx4 {q4(vF+28)}, v{vT0}, {srd(S_WS)}, s{sTmp2} offen offset:3072 sc1")
    a("s_mov_b64 exec, -1")
    a("s_waitcnt vmcnt(0)")
    a(f"v_mov_b32 v{vT2}, 0")
    for i in range(8):
        a(f"v_xor_b32 v{vT3}, s{sT}, v{vF+4*i+1}")
        a(f"v_xor_b32 v{vT4}, s{sT}, v{vF+4*i+3}")
        a(f"v_or3_b32 v{vT2}, v{vT2}, v{vT3}, v{vT4}")
    a(f"""
    v_cmp_ne_u32 vcc, 0, v{vT2}
    s_add_u32 s{sSpin}, s{sSpin}, 1
    s_cmp_gt_u32 s{sSpin}, {spin_limit}
    s_cbranch_scc1 L_pollf_done
    s_cbranch_vccnz L_pollf
    """)
    a.label("L_pollf_done")
    for (dst, base) in ((vG, vF), (vG+2, vF+16)):
        a(f"v_add_f32 v{dst}, v{base}, v{base+4}")
        a(f"v_add_f32 v{dst+1}, v{base+2}, v{base+6}")
        a(f"v_add_f32 v{vT2}, v{base+8}, v{base+12}")
        a(f"v_add_f32 v{vT3}, v{base+10}, v{base+14}")
        a(f"v_add_f32 v{dst}, v{dst}, v{vT2}")
        a(f"v_add_f32 v{dst+1}, v{dst+1}, v{vT3}")
    a("s_nop 1")
    for r in range(vG, vG+4):
        a(f"v_add_f32_dpp v{r}, v{r}, v{r} row_ror:8 row_mask:0xf bank_mask:0xf")
    for r in range(vG, vG+4):
        a(f"v_mov_b32 v{vT2}, v{r}")
        a("s_nop 1")
        red16(r, vT2)
        a(f"v_mov_b32 v{vT2}, v{r}")
        a("s_nop 1")
        red32(r, vT2)
    a(f"""
    v_cvt_pk_bf16_f32 v{vT2}, v{vG}, v{vG+1}
    v_lshlrev_b32 v{vG}, 16, v{vT2}
    v_and_b32 v{vG+1}, 0xffff0000, v{vT2}
    v_cvt_pk_bf16_f32 v{vT2}, v{vG+2}, v{vG+3}
    v_lshlrev_b32 v{vG+2}, 16, v{vT2}
    v_and_b32 v{vG+3}, 0xffff0000, v{vT2}
    v_lshlrev_b32 v{vT2}, 16, v{vM+7}
    v_and_b32 v{vT3}, 0xffff0000, v{vM+7}
    v_add_f32 v{vG+2}, v{vG+2}, v{vT2}
    v_add_f32 v{vG+3}, v{vG+3}, v{vT3}
    v_cvt_pk_bf16_f32 v{vT2}, v{vG+2}, v{vG+3}
    v_lshlrev_b32 v{vG+2}, 16, v{vT2}
    v_and_b32 v{vG+3}, 0xffff0000, v{vT2}
    """)
    for r in (vG+2, vG+3):
        a(f"""
        v_mul_f32 v{vT2}, s{sLog2e}, v{r}
        v_sub_f32 v{vT2}, 0, v{vT2}
        v_exp_f32 v{vT2}, v{vT2}
        s_nop 0
        v_add_f32 v{vT2}, 1.0, v{vT2}
        v_rcp_f32 v{vT2}, v{vT2}
        s_nop 0
        v_mul_f32 v{r}, v{r}, v{vT2}
        """)
    a(f"""
    v_cvt_pk_bf16_f32 v{vT2}, v{vG+2}, v{vG+3}
    v_lshlrev_b32 v{vG+2}, 16, v{vT2}
    v_and_b32 v{vG+3}, 0xffff0000, v{vT2}
    v_mul_f32 v{vG}, v{vG}, v{vG+2}
    v_mul_f32 v{vG+1}, v{vG+1}, v{vG+3}
    v_cvt_pk_bf16_f32 v{vT2}, v{vG}, v{vG+1}
    v_lshlrev_b32 v{vG}, 16, v{vT2}
    v_and_b32 v{vG+1}, 0xffff0000, v{vT2}
    v_lshlrev_b32 v{vT2}, 16, v{vM+6}
    v_and_b32 v{vT3}, 0xffff0000, v{vM+6}
    v_add_f32 v{vG}, v{vG}, v{vT2}
    v_add_f32 v{vG+1}, v{vG+1}, v{vT3}
    v_cvt_pk_bf16_f32 v{vT2}, v{vG}, v{vG+1}
    s_mov_b64 exec, 0xff
    buffer_store_dword v{vT2}, v{vT1}, {srd(S_OUT)}, s{sC1} offen
    s_cmp_eq_u32 s{sC1}, 0
    s_cbranch_scc0 L_fin0
    v_mov_b32 v{vT2}, s{sT}
    v_mov_b32 v{vT3}, 0
    s_mov_b64 exec, 1
    buffer_store_dword v{vT2}, v{vT3}, {srd(S_WS)}, 0 offen sc1
    """)
    a.label("L_fin0")
    a("s_mov_b64 exec, -1")
    a.label("L_fin")
    if stamps and dbg:
        stamp()
        a("s_load_dwordx2 s[44:45], s[0:1], 88")
        a("s_waitcnt lgkmcnt(0)")
        a("s_mov_b32 s46, 256")
        a("s_mov_b32 s47, 0x20000")
        for k in range(11):
            a(f"v_writelane_b32 v{vG}, s{SP[k]}, {k}")
        a(f"s_not_b32 s{sTmp}, s{SP[0]}")
        a(f"v_writelane_b32 v{vG}, s{sTmp}, 11")
        a(f"v_writelane_b32 v{vG}, s{sSpin}, 12")
        a(f"v_lshlrev_b32 v{vT0}, 2, v{vL}")
        a("s_mov_b64 exec, 0x1fff")
        a(f"buffer_atomic_umax v{vG}, v{vT0}, s[44:47], 0 offen")
    elif stamps:
        stamp()
        a("s_waitcnt lgkmcnt(0)")
        a(f"""
        s_lshl_b32 s{sTmp}, s2, 2
        s_add_u32 s{sTmp}, s{sTmp}, s{sW}
        s_lshl_b32 s{sTmp}, s{sTmp}, 7
        s_add_u32 s{sTmp}, s{sTmp}, {WS_TS}
        v_mov_b32 v{vT0}, 0
        """)
        for k in range(11):
            a(f"v_mov_b32 v{vG+k}, s{SP[k]}")
        a(f"v_mov_b32 v{vG+11}, s{sSpin}")
        a("s_mov_b64 exec, 1")
        a(f"buffer_store_dwordx4 {q4(vG)}, v{vT0}, {srd(S_WS)}, s{sTmp} offen")
        a(f"buffer_store_dwordx4 {q4(vG+4)}, v{vT0}, {srd(S_WS)}, s{sTmp} offen offset:16")
        a(f"buffer_store_dwordx4 {q4(vG+8)}, v{vT0}, {srd(S_WS)}, s{sTmp} offen offset:32")
    a.label("L_end")
    a("s_endpgm")
    body = a.text()
    src = HDR_COMMENT + f"""; Override launch geometry by editing the next line (default: block=256,
; grid=ceil(out_elems/256), lds=0). Harness parses it; keep it on one line.
; @launch grid=(256,1,1) block=(256,1,1) lds={LDS}
.amdgcn_target "amdgcn-amd-amdhsa--gfx950"
.text
.globl {KN}
.p2align 8
.type {KN},@function
{KN}:
{body}
.section .rodata,"a"
.p2align 6
.amdhsa_kernel {KN}
  .amdhsa_next_free_vgpr {NV}
  .amdhsa_next_free_sgpr 102
  .amdhsa_accum_offset {NV}
  .amdhsa_group_segment_fixed_size 0
  .amdhsa_kernarg_size 104
  .amdhsa_user_sgpr_count 2
  .amdhsa_user_sgpr_kernarg_segment_ptr 1
  .amdhsa_system_sgpr_workgroup_id_x 1
.end_amdhsa_kernel
"""
    return src

if __name__ == "__main__":
    import argparse
    p = argparse.ArgumentParser()
    p.add_argument("-o", default="k1.s")
    p.add_argument("--stamps", action="store_true")
    p.add_argument("--no-nt", action="store_true")
    p.add_argument("--kpre", type=int, default=8)
    p.add_argument("--dbg", action="store_true")
    p.add_argument("--touch", action="store_true")
    args = p.parse_args()
    open(args.o, "w").write(gen(nt=not args.no_nt, stamps=args.stamps, kpre=args.kpre, dbg=args.dbg, touch=args.touch))
```

```python
import sys
KN = "recurrent_scan__sliding_block_cached__dense_activation_gelu__decode_kernel"

HDR_COMMENT = open("recurrent_scan__sliding_block_cached__dense_activation_gelu__decode.s.ref").read().split("; Override launch")[0]

class A:
    def __init__(self):
        self.l = []
        self.vm = []
    def __call__(self, s):
        for line in s.strip("\n").split("\n"):
            self.l.append("  " + line.strip())
    def label(self, n): self.l.append(n + ":")
    def c(self, s): self.l.append("  ; " + s)
    def vmem(self, s, tag):
        self(s); self.vm.append(tag)
    def wait_vm(self, tag):
        idx = max(i for i, t in enumerate(self.vm) if t == tag)
        n = len(self.vm) - 1 - idx
        self(f"s_waitcnt vmcnt({min(n,63)})")
        self.vm = self.vm[idx + 1:]
    def wait_vm_all(self):
        self("s_waitcnt vmcnt(0)"); self.vm = []
    def text(self): return "\n".join(self.l) + "\n"

WS_EPOCH = 0
WS_Q  = 0x1000
WS_H  = WS_Q + 32*8*1024
WS_O  = WS_H + 32*8*512
WS_ST = WS_O + 32*8*1024
WS_S  = WS_ST + 32*128
WS_Y  = WS_S + 40*32*128
WS_TS = WS_Y + 40*32*128
WS_END = WS_TS + 256*4*128
TAGC = 0x9E3779B9

def gen(nt=True, stamps=False, kpre=8, spin_limit=1<<18, dbg=False, touch=False, echo=None):
    a = A()
    NT = " nt" if nt else ""
    S_X, S_K, S_V, S_WQ, S_WO, S_W1, S_B1, S_W2, S_B2, S_OUT, S_WS = [44 + 4*i for i in range(11)]
    srd = lambda b: f"s[{b}:{b+3}]"
    sG, sJ, sW, sT = 3, 4, 5, 6
    sTmp, sTmp2, sTmp3 = 7, 8, 9
    sSpin = 10
    sMean, sRstd = 11, 12
    sWQ = [16,17,18,19,20]; sW1 = [21,22,23]; sK0, sK1 = 24, 25
    sWO = [26,27,28,29]; sW2 = [30,31]
    sScale, sLog2e = 32, 33
    sMask = 34
    sSave = 36
    sC1, sC2 = 38, 39
    sTS = 88
    vL = 1; vKV = 2; vWQo = 3; vW1o = 4; vWOm = 5; vWOe = 6; vT0 = 7; vT1 = 8; vT2 = 9; vT3 = 10; vT4=11
    vE = 12
    vX = 13
    vXq = 18
    vX1 = 23
    vXqh = 26
    vX1h = 31
    vAcc = 34
    vAcc2 = 42
    vP = 50
    vPh = 58
    vQ = 66
    vG = 70
    vM = 82
    vWQ = 96
    vW1 = 116
    vK = 128
    vV = 160
    vF = 192
    NV = 224
    def q4(b): return f"v[{b}:{b+3}]"
    def q2(b): return f"v[{b}:{b+1}]"
    nstamp = [0]
    SP = [88,90,92,94,96,98,100,40,42,12,14]
    def stamp():
        if stamps and nstamp[0] < len(SP):
            r = SP[nstamp[0]]
            a(f"s_memrealtime s[{r}:{r+1}]"); nstamp[0] += 1

    L_QP = 0
    L_HP = 2048
    L_Q  = 3072
    L_MX = 3328
    L_OP = 3584
    L_LS = 5632
    L_OT = 5888
    L_HT = 6400
    L_SP = 6656
    L_YP = 7936
    LDS = 9216

    a("s_cmp_ge_u32 s2, 256")
    a("s_cbranch_scc1 L_end")
    stamp()
    for i, b in enumerate([S_X, S_K, S_V, S_WQ, S_WO, None, S_W1, S_B1, S_W2, S_B2, S_OUT, None, S_WS]):
        if b is not None:
            a(f"s_load_dwordx2 s[{b}:{b+1}], s[0:1], {8*i}")
    sizes = {S_X:1280, S_K:33554432, S_V:33554432, S_WQ:5242880, S_WO:5242880, S_W1:2211840, S_B1:3456, S_W2:2211840, S_B2:1280, S_OUT:1280, S_WS:WS_END}
    for b, sz in sizes.items():
        a(f"s_mov_b32 s{b+2}, {sz}")
        a(f"s_mov_b32 s{b+3}, 0x20000")
    a(f"""
    v_and_b32 v{vL}, 63, v0
    v_lshrrev_b32 v{vT0}, 6, v0
    s_and_b32 s{sG}, s2, 31
    s_lshr_b32 s{sJ}, s2, 5
    v_readfirstlane_b32 s{sW}, v{vT0}
    v_lshlrev_b32 v{vKV}, 4, v{vL}
    v_lshrrev_b32 v{vT0}, 4, v{vL}            ; k4
    v_and_b32 v{vT1}, 15, v{vL}               ; c8
    v_lshlrev_b32 v{vWQo}, 13, v{vT0}
    v_lshl_add_u32 v{vWQo}, v{vT1}, 4, v{vWQo}   ; k4*8192 + c8*16
    v_lshlrev_b32 v{vT2}, 1, v{vT0}
    v_lshrrev_b32 v{vT0}, 3, v{vL}            ; r8
    v_and_b32 v{vT1}, 7, v{vL}                ; c3
    v_mul_u32_u24 v{vW1o}, 3456, v{vT0}
    v_lshl_add_u32 v{vW1o}, v{vT1}, 4, v{vW1o}   ; r8*3456 + c3*16
    v_mul_u32_u24 v{vWOm}, 1280, v{vT0}
    v_lshl_add_u32 v{vWOm}, v{vT1}, 4, v{vWOm}   ; r8*1280 + c3*16
    v_lshlrev_b32 v{vT3}, 1, v{vT0}
    v_lshrrev_b32 v{vT0}, 1, v{vL}
    v_and_b32 v{vT1}, 1, v{vL}
    v_mul_u32_u24 v{vWOe}, 1280, v{vT0}
    v_lshl_add_u32 v{vWOe}, v{vT1}, 4, v{vWOe}
    v_add_u32 v{vWOe}, 128, v{vWOe}           ; (l>>1)*1280 + 128 + (l&1)*16
    v_lshlrev_b32 v{vT4}, 2, v{vL}            ; l*4
    v_mov_b32 v{vT1}, 0
    """)
    a(f"""
    s_mul_i32 s{sTmp}, s{sJ}, 80
    s_mul_i32 s{sTmp2}, s{sW}, 20
    s_add_u32 s{sTmp}, s{sTmp}, s{sTmp2}        ; row0 = 80j+20w
    s_lshl_b32 s{sTmp3}, s{sTmp}, 1
    s_lshl_b32 s{sWQ[0]}, s{sTmp}, 13
    s_lshl_b32 s{sTmp2}, s{sG}, 8
    s_add_u32 s{sWQ[0]}, s{sWQ[0]}, s{sTmp2}
    """)
    for i in range(1, 5):
        a(f"s_add_u32 s{sWQ[i]}, s{sWQ[i-1]}, 32768")
    a(f"""
    s_mul_i32 s{sW1[0]}, s{sTmp}, 3456
    s_lshl_b32 s{sTmp2}, s{sG}, 7
    s_add_u32 s{sW1[0]}, s{sW1[0]}, s{sTmp2}
    s_add_u32 s{sW1[1]}, s{sW1[0]}, {8*3456}
    s_add_u32 s{sW1[2]}, s{sW1[0]}, {16*3456}
    s_lshl_b32 s{sK0}, s{sG}, 20
    s_lshl_b32 s{sTmp2}, s{sJ}, 15
    s_add_u32 s{sK0}, s{sK0}, s{sTmp2}
    s_lshl_b32 s{sTmp2}, s{sW}, 13
    s_add_u32 s{sK0}, s{sK0}, s{sTmp2}
    s_add_u32 s{sK0}, s{sK0}, {3072*256}
    s_add_u32 s{sK1}, s{sK0}, 4096
    s_lshl_b32 s{sTmp}, s{sG}, 7
    s_lshl_b32 s{sTmp2}, s{sW}, 5
    s_add_u32 s{sTmp}, s{sTmp}, s{sTmp2}         ; 128g+32w
    s_mul_i32 s{sWO[0]}, s{sTmp}, 1280
    s_mul_i32 s{sTmp2}, s{sJ}, 160
    s_add_u32 s{sWO[0]}, s{sWO[0]}, s{sTmp2}
    s_add_u32 s{sWO[1]}, s{sWO[0]}, 10240
    s_add_u32 s{sWO[2]}, s{sWO[0]}, 20480
    s_add_u32 s{sWO[3]}, s{sWO[0]}, 30720
    s_lshl_b32 s{sTmp}, s{sG}, 6
    s_lshl_b32 s{sC1}, s{sW}, 4
    s_add_u32 s{sTmp}, s{sTmp}, s{sC1}           ; 64g+16w
    s_mul_i32 s{sW2[0]}, s{sTmp}, 1280
    s_add_u32 s{sW2[0]}, s{sW2[0]}, s{sTmp2}
    s_add_u32 s{sW2[1]}, s{sW2[0]}, 10240
    s_mov_b32 s{sScale}, 0x3db504f3              ; 128^-0.5 (f32)
    s_mov_b32 s{sLog2e}, 0x3fb8aa3b
    s_mov_b32 s{sSpin}, 0
    s_waitcnt lgkmcnt(0)
    """)
    a.vmem(f"buffer_load_dword v{vE}, v{vT1}, {srd(S_WS)}, 0 offen sc1", "E")
    if touch:
        a(f"""
        s_lshl_b32 s{sC1}, s{sG}, 7
        s_lshl_b32 s{sTmp2}, s{sW}, 5
        s_add_u32 s{sC1}, s{sC1}, s{sTmp2}
        v_and_b32 v{vF+40-32}, 7, v{vL}
        v_lshlrev_b32 v{vF+8}, 2, v{vF+8}
        """)
        a.vmem(f"buffer_load_dword v{vF+9}, v{vF+8}, {srd(S_B1)}, s{sC1} offen", "t")
        a(f"""
        s_sub_u32 s{sC1}, s{sG}, 27
        s_lshl_b32 s{sC1}, s{sC1}, 3
        s_add_u32 s{sC1}, s{sC1}, s{sJ}
        s_lshl_b32 s{sC1}, s{sC1}, 5
        """)
        a.vmem(f"buffer_load_dword v{vF+10}, v{vF+8}, {srd(S_B2)}, s{sC1} offen", "t")
        a.vmem(f"buffer_load_dword v{vF+11}, v{vF+8}, {srd(S_X)}, s{sC1} offen", "t")
        a.vmem(f"buffer_load_dword v{vF+12}, v{vT1}, {srd(S_OUT)}, 0 offen", "t")
        a.vmem(f"buffer_load_dword v{vF+13}, v{vT1}, {srd(S_V)}, s{sK0} offen", "t")
        a.vmem(f"buffer_load_dword v{vF+14}, v{vT1}, {srd(S_WO)}, s{sWO[0]} offen", "t")
        a.vmem(f"buffer_load_dword v{vF+15}, v{vT1}, {srd(S_W2)}, s{sW2[0]} offen", "t")
        a.vmem(f"buffer_load_dword v{vF+16}, v{vT1}, {srd(S_B2)}, 0 offen", "t")
    a.vmem(f"buffer_load_dwordx4 {q4(14)}, v{vKV}, {srd(S_X)}, 0 offen", "x")
    a.vmem(f"buffer_load_dword v13, v{vT4}, {srd(S_X)}, 0 offen offset:1024", "x")
    for i in range(5):
        a.vmem(f"buffer_load_ushort v{vXq+i}, v{vT2}, {srd(S_X)}, s{sTmp3} offen offset:{8*i}", "x")
    for i in range(3):
        a.vmem(f"buffer_load_ushort v{vX1+i}, v{vT3}, {srd(S_X)}, s{sTmp3} offen offset:{16*i}", "x")
    for i in range(5):
        a.vmem(f"buffer_load_dwordx4 {q4(vWQ+4*i)}, v{vWQo}, {srd(S_WQ)}, s{sWQ[i]} offen{NT}", "wq")
    a(f"s_cmp_lt_u32 s{sG}, 27")
    a(f"s_cselect_b32 s{sC2}, 1, 0")
    a(f"s_cselect_b32 s{sC1}, 0, 0x7f000000")
    for i in range(3):
        a(f"s_add_u32 s{sW1[i]}, s{sW1[i]}, s{sC1}")
    for i in range(2):
        a(f"s_add_u32 s{sW2[i]}, s{sW2[i]}, s{sC1}")
    for i in range(3):
        if i == 2:
            a("s_mov_b32 exec_hi, 0")
        a.vmem(f"buffer_load_dwordx4 {q4(vW1+4*i)}, v{vW1o}, {srd(S_W1)}, s{sW1[i]} offen{NT}", "w1")
        if i == 2:
            a("s_mov_b64 exec, -1")
    def kload(i):
        a.vmem(f"buffer_load_dwordx4 {q4(vK+4*i)}, v{vKV}, {srd(S_K)}, s{sK0 if i < 4 else sK1} offen offset:{1024*(i%4)}{NT}", f"k{i}")
    def vload(i):
        a.vmem(f"buffer_load_dwordx4 {q4(vV+4*i)}, v{vKV}, {srd(S_V)}, s{sK0 if i < 4 else sK1} offen offset:{1024*(i%4)}{NT}", f"v{i}")
    for i in range(kpre): kload(i)
    stamp()
    a.wait_vm("x")
    a(f"v_readfirstlane_b32 s{sT}, v{vE}")
    a(f"s_add_u32 s{sT}, s{sT}, {TAGC}")
    xs = list(range(vM, vM+10))
    for k, r in enumerate([14,15,16,17,13]):
        a(f"v_lshlrev_b32 v{xs[2*k]}, 16, v{r}")
        a(f"v_and_b32 v{xs[2*k+1]}, 0xffff0000, v{r}")
    def wave_sum(v, t):
        for n in (8, 4, 2, 1):
            a("s_nop 1")
            a(f"v_add_f32_dpp v{v}, v{v}, v{v} row_ror:{n} row_mask:0xf bank_mask:0xf")
        a(f"v_mov_b32 v{t}, v{v}")
        a("s_nop 1")
        a(f"v_permlane16_swap_b32 v{v}, v{t}")
        a(f"v_add_f32 v{v}, v{v}, v{t}")
        a(f"v_mov_b32 v{t}, v{v}")
        a("s_nop 1")
        a(f"v_permlane32_swap_b32 v{v}, v{t}")
        a(f"v_add_f32 v{v}, v{v}, v{t}")
    a(f"v_add_f32 v{vT0}, v{xs[0]}, v{xs[1]}")
    for k in range(2, 10):
        a(f"v_add_f32 v{vT0}, v{vT0}, v{xs[k]}")
    wave_sum(vT0, vT1)
    a(f"v_mul_f32 v{vT0}, 0x3acccccd, v{vT0}")
    for k in range(10):
        a(f"v_sub_f32 v{xs[k]}, v{xs[k]}, v{vT0}")
    a(f"v_mul_f32 v{vT2}, v{xs[0]}, v{xs[0]}")
    for k in range(1, 10):
        a(f"v_fmac_f32 v{vT2}, v{xs[k]}, v{xs[k]}")
    wave_sum(vT2, vT1)
    a(f"v_mul_f32 v{vT2}, 0x3acccccd, v{vT2}")
    def rnd(v):
        a(f"v_cvt_pk_bf16_f32 v{v}, v{v}, v{v}")
        a(f"v_and_b32 v{v}, 0xffff0000, v{v}")
    rnd(vT0); rnd(vT2)
    a(f"v_add_f32 v{vT2}, 0x3727c5ac, v{vT2}")
    rnd(vT2)
    a(f"v_sqrt_f32 v{vT2}, v{vT2}")
    a("s_nop 0")
    rnd(vT2)
    a(f"v_rcp_f32 v{vT2}, v{vT2}")
    a("s_nop 0")
    for (lo, hi) in [(vXq+i, vXqh+i) for i in range(5)] + [(vX1+i, vX1h+i) for i in range(3)]:
        a(f"v_lshlrev_b32 v{lo}, 16, v{lo}")
        a(f"v_sub_f32 v{lo}, v{lo}, v{vT0}")
        rnd(lo)
        a(f"v_mul_f32 v{lo}, v{lo}, v{vT2}")
        a(f"v_cvt_pk_bf16_f32 v{lo}, v{lo}, v{lo}")
        a(f"v_and_b32 v{hi}, 0xffff0000, v{lo}")
        a(f"v_and_b32 v{lo}, 0xffff, v{lo}")
    for i in range(kpre, 8): kload(i)
    def zero(base, n=8):
        for k in range(n): a(f"v_mov_b32 v{base+k}, 0")
    def mac8(acc, w, lo, hi):
        for k in range(4):
            a(f"v_dot2c_f32_bf16 v{acc+2*k}, v{w+k}, v{lo}")
            a(f"v_dot2c_f32_bf16 v{acc+2*k+1}, v{w+k}, v{hi}")
    def red32(x, y):
        a(f"v_permlane32_swap_b32 v{x}, v{y}")
        a(f"v_add_f32 v{x}, v{x}, v{y}")
    def red16(x, y):
        a(f"v_permlane16_swap_b32 v{x}, v{y}")
        a(f"v_add_f32 v{x}, v{x}, v{y}")
    def red8regs(acc):
        a("s_nop 2")
        red32(acc+0, acc+4); red32(acc+2, acc+6); red32(acc+1, acc+5); red32(acc+3, acc+7)
        a("s_nop 0")
        red16(acc+0, acc+2); red16(acc+1, acc+3)
    zero(vAcc); zero(vAcc2)
    a.wait_vm("wq")
    stamp()
    for i in range(5): mac8(vAcc, vWQ+4*i, vXq+i, vXqh+i)
    a.wait_vm("w1")
    for i in range(2): mac8(vAcc2, vW1+4*i, vX1+i, vX1h+i)
    a("s_mov_b32 exec_hi, 0")
    mac8(vAcc2, vW1+8, vX1+2, vX1h+2)
    a("s_mov_b64 exec, -1")
    red8regs(vAcc)
    red8regs(vAcc2)
    a("s_nop 1")
    for r in (vAcc2, vAcc2+1):
        a(f"v_add_f32_dpp v{r}, v{r}, v{r} row_ror:8 row_mask:0xf bank_mask:0xf")
    a(f"""
    v_and_b32 v{vT0}, 15, v{vL}
    v_lshlrev_b32 v{vT0}, 5, v{vT0}
    v_lshrrev_b32 v{vT1}, 4, v{vL}
    v_lshl_add_u32 v{vT0}, v{vT1}, 3, v{vT0}
    s_lshl_b32 s{sTmp}, s{sW}, 9
    v_add_u32 v{vT0}, s{sTmp}, v{vT0}
    v_and_b32 v{vT2}, 7, v{vL}
    v_lshlrev_b32 v{vT2}, 5, v{vT2}
    v_lshl_add_u32 v{vT2}, v{vT1}, 3, v{vT2}
    s_lshl_b32 s{sTmp}, s{sW}, 8
    v_add_u32 v{vT2}, s{sTmp}, v{vT2}
    ds_write_b64 v{vT0}, v[{vAcc}:{vAcc+1}] offset:{L_QP}
    ds_write_b64 v{vT2}, v[{vAcc2}:{vAcc2+1}] offset:{L_HP}
    s_waitcnt lgkmcnt(0)
    s_barrier
    """)
    a(f"v_lshlrev_b32 v{vT0}, 3, v{vL}")
    a(f"s_cmp_eq_u32 s{sW}, 0")
    a("s_cbranch_scc1 L_pubq")
    a(f"s_cmp_eq_u32 s{sW}, 1")
    a("s_cbranch_scc0 L_pub_done")
    a(f"s_cmp_eq_u32 s{sC2}, 0")
    a("s_cbranch_scc1 L_pub_done")
    a("s_mov_b32 exec_hi, 0")
    for k in range(4):
        a(f"ds_read_b64 v[{vG+2*k}:{vG+2*k+1}], v{vT0} offset:{L_HP+256*k}")
    a(f"""
    s_lshl_b32 s{sTmp}, s{sG}, 3
    s_add_u32 s{sTmp}, s{sTmp}, s{sJ}
    s_lshl_b32 s{sTmp}, s{sTmp}, 9
    s_add_u32 s{sTmp}, s{sTmp}, {WS_H}
    s_branch L_pub_common
    """)
    a.label("L_pubq")
    for k in range(4):
        a(f"ds_read_b64 v[{vG+2*k}:{vG+2*k+1}], v{vT0} offset:{L_QP+512*k}")
    a(f"""
    s_lshl_b32 s{sTmp}, s{sG}, 3
    s_add_u32 s{sTmp}, s{sTmp}, s{sJ}
    s_lshl_b32 s{sTmp}, s{sTmp}, 10
    s_add_u32 s{sTmp}, s{sTmp}, {WS_Q}
    """)
    a.label("L_pub_common")
    a(f"""
    s_waitcnt lgkmcnt(0)
    v_add_f32 v{vG}, v{vG}, v{vG+2}
    v_add_f32 v{vG+1}, v{vG+1}, v{vG+3}
    v_add_f32 v{vG+4}, v{vG+4}, v{vG+6}
    v_add_f32 v{vG+5}, v{vG+5}, v{vG+7}
    v_add_f32 v{vG+8}, v{vG}, v{vG+4}
    v_add_f32 v{vG+10}, v{vG+1}, v{vG+5}
    v_mov_b32 v{vG+9}, s{sT}
    v_mov_b32 v{vG+11}, s{sT}
    buffer_store_dwordx4 {q4(vG+8)}, v{vKV}, {srd(S_WS)}, s{sTmp} offen sc1
    s_mov_b64 exec, -1
    """)
    a.label("L_pub_done")
    stamp()
    for i in range(4): vload(i)
    a.wait_vm("k5")
    a(f"""
    v_lshrrev_b32 v{vT0}, 4, v{vL}            ; p4
    v_and_b32 v{vT1}, 15, v{vL}               ; c
    v_lshlrev_b32 v{vT0}, 10, v{vT0}
    v_lshl_add_u32 v{vM}, v{vT1}, 4, v{vT0}
    v_lshrrev_b32 v{vT0}, 3, v{vL}            ; p8
    v_and_b32 v{vT1}, 7, v{vL}
    v_lshlrev_b32 v{vT0}, 9, v{vT0}
    v_lshl_add_u32 v{vM+1}, v{vT1}, 4, v{vT0}
    s_lshl_b32 s{sTmp}, s{sG}, 13
    s_lshl_b32 s{sTmp2}, s{sW}, 8
    s_add_u32 s{sTmp}, s{sTmp}, s{sTmp2}
    s_add_u32 s{sTmp}, s{sTmp}, {WS_Q}
    s_add_u32 s{sTmp2}, s{sTmp}, 4096
    s_lshl_b32 s{sTmp3}, s{sG}, 12
    s_lshl_b32 s{sC1}, s{sW}, 7
    s_add_u32 s{sTmp3}, s{sTmp3}, s{sC1}
    s_add_u32 s{sTmp3}, s{sTmp3}, {WS_H}
    """)
    first = True
    a.label("L_pollq")
    a.vmem(f"buffer_load_dwordx4 {q4(vG)}, v{vM}, {srd(S_WS)}, s{sTmp} offen sc1", "pq")
    a.vmem(f"buffer_load_dwordx4 {q4(vG+4)}, v{vM}, {srd(S_WS)}, s{sTmp2} offen sc1", "pq")
    a.wait_vm_all()
    a(f"""
    v_xor_b32 v{vT0}, s{sT}, v{vG+1}
    v_xor_b32 v{vT1}, s{sT}, v{vG+3}
    v_xor_b32 v{vT2}, s{sT}, v{vG+5}
    v_xor_b32 v{vT3}, s{sT}, v{vG+7}
    v_or3_b32 v{vT0}, v{vT0}, v{vT1}, v{vT2}
    v_or_b32 v{vT0}, v{vT0}, v{vT3}
    v_cmp_ne_u32 vcc, 0, v{vT0}
    s_add_u32 s{sSpin}, s{sSpin}, 1
    s_cmp_gt_u32 s{sSpin}, {spin_limit}
    s_cbranch_scc1 L_pollq_done
    s_cbranch_vccnz L_pollq
    """)
    a.label("L_pollq_done")
    stamp()
    for i in range(4, 8): vload(i)
    a(f"""
    v_add_f32 v{vG}, v{vG}, v{vG+4}
    v_add_f32 v{vG+2}, v{vG+2}, v{vG+6}
    s_nop 1
    """)
    red32(vG, vG+2)
    a(f"v_mov_b32 v{vT0}, v{vG}")
    a("s_nop 1")
    red16(vG, vT0)
    a(f"""
    v_cvt_pk_bf16_f32 v{vG}, v{vG}, v{vG}
    v_and_b32 v{vT0}, 15, v{vL}
    v_lshlrev_b32 v{vT0}, 2, v{vT0}           ; 2c*2 bytes
    v_lshrrev_b32 v{vT1}, 5, v{vL}
    v_lshl_add_u32 v{vT0}, v{vT1}, 1, v{vT0}  ; + (l>>5)*2
    s_lshl_b32 s{sTmp}, s{sW}, 6
    v_add_u32 v{vT0}, s{sTmp}, v{vT0}
    ds_write_b16 v{vT0}, v{vG} offset:{L_Q}
    s_waitcnt lgkmcnt(0)
    s_barrier
    v_and_b32 v{vT0}, 15, v{vL}
    v_lshlrev_b32 v{vT0}, 4, v{vT0}
    ds_read_b128 {q4(vQ)}, v{vT0} offset:{L_Q}
    s_waitcnt lgkmcnt(0)
    """)
    for i in range(8):
        a(f"v_mov_b32 v{vP+i}, 0")
    for k in range(4):
        for i in range(8):
            a(f"v_dot2c_f32_bf16 v{vP+i}, v{vK+4*i+k}, v{vQ+k}")
    a("s_nop 2")
    for n in (8, 4, 2, 1):
        for i in range(8):
            a(f"v_add_f32_dpp v{vP+i}, v{vP+i}, v{vP+i} row_ror:{n} row_mask:0xf bank_mask:0xf")
    for i in range(0, 8, 2):
        a(f"v_cvt_pk_bf16_f32 v{vT0}, v{vP+i}, v{vP+i+1}")
        a(f"v_lshlrev_b32 v{vP+i}, 16, v{vT0}")
        a(f"v_and_b32 v{vP+i+1}, 0xffff0000, v{vT0}")
        a(f"v_mul_f32 v{vP+i}, s{sScale}, v{vP+i}")
        a(f"v_mul_f32 v{vP+i+1}, s{sScale}, v{vP+i+1}")
        a(f"v_cvt_pk_bf16_f32 v{vT0}, v{vP+i}, v{vP+i+1}")
        a(f"v_lshlrev_b32 v{vP+i}, 16, v{vT0}")
        a(f"v_and_b32 v{vP+i+1}, 0xffff0000, v{vT0}")
    a(f"v_max3_f32 v{vT0}, v{vP}, v{vP+1}, v{vP+2}")
    a(f"v_max3_f32 v{vT0}, v{vT0}, v{vP+3}, v{vP+4}")
    a(f"v_max3_f32 v{vT0}, v{vT0}, v{vP+5}, v{vP+6}")
    a(f"v_max_f32 v{vT0}, v{vT0}, v{vP+7}")
    a(f"v_mov_b32 v{vT1}, v{vT0}")
    a("s_nop 1")
    a(f"v_permlane16_swap_b32 v{vT0}, v{vT1}")
    a(f"v_max_f32 v{vT0}, v{vT0}, v{vT1}")
    a(f"v_mov_b32 v{vT1}, v{vT0}")
    a("s_nop 1")
    a(f"v_permlane32_swap_b32 v{vT0}, v{vT1}")
    a(f"v_max_f32 v{vT0}, v{vT0}, v{vT1}")
    a(f"""
    s_lshl_b32 s{sTmp}, s{sW}, 2
    v_mov_b32 v{vT1}, s{sTmp}
    ds_write_b32 v{vT1}, v{vT0} offset:{L_MX}
    s_waitcnt lgkmcnt(0)
    s_barrier
    v_mov_b32 v{vT1}, 0
    ds_read_b128 {q4(vG)}, v{vT1} offset:{L_MX}
    s_waitcnt lgkmcnt(0)
    v_max3_f32 v{vM+2}, v{vG}, v{vG+1}, v{vG+2}
    v_max_f32 v{vM+2}, v{vM+2}, v{vG+3}          ; m_j
    """)
    for i in range(8):
        a(f"v_sub_f32 v{vP+i}, v{vP+i}, v{vM+2}")
    for i in range(8):
        a(f"v_mul_f32 v{vP+i}, s{sLog2e}, v{vP+i}")
    for i in range(8):
        a(f"v_exp_f32 v{vP+i}, v{vP+i}")
    a("s_nop 0")
    a(f"v_add_f32 v{vM+3}, v{vP}, v{vP+1}")
    for i in range(2, 8):
        a(f"v_add_f32 v{vM+3}, v{vM+3}, v{vP+i}")
    a(f"v_mov_b32 v{vT1}, v{vM+3}")
    a("s_nop 1")
    red16(vM+3, vT1)
    a(f"v_mov_b32 v{vT1}, v{vM+3}")
    a("s_nop 1")
    red32(vM+3, vT1)
    for i in range(8):
        a(f"v_cvt_pk_bf16_f32 v{vP+i}, v{vP+i}, v{vP+i}")
    for i in range(8):
        a(f"v_and_b32 v{vPh+i}, 0xffff0000, v{vP+i}")
        a(f"v_and_b32 v{vP+i}, 0xffff, v{vP+i}")
    stamp()
    for i in range(4):
        a.vmem(f"buffer_load_dwordx4 {q4(vWQ+4*i)}, v{vWOm}, {srd(S_WO)}, s{sWO[i]} offen{NT}", "wo")
    a.vmem(f"buffer_load_dwordx4 {q4(vWQ+16)}, v{vWOe}, {srd(S_WO)}, s{sWO[0]} offen{NT}", "wo")
    for i in range(2):
        a.vmem(f"buffer_load_dwordx4 {q4(vW1+4*i)}, v{vWOm}, {srd(S_W2)}, s{sW2[i]} offen{NT}", "w2")
    a("s_mov_b32 exec_hi, 0")
    a.vmem(f"buffer_load_dwordx4 {q4(vW1+8)}, v{vWOe}, {srd(S_W2)}, s{sW2[0]} offen{NT}", "w2")
    a("s_mov_b64 exec, -1")
    zero(vAcc)
    for i in range(8):
        a.wait_vm(f"v{i}") if i >= 4 else None
        mac8(vAcc, vV+4*i, vP+i, vPh+i)
    red8regs(vAcc)
    a(f"""
    v_and_b32 v{vT0}, 15, v{vL}
    v_lshlrev_b32 v{vT0}, 5, v{vT0}
    v_lshrrev_b32 v{vT1}, 4, v{vL}
    v_lshl_add_u32 v{vT0}, v{vT1}, 3, v{vT0}
    s_lshl_b32 s{sTmp}, s{sW}, 9
    v_add_u32 v{vT0}, s{sTmp}, v{vT0}
    s_lshl_b32 s{sTmp}, s{sW}, 2
    v_mov_b32 v{vT1}, s{sTmp}
    ds_write_b64 v{vT0}, v[{vAcc}:{vAcc+1}] offset:{L_OP}
    ds_write_b32 v{vT1}, v{vM+3} offset:{L_LS}
    s_waitcnt lgkmcnt(0)
    s_barrier
    s_cmp_eq_u32 s{sW}, 0
    s_cbranch_scc1 L_pubo
    s_cmp_eq_u32 s{sW}, 1
    s_cbranch_scc0 L_pubo_done
    v_mov_b32 v{vT1}, 0
    ds_read_b128 {q4(vG)}, v{vT1} offset:{L_LS}
    s_waitcnt lgkmcnt(0)
    v_add_f32 v{vG}, v{vG}, v{vG+1}
    v_add_f32 v{vG+2}, v{vG+2}, v{vG+3}
    v_add_f32 v{vG+2}, v{vG}, v{vG+2}
    v_mov_b32 v{vG}, v{vM+2}
    v_mov_b32 v{vG+1}, s{sT}
    v_mov_b32 v{vG+3}, s{sT}
    s_lshl_b32 s{sTmp}, s{sG}, 7
    s_lshl_b32 s{sTmp2}, s{sJ}, 4
    s_add_u32 s{sTmp}, s{sTmp}, s{sTmp2}
    s_add_u32 s{sTmp}, s{sTmp}, {WS_ST}
    s_mov_b64 exec, 1
    buffer_store_dwordx4 {q4(vG)}, v{vT1}, {srd(S_WS)}, s{sTmp} offen sc1
    s_mov_b64 exec, -1
    s_branch L_pubo_done
    """)
    a.label("L_pubo")
    a(f"v_lshlrev_b32 v{vT0}, 3, v{vL}")
    for k in range(4):
        a(f"ds_read_b64 v[{vG+2*k}:{vG+2*k+1}], v{vT0} offset:{L_OP+512*k}")
    a(f"""
    s_lshl_b32 s{sTmp}, s{sG}, 3
    s_add_u32 s{sTmp}, s{sTmp}, s{sJ}
    s_lshl_b32 s{sTmp}, s{sTmp}, 10
    s_add_u32 s{sTmp}, s{sTmp}, {WS_O}
    s_waitcnt lgkmcnt(0)
    v_add_f32 v{vG}, v{vG}, v{vG+2}
    v_add_f32 v{vG+1}, v{vG+1}, v{vG+3}
    v_add_f32 v{vG+4}, v{vG+4}, v{vG+6}
    v_add_f32 v{vG+5}, v{vG+5}, v{vG+7}
    v_add_f32 v{vG+8}, v{vG}, v{vG+4}
    v_add_f32 v{vG+10}, v{vG+1}, v{vG+5}
    v_mov_b32 v{vG+9}, s{sT}
    v_mov_b32 v{vG+11}, s{sT}
    buffer_store_dwordx4 {q4(vG+8)}, v{vKV}, {srd(S_WS)}, s{sTmp} offen sc1
    """)
    a.label("L_pubo_done")
    stamp()
    a(f"s_cmp_eq_u32 s{sC2}, 0")
    a("s_cbranch_scc1 L_mlp_done")
    a(f"""
    s_lshl_b32 s{sTmp}, s{sG}, 7
    s_lshl_b32 s{sTmp2}, s{sW}, 5
    s_add_u32 s{sTmp}, s{sTmp}, s{sTmp2}
    v_and_b32 v{vT0}, 7, v{vL}
    v_lshlrev_b32 v{vT0}, 2, v{vT0}
    buffer_load_dword v{vM+4}, v{vT0}, {srd(S_B1)}, s{sTmp} offen
    """)
    a.label("L_pollh")
    a(f"""
    buffer_load_dwordx4 {q4(vG)}, v{vM+1}, {srd(S_WS)}, s{sTmp3} offen sc1
    s_waitcnt vmcnt(0)
    v_xor_b32 v{vT0}, s{sT}, v{vG+1}
    v_xor_b32 v{vT1}, s{sT}, v{vG+3}
    v_or_b32 v{vT0}, v{vT0}, v{vT1}
    v_cmp_ne_u32 vcc, 0, v{vT0}
    s_add_u32 s{sSpin}, s{sSpin}, 1
    s_cmp_gt_u32 s{sSpin}, {spin_limit}
    s_cbranch_scc1 L_pollh_done
    s_cbranch_vccnz L_pollh
    """)
    a.label("L_pollh_done")
    a.vm = []
    a("s_nop 1")
    for r in (vG, vG+2):
        a(f"v_add_f32_dpp v{r}, v{r}, v{r} row_ror:8 row_mask:0xf bank_mask:0xf")
    for r in (vG, vG+2):
        a(f"v_mov_b32 v{vT0}, v{r}")
        a("s_nop 1")
        red16(r, vT0)
        a(f"v_mov_b32 v{vT0}, v{r}")
        a("s_nop 1")
        red32(r, vT0)
    a(f"""
    v_cvt_pk_bf16_f32 v{vT0}, v{vG}, v{vG+2}
    v_lshlrev_b32 v{vG}, 16, v{vT0}
    v_and_b32 v{vG+1}, 0xffff0000, v{vT0}
    v_lshlrev_b32 v{vT1}, 16, v{vM+4}
    v_and_b32 v{vT2}, 0xffff0000, v{vM+4}
    v_add_f32 v{vG}, v{vG}, v{vT1}
    v_add_f32 v{vG+1}, v{vG+1}, v{vT2}
    v_cvt_pk_bf16_f32 v{vT0}, v{vG}, v{vG+1}
    v_lshlrev_b32 v{vG}, 16, v{vT0}
    v_and_b32 v{vG+1}, 0xffff0000, v{vT0}
    s_mov_b32 s{sTmp}, 0x3d372713                 ; 0.044715
    s_mov_b32 s{sTmp2}, 0xc0135761
    """)
    for r in (vG, vG+1):
        a(f"""
        v_mul_f32 v{vT0}, v{r}, v{r}
        v_mul_f32 v{vT0}, s{sTmp}, v{vT0}
        v_fma_f32 v{vT0}, v{vT0}, v{r}, v{r}        ; u + c u^3
        v_mul_f32 v{vT0}, s{sTmp2}, v{vT0}
        v_exp_f32 v{vT0}, v{vT0}
        s_nop 0
        v_add_f32 v{vT0}, 1.0, v{vT0}
        v_rcp_f32 v{vT0}, v{vT0}
        s_nop 0
        v_mul_f32 v{r}, v{r}, v{vT0}
        """)
    a(f"""
    v_cvt_pk_bf16_f32 v{vT0}, v{vG}, v{vG+1}
    v_and_b32 v{vG}, 0xffff, v{vT0}
    v_lshrrev_b32 v{vG+1}, 16, v{vT0}
    v_and_b32 v{vT0}, 7, v{vL}
    v_lshlrev_b32 v{vT0}, 3, v{vT0}
    s_lshl_b32 s{sTmp}, s{sW}, 6
    v_add_u32 v{vT0}, s{sTmp}, v{vT0}
    ds_write_b64 v{vT0}, v[{vG}:{vG+1}] offset:{L_HT}
    v_lshrrev_b32 v{vT0}, 3, v{vL}
    v_lshlrev_b32 v{vT0}, 2, v{vT0}
    v_add_u32 v{vT0}, s{sTmp}, v{vT0}             ; HT + w*64 + r8*4
    v_lshrrev_b32 v{vT1}, 1, v{vL}
    v_and_b32 v{vT1}, 15, v{vT1}
    v_lshlrev_b32 v{vT1}, 2, v{vT1}
    v_add_u32 v{vT1}, s{sTmp}, v{vT1}             ; HT + w*64 + ((l>>1)&15)*4
    s_waitcnt lgkmcnt(0)
    ds_read_b32 v{vX1}, v{vT0} offset:{L_HT}
    ds_read_b32 v{vX1+1}, v{vT0} offset:{L_HT+32}
    ds_read_b32 v{vX1+2}, v{vT1} offset:{L_HT}
    s_waitcnt lgkmcnt(0)
    """)
    for i in range(3):
        a(f"v_lshlrev_b32 v{vX1h+i}, 16, v{vX1+i}")
    zero(vAcc2); zero(vPh)
    for i in range(2): mac8(vAcc2, vW1+4*i, vX1+i, vX1h+i)
    a("s_mov_b32 exec_hi, 0")
    mac8(vPh, vW1+8, vX1+2, vX1h+2)
    a("s_mov_b64 exec, -1")
    def red_tile(accM, accE, lbase):
        red8regs(accM); red8regs(accE)
        a("s_nop 1")
        for r in (accM, accM+1):
            a(f"v_add_f32_dpp v{r}, v{r}, v{r} row_ror:8 row_mask:0xf bank_mask:0xf")
        for r in (accE, accE+1):
            a(f"v_add_f32_dpp v{r}, v{r}, v{r} row_ror:8 row_mask:0xf bank_mask:0xf")
        a("s_nop 0")
        for r in (accE, accE+1):
            a(f"v_add_f32_dpp v{r}, v{r}, v{r} row_ror:4 row_mask:0xf bank_mask:0xf")
        a("s_nop 1")
        for r in (accE, accE+1):
            a(f"v_add_f32_dpp v{r}, v{r}, v{r} quad_perm:[2,3,0,1] row_mask:0xf bank_mask:0xf")
        a(f"""
        v_lshrrev_b32 v{vT1}, 4, v{vL}
        v_and_b32 v{vT0}, 7, v{vL}
        v_lshlrev_b32 v{vT0}, 5, v{vT0}
        v_lshl_add_u32 v{vT0}, v{vT1}, 3, v{vT0}     ; c3*32 + rho*8
        v_and_b32 v{vT2}, 1, v{vL}
        v_lshlrev_b32 v{vT2}, 5, v{vT2}
        v_lshl_add_u32 v{vT2}, v{vT1}, 3, v{vT2}     ; b0*32 + rho*8
        s_mul_i32 s{sTmp}, s{sW}, 320
        v_add_u32 v{vT0}, s{sTmp}, v{vT0}
        v_add_u32 v{vT2}, s{sTmp}, v{vT2}
        ds_write_b64 v{vT0}, v[{accM}:{accM+1}] offset:{lbase}
        ds_write_b64 v{vT2}, v[{accE}:{accE+1}] offset:{lbase+256}
        """)
    red_tile(vAcc2, vPh, L_YP)
    a.label("L_mlp_done")
    stamp()
    a(f"""
    s_lshl_b32 s{sTmp}, s{sG}, 13
    s_lshl_b32 s{sTmp2}, s{sW}, 8
    s_add_u32 s{sTmp}, s{sTmp}, s{sTmp2}
    s_add_u32 s{sTmp}, s{sTmp}, {WS_O}
    s_add_u32 s{sTmp2}, s{sTmp}, 4096
    s_lshl_b32 s{sTmp3}, s{sG}, 7
    s_add_u32 s{sTmp3}, s{sTmp3}, {WS_ST}
    v_lshrrev_b32 v{vT0}, 4, v{vL}
    v_add_u32 v{vT0}, v{vT0}, v{vL}
    v_and_b32 v{vT0}, 7, v{vT0}
    v_lshlrev_b32 v{vM+5}, 4, v{vT0}              ; pi(l)*16
    """)
    a.label("L_pollo")
    a(f"""
    buffer_load_dwordx4 {q4(vG)}, v{vM}, {srd(S_WS)}, s{sTmp} offen sc1
    buffer_load_dwordx4 {q4(vG+4)}, v{vM}, {srd(S_WS)}, s{sTmp2} offen sc1
    buffer_load_dwordx4 {q4(vG+8)}, v{vM+5}, {srd(S_WS)}, s{sTmp3} offen sc1
    s_waitcnt vmcnt(0)
    v_xor_b32 v{vT0}, s{sT}, v{vG+1}
    v_xor_b32 v{vT1}, s{sT}, v{vG+3}
    v_xor_b32 v{vT2}, s{sT}, v{vG+5}
    v_xor_b32 v{vT3}, s{sT}, v{vG+7}
    v_or3_b32 v{vT0}, v{vT0}, v{vT1}, v{vT2}
    v_xor_b32 v{vT1}, s{sT}, v{vG+9}
    v_xor_b32 v{vT2}, s{sT}, v{vG+11}
    v_or3_b32 v{vT0}, v{vT0}, v{vT1}, v{vT2}
    v_or_b32 v{vT0}, v{vT0}, v{vT3}
    v_cmp_ne_u32 vcc, 0, v{vT0}
    s_add_u32 s{sSpin}, s{sSpin}, 1
    s_cmp_gt_u32 s{sSpin}, {spin_limit}
    s_cbranch_scc1 L_pollo_done
    s_cbranch_vccnz L_pollo
    """)
    a.label("L_pollo_done")
    a.vm = []
    stamp()
    a(f"v_mov_b32 v{vT0}, v{vG+8}")
    for n in (4, 2, 1):
        a("s_nop 1")
        a(f"v_max_f32_dpp v{vT0}, v{vT0}, v{vT0} row_ror:{n} row_mask:0xf bank_mask:0xf")
    a(f"""
    v_sub_f32 v{vT1}, v{vG+8}, v{vT0}
    v_mul_f32 v{vT1}, s{sLog2e}, v{vT1}
    v_exp_f32 v{vT1}, v{vT1}
    s_nop 0
    v_mul_f32 v{vT2}, v{vT1}, v{vG+10}
    """)
    for n in (4, 2, 1):
        a("s_nop 1")
        a(f"v_add_f32_dpp v{vT2}, v{vT2}, v{vT2} row_ror:{n} row_mask:0xf bank_mask:0xf")
    a(f"""
    v_rcp_f32 v{vT2}, v{vT2}
    s_nop 0
    v_mul_f32 v{vT1}, v{vT1}, v{vT2}
    s_nop 1
    v_mov_b32_dpp v{vT2}, v{vT1} row_newbcast:0 row_mask:0xf bank_mask:0xf
    v_mov_b32_dpp v{vT3}, v{vT1} row_newbcast:4 row_mask:0xf bank_mask:0xf
    v_mul_f32 v{vG}, v{vG}, v{vT2}
    v_mul_f32 v{vG+2}, v{vG+2}, v{vT2}
    v_fmac_f32 v{vG}, v{vG+4}, v{vT3}
    v_fmac_f32 v{vG+2}, v{vG+6}, v{vT3}
    s_nop 1
    """)
    red32(vG, vG+2)
    a(f"v_mov_b32 v{vT0}, v{vG}")
    a("s_nop 1")
    red16(vG, vT0)
    a(f"""
    v_cvt_pk_bf16_f32 v{vG}, v{vG}, v{vG}
    v_and_b32 v{vG}, 0xffff, v{vG}
    v_and_b32 v{vT0}, 15, v{vL}
    v_lshlrev_b32 v{vT0}, 3, v{vT0}
    v_lshrrev_b32 v{vT1}, 5, v{vL}
    v_lshl_add_u32 v{vT0}, v{vT1}, 2, v{vT0}      ; (2c + (l>>5))*4
    s_lshl_b32 s{sTmp}, s{sW}, 7
    v_add_u32 v{vT0}, s{sTmp}, v{vT0}
    ds_write_b32 v{vT0}, v{vG} offset:{L_OT}
    v_lshrrev_b32 v{vT0}, 3, v{vL}
    v_lshlrev_b32 v{vT0}, 2, v{vT0}
    v_add_u32 v{vT0}, s{sTmp}, v{vT0}
    v_lshrrev_b32 v{vT1}, 1, v{vL}
    v_lshlrev_b32 v{vT1}, 2, v{vT1}
    v_add_u32 v{vT1}, s{sTmp}, v{vT1}
    s_waitcnt lgkmcnt(0)
    """)
    for i in range(4):
        a(f"ds_read_b32 v{vXq+i}, v{vT0} offset:{L_OT+32*i}")
    a(f"ds_read_b32 v{vXq+4}, v{vT1} offset:{L_OT}")
    zero(vAcc); zero(vP)
    a("s_waitcnt lgkmcnt(0)")
    for i in range(5):
        a(f"v_lshlrev_b32 v{vXqh+i}, 16, v{vXq+i}")
    for i in range(4): mac8(vAcc, vWQ+4*i, vXq+i, vXqh+i)
    mac8(vP, vWQ+16, vXq+4, vXqh+4)
    red_tile(vAcc, vP, L_SP)
    a("s_waitcnt lgkmcnt(0)")
    a("s_barrier")
    a(f"""
    s_cmp_gt_u32 s{sW}, 1
    s_cbranch_scc1 L_pubs_done
    s_cmp_eq_u32 s{sW}, 0
    s_cbranch_scc1 L_pubs_s
    s_cmp_eq_u32 s{sC2}, 0
    s_cbranch_scc1 L_pubs_done
    s_mov_b32 s{sTmp2}, {L_YP}
    s_mov_b32 s{sTmp3}, {WS_Y}
    s_branch L_pubs_common
    """)
    a.label("L_pubs_s")
    a(f"s_mov_b32 s{sTmp2}, {L_SP}")
    a(f"s_mov_b32 s{sTmp3}, {WS_S}")
    a.label("L_pubs_common")
    a(f"""
    v_lshlrev_b32 v{vT0}, 3, v{vL}
    v_add_u32 v{vT0}, s{sTmp2}, v{vT0}
    s_mov_b32 s{sMask}, -1
    s_mov_b32 s{sMask+1}, 0xff
    s_mov_b64 exec, s[{sMask}:{sMask+1}]
    """)
    for k in range(4):
        a(f"ds_read_b64 v[{vG+2*k}:{vG+2*k+1}], v{vT0} offset:{320*k}")
    a(f"""
    v_lshrrev_b32 v{vT1}, 3, v{vL}
    v_lshlrev_b32 v{vT1}, 12, v{vT1}
    v_and_b32 v{vT2}, 7, v{vL}
    v_lshl_add_u32 v{vT1}, v{vT2}, 4, v{vT1}
    s_mul_i32 s{sTmp}, s{sJ}, {5*4096}
    s_lshl_b32 s{sTmp2}, s{sG}, 7
    s_add_u32 s{sTmp}, s{sTmp}, s{sTmp2}
    s_add_u32 s{sTmp}, s{sTmp}, s{sTmp3}
    s_waitcnt lgkmcnt(0)
    v_add_f32 v{vG}, v{vG}, v{vG+2}
    v_add_f32 v{vG+1}, v{vG+1}, v{vG+3}
    v_add_f32 v{vG+4}, v{vG+4}, v{vG+6}
    v_add_f32 v{vG+5}, v{vG+5}, v{vG+7}
    v_add_f32 v{vG+8}, v{vG}, v{vG+4}
    v_add_f32 v{vG+10}, v{vG+1}, v{vG+5}
    v_mov_b32 v{vG+9}, s{sT}
    v_mov_b32 v{vG+11}, s{sT}
    buffer_store_dwordx4 {q4(vG+8)}, v{vT1}, {srd(S_WS)}, s{sTmp} offen sc1
    s_mov_b64 exec, -1
    """)
    a.label("L_pubs_done")
    stamp()
    a(f"""
    s_cmp_lt_u32 s{sG}, 27
    s_cbranch_scc1 L_fin
    s_cmp_eq_u32 s{sW}, 2
    s_cbranch_scc0 L_fin
    s_sub_u32 s{sTmp}, s{sG}, 27
    s_lshl_b32 s{sTmp}, s{sTmp}, 3
    s_add_u32 s{sTmp}, s{sTmp}, s{sJ}             ; c = 0..39
    s_lshl_b32 s{sC1}, s{sTmp}, 5
    s_lshl_b32 s{sTmp}, s{sTmp}, 12
    s_add_u32 s{sTmp2}, s{sTmp}, {WS_Y}
    s_add_u32 s{sTmp}, s{sTmp}, {WS_S}
    v_lshlrev_b32 v{vT0}, 4, v{vL}                ; l*16 = p8*128 + c2*16
    v_and_b32 v{vT1}, 7, v{vL}
    v_lshlrev_b32 v{vT1}, 2, v{vT1}               ; c2*4
    buffer_load_dword v{vM+6}, v{vT1}, {srd(S_X)}, s{sC1} offen
    buffer_load_dword v{vM+7}, v{vT1}, {srd(S_B2)}, s{sC1} offen
    v_mov_b32 v{vF+28}, 0
    v_mov_b32 v{vF+29}, s{sT}
    v_mov_b32 v{vF+30}, 0
    v_mov_b32 v{vF+31}, s{sT}
    s_mov_b32 s{sMask}, 0xffffff
    s_mov_b32 s{sMask+1}, 0
    """)
    a.label("L_pollf")
    for i in range(4):
        a(f"buffer_load_dwordx4 {q4(vF+4*i)}, v{vT0}, {srd(S_WS)}, s{sTmp} offen offset:{1024*i} sc1")
    for i in range(3):
        a(f"buffer_load_dwordx4 {q4(vF+16+4*i)}, v{vT0}, {srd(S_WS)}, s{sTmp2} offen offset:{1024*i} sc1")
    a(f"s_mov_b64 exec, s[{sMask}:{sMask+1}]")
    a(f"buffer_load_dwordx4 {q4(vF+28)}, v{vT0}, {srd(S_WS)}, s{sTmp2} offen offset:3072 sc1")
    a("s_mov_b64 exec, -1")
    a("s_waitcnt vmcnt(0)")
    a(f"v_mov_b32 v{vT2}, 0")
    for i in range(8):
        a(f"v_xor_b32 v{vT3}, s{sT}, v{vF+4*i+1}")
        a(f"v_xor_b32 v{vT4}, s{sT}, v{vF+4*i+3}")
        a(f"v_or3_b32 v{vT2}, v{vT2}, v{vT3}, v{vT4}")
    a(f"""
    v_cmp_ne_u32 vcc, 0, v{vT2}
    s_add_u32 s{sSpin}, s{sSpin}, 1
    s_cmp_gt_u32 s{sSpin}, {spin_limit}
    s_cbranch_scc1 L_pollf_done
    s_cbranch_vccnz L_pollf
    """)
    a.label("L_pollf_done")
    for (dst, base) in ((vG, vF), (vG+2, vF+16)):
        a(f"v_add_f32 v{dst}, v{base}, v{base+4}")
        a(f"v_add_f32 v{dst+1}, v{base+2}, v{base+6}")
        a(f"v_add_f32 v{vT2}, v{base+8}, v{base+12}")
        a(f"v_add_f32 v{vT3}, v{base+10}, v{base+14}")
        a(f"v_add_f32 v{dst}, v{dst}, v{vT2}")
        a(f"v_add_f32 v{dst+1}, v{dst+1}, v{vT3}")
    a("s_nop 1")
    for r in range(vG, vG+4):
        a(f"v_add_f32_dpp v{r}, v{r}, v{r} row_ror:8 row_mask:0xf bank_mask:0xf")
    for r in range(vG, vG+4):
        a(f"v_mov_b32 v{vT2}, v{r}")
        a("s_nop 1")
        red16(r, vT2)
        a(f"v_mov_b32 v{vT2}, v{r}")
        a("s_nop 1")
        red32(r, vT2)
    a(f"""
    v_cvt_pk_bf16_f32 v{vT2}, v{vG}, v{vG+1}
    v_lshlrev_b32 v{vG}, 16, v{vT2}
    v_and_b32 v{vG+1}, 0xffff0000, v{vT2}
    v_cvt_pk_bf16_f32 v{vT2}, v{vG+2}, v{vG+3}
    v_lshlrev_b32 v{vG+2}, 16, v{vT2}
    v_and_b32 v{vG+3}, 0xffff0000, v{vT2}
    v_lshlrev_b32 v{vT2}, 16, v{vM+7}
    v_and_b32 v{vT3}, 0xffff0000, v{vM+7}
    v_add_f32 v{vG+2}, v{vG+2}, v{vT2}
    v_add_f32 v{vG+3}, v{vG+3}, v{vT3}
    v_cvt_pk_bf16_f32 v{vT2}, v{vG+2}, v{vG+3}
    v_lshlrev_b32 v{vG+2}, 16, v{vT2}
    v_and_b32 v{vG+3}, 0xffff0000, v{vT2}
    """)
    for r in (vG+2, vG+3):
        a(f"""
        v_mul_f32 v{vT2}, s{sLog2e}, v{r}
        v_sub_f32 v{vT2}, 0, v{vT2}
        v_exp_f32 v{vT2}, v{vT2}
        s_nop 0
        v_add_f32 v{vT2}, 1.0, v{vT2}
        v_rcp_f32 v{vT2}, v{vT2}
        s_nop 0
        v_mul_f32 v{r}, v{r}, v{vT2}
        """)
    a(f"""
    v_cvt_pk_bf16_f32 v{vT2}, v{vG+2}, v{vG+3}
    v_lshlrev_b32 v{vG+2}, 16, v{vT2}
    v_and_b32 v{vG+3}, 0xffff0000, v{vT2}
    v_mul_f32 v{vG}, v{vG}, v{vG+2}
    v_mul_f32 v{vG+1}, v{vG+1}, v{vG+3}
    v_cvt_pk_bf16_f32 v{vT2}, v{vG}, v{vG+1}
    v_lshlrev_b32 v{vG}, 16, v{vT2}
    v_and_b32 v{vG+1}, 0xffff0000, v{vT2}
    v_lshlrev_b32 v{vT2}, 16, v{vM+6}
    v_and_b32 v{vT3}, 0xffff0000, v{vM+6}
    v_add_f32 v{vG}, v{vG}, v{vT2}
    v_add_f32 v{vG+1}, v{vG+1}, v{vT3}
    v_cvt_pk_bf16_f32 v{vT2}, v{vG}, v{vG+1}
    s_mov_b64 exec, 0xff
    buffer_store_dword v{vT2}, v{vT1}, {srd(S_OUT)}, s{sC1} offen
    s_cmp_eq_u32 s{sC1}, 0
    s_cbranch_scc0 L_fin0
    v_mov_b32 v{vT2}, s{sT}
    v_mov_b32 v{vT3}, 0
    s_mov_b64 exec, 1
    buffer_store_dword v{vT2}, v{vT3}, {srd(S_WS)}, 0 offen sc1
    """)
    a.label("L_fin0")
    a("s_mov_b64 exec, -1")
    a.label("L_fin")
    if stamps and echo is not None:
        stamp()
        a(f"""
        s_waitcnt lgkmcnt(0)
        s_cmp_eq_u32 s2, 27
        s_cbranch_scc0 L_end
        s_cmp_eq_u32 s{sW}, 2
        s_cbranch_scc0 L_end
        s_sub_u32 s{sTmp}, s{SP[echo]}, s{SP[0]}
        s_add_u32 s{sTmp}, s{sTmp}, s{SP[10]}
        L_echo:
        s_memrealtime s[16:17]
        s_waitcnt lgkmcnt(0)
        s_sub_u32 s18, s16, s{sTmp}
        s_cmp_lt_i32 s18, 0
        s_cbranch_scc1 L_echo
        """)
    elif stamps and dbg:
        stamp()
        a("s_load_dwordx2 s[44:45], s[0:1], 88")
        a("s_waitcnt lgkmcnt(0)")
        a("s_mov_b32 s46, 256")
        a("s_mov_b32 s47, 0x20000")
        for k in range(11):
            a(f"v_writelane_b32 v{vG}, s{SP[k]}, {k}")
        a(f"s_not_b32 s{sTmp}, s{SP[0]}")
        a(f"v_writelane_b32 v{vG}, s{sTmp}, 11")
        a(f"v_writelane_b32 v{vG}, s{sSpin}, 12")
        a(f"v_lshlrev_b32 v{vT0}, 2, v{vL}")
        a("s_mov_b64 exec, 0x1fff")
        a(f"buffer_atomic_umax v{vG}, v{vT0}, s[44:47], 0 offen")
    elif stamps:
        stamp()
        a("s_waitcnt lgkmcnt(0)")
        a(f"""
        s_lshl_b32 s{sTmp}, s2, 2
        s_add_u32 s{sTmp}, s{sTmp}, s{sW}
        s_lshl_b32 s{sTmp}, s{sTmp}, 7
        s_add_u32 s{sTmp}, s{sTmp}, {WS_TS}
        v_mov_b32 v{vT0}, 0
        """)
        for k in range(11):
            a(f"v_mov_b32 v{vG+k}, s{SP[k]}")
        a(f"v_mov_b32 v{vG+11}, s{sSpin}")
        a("s_mov_b64 exec, 1")
        a(f"buffer_store_dwordx4 {q4(vG)}, v{vT0}, {srd(S_WS)}, s{sTmp} offen")
        a(f"buffer_store_dwordx4 {q4(vG+4)}, v{vT0}, {srd(S_WS)}, s{sTmp} offen offset:16")
        a(f"buffer_store_dwordx4 {q4(vG+8)}, v{vT0}, {srd(S_WS)}, s{sTmp} offen offset:32")
    a.label("L_end")
    a("s_endpgm")
    body = a.text()
    src = HDR_COMMENT + f"""; Override launch geometry by editing the next line (default: block=256,
; grid=ceil(out_elems/256), lds=0). Harness parses it; keep it on one line.
; @launch grid=(256,1,1) block=(256,1,1) lds={LDS}
.amdgcn_target "amdgcn-amd-amdhsa--gfx950"
.text
.globl {KN}
.p2align 8
.type {KN},@function
{KN}:
{body}
.section .rodata,"a"
.p2align 6
.amdhsa_kernel {KN}
  .amdhsa_next_free_vgpr {NV}
  .amdhsa_next_free_sgpr 102
  .amdhsa_accum_offset {NV}
  .amdhsa_group_segment_fixed_size 0
  .amdhsa_kernarg_size 104
  .amdhsa_user_sgpr_count 2
  .amdhsa_user_sgpr_kernarg_segment_ptr 1
  .amdhsa_system_sgpr_workgroup_id_x 1
.end_amdhsa_kernel
"""
    return src

if __name__ == "__main__":
    import argparse
    p = argparse.ArgumentParser()
    p.add_argument("-o", default="k1.s")
    p.add_argument("--stamps", action="store_true")
    p.add_argument("--no-nt", action="store_true")
    p.add_argument("--kpre", type=int, default=8)
    p.add_argument("--dbg", action="store_true")
    p.add_argument("--touch", action="store_true")
    p.add_argument("--echo", type=int, default=None)
    args = p.parse_args()
    open(args.o, "w").write(gen(nt=not args.no_nt, stamps=args.stamps, kpre=args.kpre, dbg=args.dbg, touch=args.touch, echo=args.echo))
```

```python
import sys
KN = "recurrent_scan__sliding_block_cached__dense_activation_gelu__decode_kernel"
HDR_COMMENT = open("recurrent_scan__sliding_block_cached__dense_activation_gelu__decode.s.ref").read().split("; Override launch")[0]

class A:
    def __init__(self):
        self.l = []; self.vm = []
    def __call__(self, s):
        for line in s.strip("\n").split("\n"):
            line = line.strip()
            if line: self.l.append("  " + line)
    def label(self, n): self.l.append(n + ":")
    def vmem(self, s, tag):
        self(s); self.vm.append(tag)
    def wait_vm(self, *tags):
        idxs = [i for i, t in enumerate(self.vm) if t in tags]
        if not idxs: return
        idx = max(idxs)
        n = len(self.vm) - 1 - idx
        self(f"s_waitcnt vmcnt({min(n,63)})")
        self.vm = self.vm[idx + 1:]

WS_EPOCH = 0
WS_Q  = 0x1000
WS_H  = WS_Q + 32*8*1024
WS_O  = WS_H + 32*8*512
WS_ST = WS_O + 32*8*1024
WS_S  = WS_ST + 32*128
WS_Y  = WS_S + 40*32*128
WS_TS = WS_Y + 40*32*128
WS_END = WS_TS + 256*8*128
TAGC = 0x9E3779B9
OOB = 0x7f000000
NW = 8
DEF_STAMPS = "start,pq1,b0,pollq,smax,pubo,pollo,pubs,end"

def gen(nt=True, stamps=False, echo=None, opts=None):
    opts = opts or {}
    a = A()
    NT = " nt" if nt else ""
    S_X, S_K, S_V, S_WQ, S_WO, S_W1, S_B1, S_W2, S_B2, S_OUT, S_WS = [44 + 4*i for i in range(11)]
    srd = lambda b: f"s[{b}:{b+3}]"
    sG, sJ, sW, sT = 3, 4, 5, 6
    t0, t1, t2, t3 = 7, 8, 9, 10
    sSpin = 11
    sM = 12
    sA0, sA1 = 16, 17
    sK = 21; sWO = [22,23]; sW2 = 24
    sXo = 25
    sQg = 26; sHg = 27; sOg = 28; sSt = 29
    sPub = 30; sOp = 32; sStp = 33
    sSp = 34; sMlp = 35
    sScale, sLog2e = 36, 37
    sC = 38; sOobM = 39
    SP = [88,90,92,94,96,98,100,40,42]
    sel = opts.get("stamps", DEF_STAMPS).split(",")
    def stamp(name):
        if stamps and name in sel:
            r = SP[sel.index(name)]; a(f"s_memrealtime s[{r}:{r+1}]")
    vL = 1
    (aKV, aT, aWOm, aWOe, aW2e, aXa, aX4, aG, aGh, aSt1, aSt2,
     aLq, aL8, aLqw, aLqr, aLSm, aLSe, aS, aBm, aBe, aZero, aPub) = range(2, 24)
    T0, T1, T2, T3, T4 = 26, 27, 28, 29, 30
    vE = 31; vX4 = 32; vX16 = 36
    vXa = 40; vXb = 41; vXah = 42; vXbh = 43
    vXq = 44; vXqh = 47; vX1 = 50; vX1h = 52
    vMj = 54; vLs = 55; vB1 = 56; vXf = 57; vB2 = 58; vPl = 59; vPh = 60; vHs = 61
    vQ = 64; vAcc = 68; vAcc2 = 76; vAcc3 = 84; vG = 92
    vS0 = 108
    xs = list(range(108, 118))
    vTile = 124
    vK = 124; vV = 140; vW2 = 156; vWO = 164; vG2 = 176; vGh = 180
    NV = 204
    q4 = lambda b: f"v[{b}:{b+3}]"
    q2 = lambda b: f"v[{b}:{b+1}]"
    L_OP = 0; L_Q = 4096; L_MX = 4352; L_LS = 4384; L_SP = 4608; L_YP = 7168; LDS = 9728
    DPP = "row_mask:0xf bank_mask:0xf"

    def ld_k(i): a.vmem(f"buffer_load_dwordx4 {q4(vK+4*i)}, v{aKV}, {srd(S_K)}, s{sK} offen offset:{1024*i}{NT}", f"k{i}")
    def ld_v(i): a.vmem(f"buffer_load_dwordx4 {q4(vV+4*i)}, v{aKV}, {srd(S_V)}, s{sK} offen offset:{1024*i}{NT}", f"v{i}")
    def ld_w2(i):
        if i == 0: a.vmem(f"buffer_load_dwordx4 {q4(vW2)}, v{aWOm}, {srd(S_W2)}, s{sW2} offen{NT}", "w20")
        else: a.vmem(f"buffer_load_dwordx4 {q4(vW2+4)}, v{aW2e}, {srd(S_W2)}, s{sW2} offen{NT}", "w21")
    def ld_wo(i):
        if i < 2: a.vmem(f"buffer_load_dwordx4 {q4(vWO+4*i)}, v{aWOm}, {srd(S_WO)}, s{sWO[i]} offen{NT}", f"wo{i}")
        else: a.vmem(f"buffer_load_dwordx4 {q4(vWO+8)}, v{aWOe}, {srd(S_WO)}, s{sWO[0]} offen{NT}", "wo2")
    def pollq_loads(base, tag):
        f = a.vmem if tag else (lambda s, t: a(s))
        f(f"buffer_load_dwordx4 {q4(base)}, v{aG}, {srd(S_WS)}, s{sQg} offen sc1", tag)
    def pollh_loads(tag):
        f = a.vmem if tag else (lambda s, t: a(s))
        f(f"buffer_load_dwordx4 {q4(vGh)}, v{aGh}, {srd(S_WS)}, s{sHg} offen sc1", tag)
    def ld_b1():
        a(f"s_lshl_b32 s{t0}, s{sG}, 7"); a(f"s_lshl_b32 s{t1}, s{sW}, 4"); a(f"s_add_u32 s{t0}, s{t0}, s{t1}")
        a.vmem(f"buffer_load_ushort v{vB1}, v{vHs}, {srd(S_B1)}, s{t0} offen", "b1")
    LD = {**{f"k{i}": (lambda i=i: ld_k(i)) for i in range(4)}, **{f"v{i}": (lambda i=i: ld_v(i)) for i in range(4)},
          "w20": lambda: ld_w2(0), "w21": lambda: ld_w2(1), "wo0": lambda: ld_wo(0), "wo1": lambda: ld_wo(1), "wo2": lambda: ld_wo(2),
          "p1": lambda: pollq_loads(vG, "p1"), "p2": lambda: pollq_loads(vG2, "p2"), "ph": lambda: pollh_loads("ph"), "b1": ld_b1}
    sched = {
        "pre": "k0 k1 k2 k3 v0 v1 v2 v3",
        "b0": "p1",
        "b0b": "w20 w21 b1 p2 wo0 wo1 wo2",
        "qok": "", "smax": "", "pubo": "ph",
    }
    for k in list(sched):
        if k in opts: sched[k] = opts[k].replace("+", " ")
    def issue(point):
        for x in sched[point].split(): LD[x]()

    a("s_cmp_ge_u32 s2, 256")
    a("s_cbranch_scc1 L_end")
    stamp("start")
    order = [(S_X,0),(S_WQ,3),(S_W1,6),(S_WS,12),(S_K,1),(S_V,2),(S_WO,4),(S_B1,7),(S_W2,8),(S_B2,9),(S_OUT,10)]
    for b, i in order:
        a(f"s_load_dwordx2 s[{b}:{b+1}], s[0:1], {8*i}")
    a(f"""
    v_lshrrev_b32 v{T0}, 6, v0
    v_and_b32 v{vL}, 63, v0
    s_and_b32 s{sG}, s2, 31
    s_lshr_b32 s{sJ}, s2, 5
    v_readfirstlane_b32 s{sW}, v{T0}
    v_lshlrev_b32 v{aKV}, 4, v{vL}
    v_lshrrev_b32 v{T0}, 4, v{vL}                ; k4 / rho
    v_and_b32 v{T1}, 15, v{vL}                   ; c8
    v_lshrrev_b32 v{T2}, 3, v{vL}                ; r8 / p8
    v_and_b32 v{T3}, 7, v{vL}                    ; c3
    v_lshlrev_b32 v{aX4}, 2, v{vL}
    v_mov_b32 v{aZero}, 0
    v_lshl_add_u32 v{aXa}, v{T1}, 2, v{T0}       ; 4c + k4
    v_lshlrev_b32 v{aXa}, 1, v{aXa}              ; (4c + k4)*2
    """)
    sizes = {S_X:1280, S_WQ:5242880, S_WS:WS_END, S_K:33554432, S_V:33554432, S_WO:5242880, S_W1:2211840, S_B1:3456, S_W2:2211840, S_B2:1280, S_OUT:1280}
    for b, sz in sizes.items():
        a(f"s_mov_b32 s{b+2}, {sz}")
        a(f"s_mov_b32 s{b+3}, 0x20000")
    a(f"""
    s_mul_i32 s{t0}, s{sJ}, 80
    s_lshl_b32 s{sXo}, s{t0}, 1
    s_cmp_lt_u32 s{sG}, 27
    s_cselect_b32 s{sMlp}, 1, 0
    s_cselect_b32 s{sOobM}, 0, {OOB}
    s_lshl_b32 s{sK}, s{sG}, 20
    s_lshl_b32 s{t2}, s{sJ}, 15
    s_add_u32 s{sK}, s{sK}, s{t2}
    s_lshl_b32 s{t2}, s{sW}, 12
    s_add_u32 s{sK}, s{sK}, s{t2}
    s_add_u32 s{sK}, s{sK}, {3072*256}
    s_mov_b32 s{sSpin}, 0
    s_cmp_gt_u32 s{sW}, 1
    s_cbranch_scc1 L_nofront
    """)
    a(f"""
    s_setprio 3
    s_cmp_eq_u32 s{sW}, 0
    s_cbranch_scc0 L_role_h0
    v_lshlrev_b32 v{aT}, 13, v{T0}
    v_lshl_add_u32 v{aT}, v{T1}, 4, v{aT}         ; k4*8192 + c8*16
    s_lshl_b32 s{sA0}, s{t0}, 13
    s_lshl_b32 s{t2}, s{sG}, 8
    s_add_u32 s{sA0}, s{sA0}, s{t2}
    v_lshlrev_b32 v{aPub}, 6, v{T1}
    v_lshl_add_u32 v{aPub}, v{T0}, 4, v{aPub}     ; c8*64 + rho*16
    s_lshl_b32 s{sPub}, s{sG}, 13
    s_lshl_b32 s{t2}, s{sJ}, 10
    s_add_u32 s{sPub}, s{sPub}, s{t2}
    s_add_u32 s{sPub}, s{sPub}, {WS_Q}
    s_waitcnt lgkmcnt(0)
    """)
    def xloads():
        a.vmem(f"buffer_load_dwordx4 {q4(vX16)}, v{aKV}, {srd(S_X)}, 0 offen", "x")
        a.vmem(f"buffer_load_dword v{vX4}, v{aX4}, {srd(S_X)}, 0 offen offset:1024", "x")
        a.vmem(f"buffer_load_ushort v{vXa}, v{aXa}, {srd(S_X)}, s{sXo} offen", "x")
        a.vmem(f"buffer_load_ushort v{vXb}, v{aXa}, {srd(S_X)}, s{sXo} offen offset:128", "x")
    xloads()
    for i in range(20):
        a.vmem(f"buffer_load_dwordx4 {q4(vTile+4*i)}, v{aT}, {srd(S_WQ)}, s{sA0} offen{NT}", f"t{i}")
        if i < 19: a(f"s_add_u32 s{sA0}, s{sA0}, 32768")
    a.vmem(f"buffer_load_dword v{vE}, v{aZero}, {srd(S_WS)}, 0 offen sc1", "E")
    a("s_branch L_ln")
    vm_front = list(a.vm)
    a.label("L_role_h0")
    a.vm = []
    a(f"""
    v_mul_u32_u24 v{aT}, 3456, v{T0}
    v_lshl_add_u32 v{aT}, v{T1}, 3, v{aT}         ; k4*3456 + c8*8
    s_mul_i32 s{sA0}, s{t0}, 3456
    s_lshl_b32 s{t2}, s{sG}, 7
    s_add_u32 s{sA0}, s{sA0}, s{t2}
    s_add_u32 s{sA0}, s{sA0}, s{sOobM}
    v_lshl_add_u32 v{aPub}, v{T1}, 2, v{T0}
    v_lshlrev_b32 v{aPub}, 3, v{aPub}             ; col*8
    s_lshl_b32 s{sPub}, s{sG}, 12
    s_lshl_b32 s{t2}, s{sJ}, 9
    s_add_u32 s{sPub}, s{sPub}, s{t2}
    s_add_u32 s{sPub}, s{sPub}, {WS_H}
    s_waitcnt lgkmcnt(0)
    """)
    xloads()
    for i in range(20):
        a.vmem(f"buffer_load_dwordx2 {q2(vTile+2*i)}, v{aT}, {srd(S_W1)}, s{sA0} offen{NT}", f"t{i}")
        if i < 19: a(f"s_add_u32 s{sA0}, s{sA0}, {4*3456}")
    a.vmem(f"buffer_load_dword v{vE}, v{aZero}, {srd(S_WS)}, 0 offen sc1", "E")
    assert a.vm == vm_front
    a.label("L_ln")
    a("s_barrier")
    def zero(base, n=8):
        for k in range(n): a(f"v_mov_b32 v{base+k}, 0")
    zero(vAcc)
    a(f"v_mov_b32 v{T4}, 0x3f803f80")
    a(f"v_mov_b32 v{T0}, 0")
    a.wait_vm("x")
    stamp("x")
    xr = [vX16, vX16+1, vX16+2, vX16+3, vX4]
    for r in xr: a(f"v_dot2c_f32_bf16 v{T0}, v{r}, v{T4}")
    for k, r in enumerate(xr):
        a(f"v_lshlrev_b32 v{xs[2*k]}, 16, v{r}")
        a(f"v_and_b32 v{xs[2*k+1]}, 0xffff0000, v{r}")
    def wave_red(op, v, t, rors=(8,4,2,1), s16=True, s32=True, first_nop=True):
        for n_i, n in enumerate(rors):
            if n_i > 0 or first_nop: a("s_nop 1")
            a(f"v_{op}_f32_dpp v{v}, v{v}, v{v} row_ror:{n} {DPP}")
        if s16:
            a(f"v_mov_b32 v{t}, v{v}"); a("s_nop 1")
            a(f"v_permlane16_swap_b32 v{v}, v{t}"); a(f"v_{op}_f32 v{v}, v{v}, v{t}")
        if s32:
            a(f"v_mov_b32 v{t}, v{v}"); a("s_nop 1")
            a(f"v_permlane32_swap_b32 v{v}, v{t}"); a(f"v_{op}_f32 v{v}, v{v}, v{t}")
    wave_red("add", T0, T1, first_nop=False)
    a(f"v_mul_f32 v{T0}, 0x3acccccd, v{T0}")
    for k in range(10): a(f"v_sub_f32 v{xs[k]}, v{xs[k]}, v{T0}")
    a(f"v_mul_f32 v{T2}, v{xs[0]}, v{xs[0]}"); a(f"v_mul_f32 v{T3}, v{xs[1]}, v{xs[1]}")
    for k in range(2, 10, 2):
        a(f"v_fmac_f32 v{T2}, v{xs[k]}, v{xs[k]}"); a(f"v_fmac_f32 v{T3}, v{xs[k+1]}, v{xs[k+1]}")
    a(f"v_add_f32 v{T2}, v{T2}, v{T3}")
    def rnd(v):
        a(f"v_cvt_pk_bf16_f32 v{v}, v{v}, v{v}"); a(f"v_and_b32 v{v}, 0xffff0000, v{v}")
    rnd(T0)
    a(f"v_add_f32_dpp v{T2}, v{T2}, v{T2} row_ror:8 {DPP}")
    a(f"v_lshlrev_b32 v{vXa}, 16, v{vXa}"); a(f"v_lshlrev_b32 v{vXb}, 16, v{vXb}")
    a(f"v_add_f32_dpp v{T2}, v{T2}, v{T2} row_ror:4 {DPP}")
    a(f"v_sub_f32 v{vXa}, v{vXa}, v{T0}"); a(f"v_sub_f32 v{vXb}, v{vXb}, v{T0}")
    a(f"v_add_f32_dpp v{T2}, v{T2}, v{T2} row_ror:2 {DPP}")
    a(f"v_cvt_pk_bf16_f32 v{vXa}, v{vXa}, v{vXa}"); a(f"v_cvt_pk_bf16_f32 v{vXb}, v{vXb}, v{vXb}")
    a(f"v_add_f32_dpp v{T2}, v{T2}, v{T2} row_ror:1 {DPP}")
    a(f"v_and_b32 v{vXa}, 0xffff0000, v{vXa}")
    a(f"v_mov_b32 v{T1}, v{T2}")
    a(f"v_and_b32 v{vXb}, 0xffff0000, v{vXb}")
    a("s_nop 0")
    a(f"v_permlane16_swap_b32 v{T2}, v{T1}"); a(f"v_add_f32 v{T2}, v{T2}, v{T1}")
    a(f"v_mov_b32 v{T1}, v{T2}"); a("s_nop 1")
    a(f"v_permlane32_swap_b32 v{T2}, v{T1}"); a(f"v_add_f32 v{T2}, v{T2}, v{T1}")
    a(f"v_mul_f32 v{T2}, 0x3acccccd, v{T2}")
    rnd(T2)
    a(f"v_add_f32 v{T2}, 0x3727c5ac, v{T2}")
    rnd(T2)
    a(f"v_sqrt_f32 v{T2}, v{T2}"); a("s_nop 0")
    rnd(T2)
    a(f"v_rcp_f32 v{T2}, v{T2}"); a("s_nop 0")
    for r in (vXa, vXb): a(f"v_mul_f32 v{r}, v{r}, v{T2}")
    for r in (vXa, vXb): a(f"v_cvt_pk_bf16_f32 v{r}, v{r}, v{r}")
    a(f"v_and_b32 v{vXah}, 0xffff0000, v{vXa}"); a(f"v_and_b32 v{vXbh}, 0xffff0000, v{vXb}")
    a(f"v_and_b32 v{vXa}, 0xffff, v{vXa}"); a(f"v_and_b32 v{vXb}, 0xffff, v{vXb}")
    stamp("ln")
    def red32(x, y):
        a(f"v_permlane32_swap_b32 v{x}, v{y}"); a(f"v_add_f32 v{x}, v{x}, v{y}")
    def red16(x, y):
        a(f"v_permlane16_swap_b32 v{x}, v{y}"); a(f"v_add_f32 v{x}, v{x}, v{y}")
    def red8regs(*accs):
        a("s_nop 2")
        for acc in accs:
            red32(acc+0, acc+4); red32(acc+2, acc+6); red32(acc+1, acc+5); red32(acc+3, acc+7)
        a("s_nop 0")
        for acc in accs:
            red16(acc+0, acc+2); red16(acc+1, acc+3)
    vm_ln = list(a.vm)
    a(f"s_cmp_eq_u32 s{sW}, 0")
    a("s_cbranch_scc0 L_role_h1")
    for i in range(20):
        a.wait_vm(f"t{i}")
        if i == 19: stamp("tl")
        if i == 0: stamp("t0")
        lo, hi = (vXa, vXah) if i < 16 else (vXb, vXbh)
        for k in range(4):
            a(f"v_dot2c_f32_bf16_dpp v{vAcc+2*k}, v{lo}, v{vTile+4*i+k} row_newbcast:{i%16} {DPP}")
            a(f"v_dot2c_f32_bf16_dpp v{vAcc+2*k+1}, v{hi}, v{vTile+4*i+k} row_newbcast:{i%16} {DPP}")
    red8regs(vAcc)
    a.wait_vm("E")
    a(f"""
    v_readfirstlane_b32 s{sT}, v{vE}
    v_mov_b32 v{T0}, v{vAcc}
    v_mov_b32 v{T2}, v{vAcc+1}
    s_add_u32 s{sT}, s{sT}, {TAGC}
    v_mov_b32 v{T1}, s{sT}
    v_mov_b32 v{T3}, s{sT}
    buffer_store_dwordx4 v[{T0}:{T3}], v{aPub}, {srd(S_WS)}, s{sPub} offen sc1
    s_branch L_front_done
    """)
    a.label("L_role_h1")
    a.vm = list(vm_ln)
    for i in range(20):
        a.wait_vm(f"t{i}")
        lo, hi = (vXa, vXah) if i < 16 else (vXb, vXbh)
        for k in range(2):
            a(f"v_dot2c_f32_bf16_dpp v{vAcc+2*k}, v{lo}, v{vTile+2*i+k} row_newbcast:{i%16} {DPP}")
            a(f"v_dot2c_f32_bf16_dpp v{vAcc+2*k+1}, v{hi}, v{vTile+2*i+k} row_newbcast:{i%16} {DPP}")
    a("s_nop 2")
    red32(vAcc+0, vAcc+2); red32(vAcc+1, vAcc+3)
    a("s_nop 1")
    red16(vAcc+0, vAcc+1)
    a.wait_vm("E")
    a(f"""
    v_readfirstlane_b32 s{sT}, v{vE}
    v_mov_b32 v{T0}, v{vAcc}
    s_nop 0
    s_add_u32 s{sT}, s{sT}, {TAGC}
    v_mov_b32 v{T1}, s{sT}
    s_cmp_eq_u32 s{sMlp}, 0
    s_cbranch_scc1 L_front_done
    buffer_store_dwordx2 v[{T0}:{T1}], v{aPub}, {srd(S_WS)}, s{sPub} offen sc1
    """)
    a.label("L_front_done")
    a("s_setprio 0")
    stamp("pq1")
    a("s_branch L_common")
    a.label("L_nofront")
    a("s_waitcnt lgkmcnt(0)")
    a("s_barrier")
    a(f"buffer_load_dword v{vE}, v{aZero}, {srd(S_WS)}, 0 offen sc1")
    a.label("L_common")
    a.vm = ["E"]
    issue("pre")
    a(f"""
    v_lshrrev_b32 v{T0}, 4, v{vL}
    v_and_b32 v{T1}, 15, v{vL}
    v_lshrrev_b32 v{T2}, 3, v{vL}
    v_and_b32 v{T3}, 7, v{vL}
    v_mul_u32_u24 v{aWOm}, 1280, v{T2}
    v_lshl_add_u32 v{aWOm}, v{T3}, 4, v{aWOm}
    v_lshrrev_b32 v{T4}, 1, v{vL}
    v_mul_u32_u24 v{aWOe}, 1280, v{T4}
    v_and_b32 v{aW2e}, 1, v{vL}
    v_lshl_add_u32 v{aWOe}, v{aW2e}, 4, v{aWOe}
    v_add_u32 v{aWOe}, 128, v{aWOe}
    v_mov_b32 v{aG}, {OOB}
    v_cmp_gt_u32 vcc, 16, v{vL}
    v_cmp_gt_u32 s[{sM}:{sM+1}], 32, v{vL}
    v_lshlrev_b32 v{aSt1}, 4, v{T3}
    v_cndmask_b32 v{aW2e}, v{aG}, v{aWOe}, vcc
    v_cndmask_b32 v{aWOe}, v{aG}, v{aWOe}, s[{sM}:{sM+1}]
    v_lshlrev_b32 v{aG}, 10, v{T2}
    v_lshl_add_u32 v{aG}, v{T3}, 4, v{aG}
    v_and_b32 v{aGh}, 31, v{vL}
    v_lshrrev_b32 v{aGh}, 2, v{aGh}
    v_lshlrev_b32 v{aGh}, 9, v{aGh}
    v_and_b32 v{aSt2}, 3, v{vL}
    v_lshl_add_u32 v{aGh}, v{aSt2}, 4, v{aGh}
    v_lshlrev_b32 v{aSt2}, 4, v{T2}
    s_lshl_b32 s{t0}, s{sG}, 7
    s_lshl_b32 s{t1}, s{sW}, 4
    s_add_u32 s{t0}, s{t0}, s{t1}
    s_mul_i32 s{sWO[0]}, s{t0}, 1280
    s_mul_i32 s{t2}, s{sJ}, 160
    s_add_u32 s{sWO[0]}, s{sWO[0]}, s{t2}
    s_add_u32 s{sWO[1]}, s{sWO[0]}, 10240
    s_lshl_b32 s{t0}, s{sG}, 6
    s_lshl_b32 s{t1}, s{sW}, 3
    s_add_u32 s{t0}, s{t0}, s{t1}
    s_mul_i32 s{sW2}, s{t0}, 1280
    s_add_u32 s{sW2}, s{sW2}, s{t2}
    s_add_u32 s{sW2}, s{sW2}, s{sOobM}
    s_lshl_b32 s{t0}, s{sG}, 13
    s_lshl_b32 s{t1}, s{sW}, 7
    s_add_u32 s{t1}, s{t1}, s{t0}
    s_add_u32 s{sQg}, s{t1}, {WS_Q}
    s_add_u32 s{sOg}, s{t1}, {WS_O}
    s_add_u32 s{t3}, s{t0}, {WS_Q}
    s_lshl_b32 s{t1}, s{sJ}, 10
    s_add_u32 s{t1}, s{t1}, s{t0}
    s_add_u32 s{sOp}, s{t1}, {WS_O}
    s_lshl_b32 s{t0}, s{sG}, 12
    s_lshl_b32 s{t1}, s{sW}, 6
    s_add_u32 s{t1}, s{t1}, s{t0}
    s_add_u32 s{sHg}, s{t1}, {WS_H}
    s_cmp_eq_u32 s{sMlp}, 0
    s_cselect_b32 s{sHg}, s{t3}, s{sHg}
    v_and_b32 v{vHs}, 3, v{vL}
    v_lshlrev_b32 v{vHs}, 1, v{vHs}
    v_lshrrev_b32 v{T4}, 5, v{vL}
    v_add_lshl_u32 v{vHs}, v{vHs}, v{T4}, 1
    """)
    a("s_barrier")
    stamp("b0")
    issue("b0")
    if sched["b0b"].strip():
        a("s_barrier")
        issue("b0b")
    a(f"""
    v_lshlrev_b32 v{aLq}, 5, v{T1}
    v_lshl_add_u32 v{aLq}, v{T0}, 3, v{aLq}
    s_lshl_b32 s{t0}, s{sW}, 9
    v_add_u32 v{aLq}, s{t0}, v{aLq}
    v_lshlrev_b32 v{aLSm}, 5, v{T3}
    v_lshl_add_u32 v{aLSm}, v{T0}, 3, v{aLSm}
    s_mul_i32 s{t0}, s{sW}, 320
    v_add_u32 v{aLSm}, s{t0}, v{aLSm}
    v_lshlrev_b32 v{aL8}, 3, v{vL}
    v_lshrrev_b32 v{aLqw}, 5, v{vL}
    v_lshl_add_u32 v{aLqw}, v{T3}, 1, v{aLqw}
    v_lshlrev_b32 v{aLqw}, 1, v{aLqw}
    s_lshl_b32 s{t1}, s{sW}, 5
    v_add_u32 v{aLqw}, s{t1}, v{aLqw}
    v_lshlrev_b32 v{aLqr}, 4, v{T1}
    v_and_b32 v{aLSe}, 1, v{vL}
    v_lshlrev_b32 v{aLSe}, 5, v{aLSe}
    v_lshl_add_u32 v{aLSe}, v{T0}, 3, v{aLSe}
    v_add_u32 v{aLSe}, s{t0}, v{aLSe}
    v_add_u32 v{aLSe}, 256, v{aLSe}
    v_lshlrev_b32 v{aS}, 12, v{T2}
    v_lshl_add_u32 v{aS}, v{T3}, 4, v{aS}
    v_and_b32 v{aBm}, 1, v{T2}
    v_lshlrev_b32 v{aBm}, 5, v{aBm}
    v_lshrrev_b32 v{aBe}, 1, v{T2}
    v_add_lshl_u32 v{aBm}, v{aBm}, v{aBe}, 2
    v_lshrrev_b32 v{T4}, 1, v{vL}
    v_and_b32 v{T4}, 15, v{T4}
    v_and_b32 v{aBe}, 1, v{T4}
    v_lshlrev_b32 v{aBe}, 5, v{aBe}
    v_lshrrev_b32 v{T4}, 1, v{T4}
    v_add_lshl_u32 v{aBe}, v{aBe}, v{T4}, 2
    s_lshl_b32 s{t0}, s{sG}, 7
    s_add_u32 s{sSt}, s{t0}, {WS_ST}
    s_lshl_b32 s{t1}, s{sJ}, 4
    s_add_u32 s{sStp}, s{sSt}, s{t1}
    s_mul_i32 s{t1}, s{sJ}, {5*4096}
    s_add_u32 s{sSp}, s{t1}, s{t0}
    s_mov_b32 s{sScale}, 0x3db504f3
    s_mov_b32 s{sLog2e}, 0x3fb8aa3b
    """)
    for i in range(4): a(f"v_mov_b32 v{vAcc3+i}, 0")
    zero(vAcc)
    a.wait_vm("E")
    a(f"v_readfirstlane_b32 s{sT}, v{vE}")
    a("s_nop 0")
    a(f"s_add_u32 s{sT}, s{sT}, {TAGC}")
    def check(tags):
        a(f"v_cmp_ne_u32 vcc, s{sT}, v{tags[0]}")
        for tg in tags[1:]:
            a(f"v_cmp_ne_u32 s[{sM}:{sM+1}], s{sT}, v{tg}")
            a(f"s_or_b64 vcc, vcc, s[{sM}:{sM+1}]")
    saved = list(a.vm)
    a.wait_vm("p1")
    stamp("p1ret")
    check([vG+1, vG+3])
    a("s_cbranch_vccz L_qok")
    a(f"s_add_u32 s{sSpin}, s{sSpin}, 1")
    fast_vm = list(a.vm)
    if "p2" in saved:
        a.vm = list(saved)
        a.wait_vm("p2")
        for k in range(4): a(f"v_mov_b32 v{vG+k}, v{vG2+k}")
        check([vG+1, vG+3])
        a("s_cbranch_vccz L_qok")
    a.label("L_qretry")
    a(f"s_add_u32 s{sSpin}, s{sSpin}, 256")
    a(f"s_cmp_gt_u32 s{sSpin}, {1<<22}")
    a("s_cbranch_scc1 L_qok")
    pollq_loads(vG, None)
    a("s_waitcnt vmcnt(0)")
    check([vG+1, vG+3])
    a("s_cbranch_vccnz L_qretry")
    a.vm = fast_vm
    a.label("L_qok")
    stamp("pollq")
    issue("qok")
    red32(vG, vG+2)
    a(f"v_mov_b32 v{T0}, v{vG}"); a("s_nop 1")
    red16(vG, T0)
    a("s_nop 1")
    a(f"v_add_f32_dpp v{vG}, v{vG}, v{vG} row_ror:8 {DPP}")
    a(f"v_cvt_pk_bf16_f32 v{vG}, v{vG}, v{vG}")
    a(f"ds_write_b16 v{aLqw}, v{vG} offset:{L_Q}")
    a("s_waitcnt lgkmcnt(0)")
    a("s_barrier")
    a(f"ds_read_b128 {q4(vQ)}, v{aLqr} offset:{L_Q}")
    a.wait_vm("k0", "k1", "k2", "k3")
    a("s_waitcnt lgkmcnt(0)")
    vSc = vAcc3
    for k in range(4):
        for i in range(4):
            a(f"v_dot2c_f32_bf16 v{vSc+i}, v{vK+4*i+k}, v{vQ+k}")
    a("s_nop 2")
    D = "row_mask:0xf"
    a(f"v_add_f32_dpp v{T0}, v{vSc+0}, v{vSc+0} row_ror:8 {D} bank_mask:0x3")
    a(f"v_add_f32_dpp v{T1}, v{vSc+1}, v{vSc+1} row_ror:8 {D} bank_mask:0x3")
    a(f"v_add_f32_dpp v{T0}, v{vSc+2}, v{vSc+2} row_ror:8 {D} bank_mask:0xc")
    a(f"v_add_f32_dpp v{T1}, v{vSc+3}, v{vSc+3} row_ror:8 {D} bank_mask:0xc")
    a("s_nop 0")
    a(f"v_add_f32_dpp v{T2}, v{T0}, v{T0} row_shl:4 {D} bank_mask:0x5")
    a(f"v_add_f32_dpp v{T2}, v{T1}, v{T1} row_shr:4 {D} bank_mask:0xa")
    a("s_nop 1")
    a(f"v_add_f32_dpp v{T2}, v{T2}, v{T2} quad_perm:[2,3,0,1] {DPP}")
    a("s_nop 1")
    a(f"v_add_f32_dpp v{T2}, v{T2}, v{T2} quad_perm:[1,0,3,2] {DPP}")
    rnd(T2)
    a(f"v_mul_f32 v{T2}, s{sScale}, v{T2}")
    rnd(T2)
    a(f"v_mov_b32 v{T0}, v{T2}")
    wave_red("max", T0, T1, rors=(8, 4))
    a(f"""
    s_lshl_b32 s{t0}, s{sW}, 2
    v_mov_b32 v{T1}, s{t0}
    ds_write_b32 v{T1}, v{T0} offset:{L_MX}
    s_waitcnt lgkmcnt(0)
    s_barrier
    ds_read_b128 {q4(vG)}, v{aZero} offset:{L_MX}
    ds_read_b128 {q4(vG+8)}, v{aZero} offset:{L_MX+16}
    s_waitcnt lgkmcnt(0)
    v_max3_f32 v{T0}, v{vG}, v{vG+1}, v{vG+2}
    v_max3_f32 v{T1}, v{vG+3}, v{vG+8}, v{vG+9}
    v_max3_f32 v{T0}, v{T0}, v{vG+10}, v{vG+11}
    v_max_f32 v{vMj}, v{T0}, v{T1}
    v_sub_f32 v{T2}, v{T2}, v{vMj}
    v_mul_f32 v{T2}, s{sLog2e}, v{T2}
    v_exp_f32 v{T2}, v{T2}
    s_nop 0
    v_cvt_pk_bf16_f32 v{vPl}, v{T2}, v{T2}
    v_mov_b32 v{vLs}, v{T2}
    v_and_b32 v{vPh}, 0xffff0000, v{vPl}
    v_and_b32 v{vPl}, 0xffff, v{vPl}
    """)
    stamp("smax")
    issue("smax")
    def mac8(acc, w, lo, hi, dpp=""):
        for k in range(4):
            if dpp:
                a(f"v_dot2c_f32_bf16_dpp v{acc+2*k}, v{lo}, v{w+k} {dpp} {DPP}")
                a(f"v_dot2c_f32_bf16_dpp v{acc+2*k+1}, v{hi}, v{w+k} {dpp} {DPP}")
            else:
                a(f"v_dot2c_f32_bf16 v{acc+2*k}, v{w+k}, v{lo}")
                a(f"v_dot2c_f32_bf16 v{acc+2*k+1}, v{w+k}, v{hi}")
    a("s_nop 1")
    for i in range(4):
        a.wait_vm(f"v{i}")
        mac8(vAcc, vV+4*i, vPl, vPh, dpp=f"row_newbcast:{4*i}")
    red8regs(vAcc)
    a(f"ds_write_b64 v{aLq}, {q2(vAcc)} offset:{L_OP}")
    wave_red("add", vLs, T1, rors=(8, 4), first_nop=False)
    def pub_sum(nparts, lbase, stride, soff, voff=aKV):
        for k in range(nparts):
            a(f"ds_read_b64 {q2(vS0+2*k)}, v{aL8} offset:{lbase+stride*k}")
        a(f"v_mov_b32 v{T1}, s{sT}")
        a(f"v_mov_b32 v{T3}, s{sT}")
        step = 1; first = True
        while step < nparts:
            for k in range(0, nparts, 2*step):
                if first: a(f"s_waitcnt lgkmcnt({nparts - (k+2)})")
                last = (2*step >= nparts)
                d0, d1 = (T0, T2) if last else (vS0+2*k, vS0+2*k+1)
                a(f"v_add_f32 v{d0}, v{vS0+2*k}, v{vS0+2*(k+step)}")
                a(f"v_add_f32 v{d1}, v{vS0+2*k+1}, v{vS0+2*(k+step)+1}")
            first = False; step *= 2
        a(f"buffer_store_dwordx4 v[{T0}:{T3}], v{voff}, {srd(S_WS)}, s{soff} offen sc1")
    a(f"""
    s_lshl_b32 s{t0}, s{sW}, 2
    v_mov_b32 v{T1}, s{t0}
    ds_write_b32 v{T1}, v{vLs} offset:{L_LS}
    s_waitcnt lgkmcnt(0)
    s_barrier
    s_cmp_eq_u32 s{sW}, 0
    s_cbranch_scc1 L_pubo
    s_cmp_eq_u32 s{sW}, 1
    s_cbranch_scc0 L_pubo_done
    ds_read_b128 {q4(vG)}, v{aZero} offset:{L_LS}
    ds_read_b128 {q4(vG+4)}, v{aZero} offset:{L_LS+16}
    v_mov_b32 v{T0}, v{vMj}
    v_mov_b32 v{T1}, s{sT}
    v_mov_b32 v{T3}, s{sT}
    s_waitcnt lgkmcnt(0)
    v_add_f32 v{vG}, v{vG}, v{vG+1}
    v_add_f32 v{vG+2}, v{vG+2}, v{vG+3}
    v_add_f32 v{vG+4}, v{vG+4}, v{vG+5}
    v_add_f32 v{vG+6}, v{vG+6}, v{vG+7}
    v_add_f32 v{vG}, v{vG}, v{vG+2}
    v_add_f32 v{vG+4}, v{vG+4}, v{vG+6}
    v_add_f32 v{T2}, v{vG}, v{vG+4}
    s_mov_b64 exec, 1
    buffer_store_dwordx4 v[{T0}:{T3}], v{aZero}, {srd(S_WS)}, s{sStp} offen sc1
    s_mov_b64 exec, -1
    s_branch L_pubo_done
    """)
    a.label("L_pubo")
    pub_sum(8, L_OP, 512, sOp)
    a.label("L_pubo_done")
    stamp("pubo")
    issue("pubo")
    a.wait_vm("ph")
    check([vGh+1, vGh+3])
    a("s_cbranch_vccz L_hok")
    a.label("L_hretry")
    a(f"s_add_u32 s{sSpin}, s{sSpin}, 16")
    a(f"s_cmp_gt_u32 s{sSpin}, {1<<22}")
    a("s_cbranch_scc1 L_hok")
    pollh_loads(None)
    a("s_waitcnt vmcnt(0)")
    check([vGh+1, vGh+3])
    a("s_cbranch_vccnz L_hretry")
    a.label("L_hok")
    a(f"v_cmp_gt_u32 vcc, 32, v{vL}")
    a("s_nop 1")
    a(f"v_cndmask_b32 v{vHs}, v{vGh+2}, v{vGh}, vcc")
    a("s_nop 1")
    a(f"""
    v_add_f32_dpp v{vHs}, v{vHs}, v{vHs} row_ror:4 {DPP}
    s_nop 1
    v_add_f32_dpp v{vHs}, v{vHs}, v{vHs} row_ror:8 {DPP}
    v_mov_b32 v{T0}, v{vHs}
    s_nop 1
    v_permlane16_swap_b32 v{vHs}, v{T0}
    v_add_f32 v{vHs}, v{vHs}, v{T0}
    """)
    a.wait_vm("b1")
    rnd(vHs)
    a(f"v_lshlrev_b32 v{vB1}, 16, v{vB1}")
    a(f"v_add_f32 v{vHs}, v{vHs}, v{vB1}")
    rnd(vHs)
    a(f"""
    s_mov_b32 s{t0}, 0x3d372713
    s_mov_b32 s{t1}, 0xc0135761
    v_mul_f32 v{T0}, v{vHs}, v{vHs}
    v_mul_f32 v{T0}, s{t0}, v{T0}
    v_fma_f32 v{T0}, v{T0}, v{vHs}, v{vHs}
    v_mul_f32 v{T0}, s{t1}, v{T0}
    v_exp_f32 v{T0}, v{T0}
    s_nop 0
    v_add_f32 v{T0}, 1.0, v{T0}
    v_rcp_f32 v{T0}, v{T0}
    s_nop 0
    v_mul_f32 v{T0}, v{vHs}, v{T0}
    v_cvt_pk_bf16_f32 v{T0}, v{T0}, v{T0}
    v_and_b32 v{T0}, 0xffff, v{T0}
    ds_bpermute_b32 v{vX1}, v{aBm}, v{T0}
    ds_bpermute_b32 v{vX1+1}, v{aBe}, v{T0}
    """)
    zero(vAcc2); zero(vAcc3)
    a("s_waitcnt lgkmcnt(0)")
    for i in range(2): a(f"v_lshlrev_b32 v{vX1h+i}, 16, v{vX1+i}")
    a.wait_vm("w20", "w21")
    mac8(vAcc2, vW2, vX1, vX1h)
    mac8(vAcc3, vW2+4, vX1+1, vX1h+1)
    def red_tile(accM, accE, lbase):
        red8regs(accM, accE)
        a("s_nop 1")
        for r in (accM, accM+1, accE, accE+1):
            a(f"v_add_f32_dpp v{r}, v{r}, v{r} row_ror:8 {DPP}")
        a("s_nop 0")
        for r in (accE, accE+1):
            a(f"v_add_f32_dpp v{r}, v{r}, v{r} row_ror:4 {DPP}")
        a(f"ds_write_b64 v{aLSm}, {q2(accM)} offset:{lbase}")
        a("s_nop 0")
        for r in (accE, accE+1):
            a(f"v_add_f32_dpp v{r}, v{r}, v{r} quad_perm:[2,3,0,1] {DPP}")
        a(f"ds_write_b64 v{aLSe}, {q2(accE)} offset:{lbase}")
    red_tile(vAcc2, vAcc3, L_YP)
    stamp("mlp")
    a.wait_vm("wo0", "wo1", "wo2", "p2")
    def pollo_loads():
        a(f"buffer_load_dwordx4 {q4(vG)}, v{aG}, {srd(S_WS)}, s{sOg} offen sc1")
        a(f"buffer_load_dwordx4 {q4(vG+4)}, v{aSt1}, {srd(S_WS)}, s{sSt} offen sc1")
        a(f"buffer_load_dwordx4 {q4(vG+8)}, v{aSt2}, {srd(S_WS)}, s{sSt} offen sc1")
    zero(vAcc); zero(vAcc2)
    otags = [vG+1, vG+3, vG+5, vG+7, vG+9]
    a.label("L_oretry")
    pollo_loads()
    a(f"s_add_u32 s{sSpin}, s{sSpin}, 65536")
    a("s_waitcnt vmcnt(0)")
    check(otags)
    a(f"s_cmp_gt_u32 s{sSpin}, 0x7f000000")
    a("s_cbranch_scc1 L_ook")
    a("s_cbranch_vccnz L_oretry")
    a.label("L_ook")
    a.vm = []
    stamp("pollo")
    a(f"v_mov_b32 v{T0}, v{vG+4}")
    for n in (4, 2, 1):
        a("s_nop 1")
        a(f"v_max_f32_dpp v{T0}, v{T0}, v{T0} row_ror:{n} {DPP}")
    a(f"""
    v_sub_f32 v{T1}, v{vG+4}, v{T0}
    v_sub_f32 v{T3}, v{vG+8}, v{T0}
    v_mul_f32 v{T1}, s{sLog2e}, v{T1}
    v_mul_f32 v{T3}, s{sLog2e}, v{T3}
    v_exp_f32 v{T1}, v{T1}
    v_exp_f32 v{T3}, v{T3}
    v_mul_f32 v{T2}, v{T1}, v{vG+6}
    v_mul_f32 v{vG}, v{vG}, v{T3}
    v_mul_f32 v{vG+2}, v{vG+2}, v{T3}
    v_add_f32_dpp v{T2}, v{T2}, v{T2} row_ror:4 {DPP}
    s_nop 0
    v_permlane32_swap_b32 v{vG}, v{vG+2}
    v_add_f32 v{vG}, v{vG}, v{vG+2}
    v_add_f32_dpp v{T2}, v{T2}, v{T2} row_ror:2 {DPP}
    v_mov_b32 v{T0}, v{vG}
    s_nop 0
    v_add_f32_dpp v{T2}, v{T2}, v{T2} row_ror:1 {DPP}
    v_permlane16_swap_b32 v{vG}, v{T0}
    v_add_f32 v{vG}, v{vG}, v{T0}
    v_rcp_f32 v{T2}, v{T2}
    s_nop 0
    v_add_f32_dpp v{vG}, v{vG}, v{vG} row_ror:8 {DPP}
    v_mul_f32 v{vG}, v{vG}, v{T2}
    v_cvt_pk_bf16_f32 v{vG}, v{vG}, v{vG}
    v_and_b32 v{vG}, 0xffff, v{vG}
    ds_bpermute_b32 v{vXq}, v{aBm}, v{vG}
    ds_bpermute_b32 v{vXq+1}, v{aBm}, v{vG} offset:16
    ds_bpermute_b32 v{vXq+2}, v{aBe}, v{vG}
    s_waitcnt lgkmcnt(0)
    """)
    for i in range(3): a(f"v_lshlrev_b32 v{vXqh+i}, 16, v{vXq+i}")
    for i in range(2): mac8(vAcc, vWO+4*i, vXq+i, vXqh+i)
    mac8(vAcc2, vWO+8, vXq+2, vXqh+2)
    red_tile(vAcc, vAcc2, L_SP)
    a("s_waitcnt lgkmcnt(0)")
    a("s_barrier")
    a(f"""
    s_cmp_gt_u32 s{sW}, 1
    s_cbranch_scc1 L_pubs_done
    s_mov_b32 exec_hi, 0xff
    s_cmp_eq_u32 s{sW}, 0
    s_cbranch_scc1 L_pubs_s
    s_cmp_eq_u32 s{sMlp}, 0
    s_cbranch_scc1 L_pubs_skip
    s_add_u32 s{t0}, s{sSp}, {WS_Y}
    """)
    pub_sum(8, L_YP, 320, t0, voff=aS)
    a("s_branch L_pubs_skip")
    a.label("L_pubs_s")
    a(f"s_add_u32 s{t0}, s{sSp}, {WS_S}")
    pub_sum(8, L_SP, 320, t0, voff=aS)
    a.label("L_pubs_skip")
    a("s_mov_b64 exec, -1")
    a.label("L_pubs_done")
    stamp("pubs")
    vFF = vK
    a(f"""
    s_cmp_lt_u32 s{sG}, 27
    s_cbranch_scc1 L_fin
    s_cmp_eq_u32 s{sW}, 2
    s_cbranch_scc0 L_fin
    s_sub_u32 s{t0}, s{sG}, 27
    s_lshl_b32 s{t0}, s{t0}, 3
    s_add_u32 s{t0}, s{t0}, s{sJ}
    s_lshl_b32 s{sC}, s{t0}, 5
    s_lshl_b32 s{t0}, s{t0}, 12
    s_add_u32 s{t1}, s{t0}, {WS_Y}
    s_add_u32 s{t0}, s{t0}, {WS_S}
    v_lshlrev_b32 v{T1}, 2, v{vL}
    v_and_b32 v{T1}, 28, v{T1}
    buffer_load_dword v{vXf}, v{T1}, {srd(S_X)}, s{sC} offen
    buffer_load_dword v{vB2}, v{T1}, {srd(S_B2)}, s{sC} offen
    v_mov_b32 v{vFF+28}, 0
    v_mov_b32 v{vFF+29}, s{sT}
    v_mov_b32 v{vFF+30}, 0
    v_mov_b32 v{vFF+31}, s{sT}
    """)
    a.label("L_pollf")
    for i in range(4):
        a(f"buffer_load_dwordx4 {q4(vFF+4*i)}, v{aKV}, {srd(S_WS)}, s{t0} offen offset:{1024*i} sc1")
    for i in range(3):
        a(f"buffer_load_dwordx4 {q4(vFF+16+4*i)}, v{aKV}, {srd(S_WS)}, s{t1} offen offset:{1024*i} sc1")
    a("s_mov_b32 exec_lo, 0xffffff")
    a("s_mov_b32 exec_hi, 0")
    a(f"buffer_load_dwordx4 {q4(vFF+28)}, v{aKV}, {srd(S_WS)}, s{t1} offen offset:3072 sc1")
    a("s_mov_b64 exec, -1")
    a("s_waitcnt vmcnt(0)")
    check([vFF+4*i+k for i in range(8) for k in (1, 3)])
    a(f"s_add_u32 s{sSpin}, s{sSpin}, 65536")
    a(f"s_cmp_gt_u32 s{sSpin}, 0x7f000000")
    a("s_cbranch_scc1 L_pollf_done")
    a("s_cbranch_vccnz L_pollf")
    a.label("L_pollf_done")
    for (dst, base) in ((vG, vFF), (vG+2, vFF+16)):
        a(f"v_add_f32 v{dst}, v{base}, v{base+4}")
        a(f"v_add_f32 v{dst+1}, v{base+2}, v{base+6}")
        a(f"v_add_f32 v{T2}, v{base+8}, v{base+12}")
        a(f"v_add_f32 v{T3}, v{base+10}, v{base+14}")
        a(f"v_add_f32 v{dst}, v{dst}, v{T2}")
        a(f"v_add_f32 v{dst+1}, v{dst+1}, v{T3}")
    a("s_nop 0")
    red32(vG, vG+1); red32(vG+2, vG+3)
    a(f"v_mov_b32 v{T2}, v{vG}"); a(f"v_mov_b32 v{T3}, v{vG+2}"); a("s_nop 0")
    red16(vG, T2); red16(vG+2, T3)
    a("s_nop 0")
    a(f"v_add_f32_dpp v{vG}, v{vG}, v{vG} row_ror:8 {DPP}")
    a(f"v_add_f32_dpp v{vG+2}, v{vG+2}, v{vG+2} row_ror:8 {DPP}")
    a(f"""
    v_lshrrev_b32 v{T4}, 5, v{vL}
    v_lshlrev_b32 v{T4}, 4, v{T4}
    v_lshrrev_b32 v{vB2}, v{T4}, v{vB2}
    v_lshlrev_b32 v{vB2}, 16, v{vB2}
    v_lshrrev_b32 v{vXf}, v{T4}, v{vXf}
    v_lshlrev_b32 v{vXf}, 16, v{vXf}
    """)
    rnd(vG); rnd(vG+2)
    a(f"v_add_f32 v{vG+2}, v{vG+2}, v{vB2}")
    rnd(vG+2)
    a(f"""
    v_mul_f32 v{T2}, s{sLog2e}, v{vG+2}
    v_sub_f32 v{T2}, 0, v{T2}
    v_exp_f32 v{T2}, v{T2}
    s_nop 0
    v_add_f32 v{T2}, 1.0, v{T2}
    v_rcp_f32 v{T2}, v{T2}
    s_nop 0
    v_mul_f32 v{vG+2}, v{vG+2}, v{T2}
    """)
    rnd(vG+2)
    a(f"v_mul_f32 v{vG}, v{vG}, v{vG+2}")
    rnd(vG)
    a(f"""
    v_add_f32 v{vG}, v{vG}, v{vXf}
    v_cvt_pk_bf16_f32 v{vG}, v{vG}, v{vG}
    v_lshrrev_b32 v{T4}, 5, v{vL}
    v_lshl_add_u32 v{T1}, v{T4}, 1, v{T1}
    s_mov_b32 exec_lo, 0xff
    s_mov_b32 exec_hi, 0xff
    buffer_store_short v{vG}, v{T1}, {srd(S_OUT)}, s{sC} offen
    s_cmp_eq_u32 s{sC}, 0
    s_cbranch_scc0 L_fin0
    v_mov_b32 v{T2}, s{sT}
    s_mov_b64 exec, 1
    buffer_store_dword v{T2}, v{aZero}, {srd(S_WS)}, 0 offen sc1
    """)
    a.label("L_fin0")
    a("s_mov_b64 exec, -1")
    a.label("L_fin")
    if stamps and echo is not None:
        stamp("end")
        ie = sel.index("end")
        a(f"""
        s_waitcnt lgkmcnt(0)
        s_cmp_eq_u32 s2, 27
        s_cbranch_scc0 L_end
        s_cmp_eq_u32 s{sW}, 2
        s_cbranch_scc0 L_end
        s_sub_u32 s{t0}, s{SP[echo]}, s{SP[0]}
        s_add_u32 s{t0}, s{t0}, s{SP[ie]}
        """)
        a.label("L_echo")
        a(f"""
        s_memrealtime s[16:17]
        s_waitcnt lgkmcnt(0)
        s_sub_u32 s18, s16, s{t0}
        s_cmp_lt_i32 s18, 0
        s_cbranch_scc1 L_echo
        """)
    elif stamps:
        stamp("end")
        a("s_waitcnt lgkmcnt(0)")
        a(f"""
        s_lshl_b32 s{t0}, s2, 3
        s_add_u32 s{t0}, s{t0}, s{sW}
        s_lshl_b32 s{t0}, s{t0}, 7
        s_add_u32 s{t0}, s{t0}, {WS_TS}
        """)
        for k in range(len(SP)):
            a(f"v_mov_b32 v{vG+k}, s{SP[k]}")
        a(f"v_mov_b32 v{vG+len(SP)}, s{sSpin}")
        a("s_mov_b64 exec, 1")
        for k in range(3):
            a(f"buffer_store_dwordx4 {q4(vG+4*k)}, v{aZero}, {srd(S_WS)}, s{t0} offen offset:{16*k}")
    a.label("L_end")
    a("s_endpgm")
    body = "\n".join(a.l) + "\n"
    src = HDR_COMMENT + f"""; Override launch geometry by editing the next line (default: block=256,
; grid=ceil(out_elems/256), lds=0). Harness parses it; keep it on one line.
; @launch grid=(256,1,1) block=({NW*64},1,1) lds={LDS}
.amdgcn_target "amdgcn-amd-amdhsa--gfx950"
.text
.globl {KN}
.p2align 8
.type {KN},@function
{KN}:
{body}
.section .rodata,"a"
.p2align 6
.amdhsa_kernel {KN}
  .amdhsa_next_free_vgpr {NV}
  .amdhsa_next_free_sgpr 102
  .amdhsa_accum_offset {NV}
  .amdhsa_group_segment_fixed_size 0
  .amdhsa_kernarg_size 104
  .amdhsa_user_sgpr_count 2
  .amdhsa_user_sgpr_kernarg_segment_ptr 1
  .amdhsa_system_sgpr_workgroup_id_x 1
.end_amdhsa_kernel
"""
    return src

if __name__ == "__main__":
    import argparse
    p = argparse.ArgumentParser()
    p.add_argument("-o", default="k5.s")
    p.add_argument("--stamps", action="store_true")
    p.add_argument("--no-nt", action="store_true")
    p.add_argument("--echo", type=int, default=None)
    p.add_argument("--opt", action="append", default=[])
    args = p.parse_args()
    opts = dict(o.split("=") for o in args.opt)
    open(args.o, "w").write(gen(nt=not args.no_nt, stamps=args.stamps, echo=args.echo, opts=opts))
```

```python
import sys
KN = "recurrent_scan__sliding_block_cached__dense_activation_gelu__decode_kernel"
HDR_COMMENT = open("recurrent_scan__sliding_block_cached__dense_activation_gelu__decode.s.ref").read().split("; Override launch")[0]

class A:
    def __init__(self):
        self.l = []; self.vm = []
    def __call__(self, s):
        for line in s.strip("\n").split("\n"):
            line = line.strip()
            if line: self.l.append("  " + line)
    def label(self, n): self.l.append(n + ":")
    def vmem(self, s, tag):
        self(s); self.vm.append(tag)
    def wait_vm(self, *tags):
        idxs = [i for i, t in enumerate(self.vm) if t in tags]
        if not idxs: return
        idx = max(idxs)
        n = len(self.vm) - 1 - idx
        self(f"s_waitcnt vmcnt({min(n,63)})")
        self.vm = self.vm[idx + 1:]

WS_EPOCH = 0
WS_Q  = 0x1000
WS_H  = WS_Q + 32*8*1024
WS_O  = WS_H + 32*8*512
WS_ST = WS_O + 32*8*1024
WS_S  = WS_ST + 32*8*128
WS_Y  = WS_S + 40*32*128
WS_TS = WS_Y + 40*32*128
NW = 12
NAUX = 4
TSW = 16
WS_END = WS_TS + 256*TSW*128
TAGC = 0x9E3779B9
OOB = 0x7f000000
DEF_STAMPS = "start,pq1,b0,pollq,smax,pubo,pollo,pubs,end"

def gen(nt=True, stamps=False, echo=None, opts=None):
    opts = opts or {}
    a = A()
    NT = " nt" if nt else ""
    S_X, S_K, S_V, S_WQ, S_WO, S_W1, S_B1, S_W2, S_B2, S_OUT, S_WS = [44 + 4*i for i in range(11)]
    srd = lambda b: f"s[{b}:{b+3}]"
    sG, sJ, sW, sT = 3, 4, 5, 6
    t0, t1, t2, t3 = 7, 8, 9, 10
    sSpin = 11
    sM = 12
    sKW = 14
    sA0 = 16
    sK = 21; sWO = [17,18,19,20]; sW2 = [22,23]
    sXo = 25
    sQg = 26; sHg = 27; sOg = 28; sSt = 29
    sPub = 30; sOg2 = 31; sOp = 32; sStp = 33
    sSp = 34; sMlp = 35
    sScale, sLog2e = 36, 37
    sC = 38; sOobM = 39
    sFS = 24; sFY = 15; sGC = 16
    SHIFT = int(opts.get('shift', '1'))
    SP = [88,90,92,94,96,98,100,40,42]
    sel = opts.get("stamps", DEF_STAMPS).split(",")
    def stamp(name):
        if stamps and name in sel:
            r = SP[sel.index(name)]; a(f"s_memrealtime s[{r}:{r+1}]")
    vL = 1
    (aKV, aT, aWOm, aWOe, aW2e, aXa, aX4, aG, aGh, aSt1,
     aLq, aL8, aLqr, aLSm, aLSe, aS, aBm, aBe, aZero, aPub, aB1, aBe2) = range(2, 24)
    T0, T1, T2, T3, T4 = 26, 27, 28, 29, 30
    vE = 31; vX4 = 32; vX16 = 36
    vXa = 40; vXb = 41; vXah = 42; vXbh = 43
    vXq = 44; vXqh = 49
    vMj = 54; vLs = 55; vB1 = 56; vXf = 57; vB2 = 58; vPl = 59; vPh = 60; vHs = 61
    vQ = 64; vAcc = 68; vAcc2 = 76; vAcc3 = 84; vG = 92
    vK = 108; vV = 124
    vTile = 76; xs = list(range(156, 166))
    vP1 = 124
    vWO = 108
    NV = 168
    vP1 = 76; vWO = 108; vW2 = 128; vGh = 140; vS0 = 144; vFF = 108
    q4 = lambda b: f"v[{b}:{b+3}]"
    q2 = lambda b: f"v[{b}:{b+1}]"
    L_OP = 0; L_Q = 4096; L_MX = 4352; L_LS = 4384; L_SP = 4608; L_YP = 5888; L_FQ = 7168; L_FM = 7172; L_FO = 7176; LDS = 7424
    DPP = "row_mask:0xf bank_mask:0xf"

    def zero(base, n=8):
        for k in range(n): a(f"v_mov_b32 v{base+k}, 0")
    def rnd(v):
        a(f"v_cvt_pk_bf16_f32 v{v}, v{v}, v{v}"); a(f"v_and_b32 v{v}, 0xffff0000, v{v}")
    def wave_red(op, v, t, rors=(8,4,2,1), s16=True, s32=True, first_nop=True):
        for n_i, n in enumerate(rors):
            if n_i > 0 or first_nop: a("s_nop 1")
            a(f"v_{op}_f32_dpp v{v}, v{v}, v{v} row_ror:{n} {DPP}")
        if s16:
            a(f"v_mov_b32 v{t}, v{v}"); a("s_nop 1")
            a(f"v_permlane16_swap_b32 v{v}, v{t}"); a(f"v_{op}_f32 v{v}, v{v}, v{t}")
        if s32:
            a(f"v_mov_b32 v{t}, v{v}"); a("s_nop 1")
            a(f"v_permlane32_swap_b32 v{v}, v{t}"); a(f"v_{op}_f32 v{v}, v{v}, v{t}")
    def red32(x, y):
        a(f"v_permlane32_swap_b32 v{x}, v{y}"); a(f"v_add_f32 v{x}, v{x}, v{y}")
    def red16(x, y, d=None):
        a(f"v_permlane16_swap_b32 v{x}, v{y}"); a(f"v_add_f32 v{x if d is None else d}, v{x}, v{y}")
    def red8regs(*accs):
        a("s_nop 2")
        for acc in accs:
            red32(acc+0, acc+4); red32(acc+2, acc+6); red32(acc+1, acc+5); red32(acc+3, acc+7)
        a("s_nop 0")
        for acc in accs:
            red16(acc+0, acc+2); red16(acc+1, acc+3)
    def mac8(acc, w, lo, hi, dpp=""):
        for k in range(4):
            if dpp:
                a(f"v_dot2c_f32_bf16_dpp v{acc+2*k}, v{lo}, v{w+k} {dpp} {DPP}")
                a(f"v_dot2c_f32_bf16_dpp v{acc+2*k+1}, v{hi}, v{w+k} {dpp} {DPP}")
            else:
                a(f"v_dot2c_f32_bf16 v{acc+2*k}, v{w+k}, v{lo}")
                a(f"v_dot2c_f32_bf16 v{acc+2*k+1}, v{w+k}, v{hi}")
    def check(tags):
        a(f"v_cmp_ne_u32 vcc, s{sT}, v{tags[0]}")
        for tg in tags[1:]:
            a(f"v_cmp_ne_u32 s[{sM}:{sM+1}], s{sT}, v{tg}")
            a(f"s_or_b64 vcc, vcc, s[{sM}:{sM+1}]")
    def check_mm(tags, ta, tb):
        for op, t in (("min", ta), ("max", tb)):
            a(f"v_{op}3_u32 v{t}, v{tags[0]}, v{tags[1]}, v{tags[2]}")
            i = 3
            while i < len(tags):
                if i + 1 < len(tags):
                    a(f"v_{op}3_u32 v{t}, v{t}, v{tags[i]}, v{tags[i+1]}"); i += 2
                else:
                    a(f"v_{op}_u32 v{t}, v{t}, v{tags[i]}"); i += 1
        check([ta, tb])
    def pub_sum(nparts, lbase, stride, soff, voff=aKV):
        for k in range(nparts):
            a(f"ds_read_b64 {q2(vS0+2*k)}, v{aL8} offset:{lbase+stride*k}")
        a(f"v_mov_b32 v{T1}, s{sT}")
        a(f"v_mov_b32 v{T3}, s{sT}")
        step = 1; first = True
        while step < nparts:
            for k in range(0, nparts, 2*step):
                if first: a(f"s_waitcnt lgkmcnt({nparts - (k+2)})")
                last = (2*step >= nparts)
                d0, d1 = (T0, T2) if last else (vS0+2*k, vS0+2*k+1)
                a(f"v_add_f32 v{d0}, v{vS0+2*k}, v{vS0+2*(k+step)}")
                a(f"v_add_f32 v{d1}, v{vS0+2*k+1}, v{vS0+2*(k+step)+1}")
            first = False; step *= 2
        a(f"buffer_store_dwordx4 v[{T0}:{T3}], v{voff}, {srd(S_WS)}, s{soff} offen sc1")

    kvseq = opts.get("kvseq", "k0 k1 k2 k3 bar v0 v1 v2 v3 Wk3").replace("+", " ").split()

    a("s_cmp_ge_u32 s2, 256")
    a("s_cbranch_scc1 L_end")
    stamp("start")
    order = [(S_X,0),(S_WQ,3),(S_W1,6),(S_WS,12),(S_K,1),(S_V,2),(S_WO,4),(S_B1,7),(S_W2,8),(S_B2,9),(S_OUT,10)]
    for b, i in order:
        a(f"s_load_dwordx2 s[{b}:{b+1}], s[0:1], {8*i}")
    a(f"""
    v_lshrrev_b32 v{T0}, 6, v0
    v_and_b32 v{vL}, 63, v0
    s_and_b32 s{sG}, s2, 31
    s_lshr_b32 s{sJ}, s2, 5
    v_readfirstlane_b32 s{sW}, v{T0}
    v_lshlrev_b32 v{aKV}, 4, v{vL}
    v_lshrrev_b32 v{T0}, 4, v{vL}
    v_and_b32 v{T1}, 15, v{vL}
    v_lshrrev_b32 v{T2}, 3, v{vL}
    v_and_b32 v{T3}, 7, v{vL}
    v_mov_b32 v{aZero}, 0
    """)
    sizes = {S_X:1280, S_WQ:5242880, S_WS:WS_END, S_K:33554432, S_V:33554432, S_WO:5242880, S_W1:2211840, S_B1:3456, S_W2:2211840, S_B2:1280, S_OUT:1280}
    for b, sz in sizes.items():
        a(f"s_mov_b32 s{b+2}, {sz}")
        a(f"s_mov_b32 s{b+3}, 0x20000")
    a(f"""
    s_cmp_lt_u32 s{sG}, 27
    s_cselect_b32 s{sMlp}, 1, 0
    s_cselect_b32 s{sOobM}, 0, {OOB}
    s_mov_b32 s{sSpin}, 0
    s_mov_b32 s{sLog2e}, 0x3fb8aa3b
    s_cmp_ge_u32 s{sW}, {NAUX}
    s_cbranch_scc1 L_kv
    s_cmp_gt_u32 s{sW}, 1
    s_cbranch_scc1 L_aux23
    """)
    a(f"""
    s_setprio 3
    s_mul_i32 s{t0}, s{sJ}, 80
    s_lshl_b32 s{sXo}, s{t0}, 1
    v_lshlrev_b32 v{aX4}, 2, v{vL}
    v_lshl_add_u32 v{aXa}, v{T1}, 2, v{T0}
    v_lshlrev_b32 v{aXa}, 1, v{aXa}
    s_cmp_eq_u32 s{sW}, 0
    s_cbranch_scc0 L_role_h0
    v_lshlrev_b32 v{aT}, 13, v{T0}
    v_lshl_add_u32 v{aT}, v{T1}, 4, v{aT}
    s_lshl_b32 s{sA0}, s{t0}, 13
    s_lshl_b32 s{t2}, s{sG}, 8
    s_add_u32 s{sA0}, s{sA0}, s{t2}
    v_lshlrev_b32 v{aPub}, 6, v{T1}
    v_lshl_add_u32 v{aPub}, v{T0}, 4, v{aPub}
    s_lshl_b32 s{sPub}, s{sG}, 13
    s_lshl_b32 s{t2}, s{sJ}, 10
    s_add_u32 s{sPub}, s{sPub}, s{t2}
    s_add_u32 s{sPub}, s{sPub}, {WS_Q}
    s_waitcnt lgkmcnt(0)
    """)
    def xloads():
        a.vmem(f"buffer_load_dwordx4 {q4(vX16)}, v{aKV}, {srd(S_X)}, 0 offen", "x")
        a.vmem(f"buffer_load_dword v{vX4}, v{aX4}, {srd(S_X)}, 0 offen offset:1024", "x")
        a.vmem(f"buffer_load_ushort v{vXa}, v{aXa}, {srd(S_X)}, s{sXo} offen", "x")
        a.vmem(f"buffer_load_ushort v{vXb}, v{aXa}, {srd(S_X)}, s{sXo} offen offset:128", "x")
        a.vmem(f"buffer_load_dword v{vE}, v{aZero}, {srd(S_WS)}, 0 offen sc1", "x")
    xloads()
    for i in range(20):
        a.vmem(f"buffer_load_dwordx4 {q4(vTile+4*i)}, v{aT}, {srd(S_WQ)}, s{sA0} offen{NT}", f"t{i}")
        if i < 19: a(f"s_add_u32 s{sA0}, s{sA0}, 32768")
    a("s_branch L_ln")
    vm_front = list(a.vm)
    a.label("L_role_h0")
    a.vm = []
    a(f"""
    v_mul_u32_u24 v{aT}, 3456, v{T0}
    v_lshl_add_u32 v{aT}, v{T1}, 3, v{aT}
    s_mul_i32 s{sA0}, s{t0}, 3456
    s_lshl_b32 s{t2}, s{sG}, 7
    s_add_u32 s{sA0}, s{sA0}, s{t2}
    s_add_u32 s{sA0}, s{sA0}, s{sOobM}
    v_lshl_add_u32 v{aPub}, v{T1}, 2, v{T0}
    v_lshlrev_b32 v{aPub}, 3, v{aPub}
    s_lshl_b32 s{sPub}, s{sG}, 12
    s_lshl_b32 s{t2}, s{sJ}, 9
    s_add_u32 s{sPub}, s{sPub}, s{t2}
    s_add_u32 s{sPub}, s{sPub}, {WS_H}
    s_waitcnt lgkmcnt(0)
    """)
    xloads()
    for i in range(20):
        a.vmem(f"buffer_load_dwordx2 {q2(vTile+2*i)}, v{aT}, {srd(S_W1)}, s{sA0} offen{NT}", f"t{i}")
        if i < 19: a(f"s_add_u32 s{sA0}, s{sA0}, {4*3456}")
    assert a.vm == vm_front
    a.label("L_ln")
    a("s_barrier")
    zero(vAcc)
    a(f"v_mov_b32 v{T4}, 0x3f803f80")
    a(f"v_mov_b32 v{T0}, 0")
    a.wait_vm("x")
    stamp("x")
    a(f"v_readfirstlane_b32 s{sT}, v{vE}")
    xr = [vX16, vX16+1, vX16+2, vX16+3, vX4]
    for r in xr: a(f"v_dot2c_f32_bf16 v{T0}, v{r}, v{T4}")
    for k, r in enumerate(xr):
        a(f"v_lshlrev_b32 v{xs[2*k]}, 16, v{r}")
        a(f"v_and_b32 v{xs[2*k+1]}, 0xffff0000, v{r}")
    a(f"s_add_u32 s{sT}, s{sT}, {TAGC}")
    wave_red("add", T0, T1, first_nop=False)
    a(f"v_mul_f32 v{T0}, 0x3acccccd, v{T0}")
    for k in range(10): a(f"v_sub_f32 v{xs[k]}, v{xs[k]}, v{T0}")
    a(f"v_mul_f32 v{T2}, v{xs[0]}, v{xs[0]}"); a(f"v_mul_f32 v{T3}, v{xs[1]}, v{xs[1]}")
    for k in range(2, 10, 2):
        a(f"v_fmac_f32 v{T2}, v{xs[k]}, v{xs[k]}"); a(f"v_fmac_f32 v{T3}, v{xs[k+1]}, v{xs[k+1]}")
    a(f"v_add_f32 v{T2}, v{T2}, v{T3}")
    rnd(T0)
    a(f"v_add_f32_dpp v{T2}, v{T2}, v{T2} row_ror:8 {DPP}")
    a(f"v_lshlrev_b32 v{vXa}, 16, v{vXa}"); a(f"v_lshlrev_b32 v{vXb}, 16, v{vXb}")
    a(f"v_add_f32_dpp v{T2}, v{T2}, v{T2} row_ror:4 {DPP}")
    a(f"v_sub_f32 v{vXa}, v{vXa}, v{T0}"); a(f"v_sub_f32 v{vXb}, v{vXb}, v{T0}")
    a(f"v_add_f32_dpp v{T2}, v{T2}, v{T2} row_ror:2 {DPP}")
    a(f"v_cvt_pk_bf16_f32 v{vXa}, v{vXa}, v{vXa}"); a(f"v_cvt_pk_bf16_f32 v{vXb}, v{vXb}, v{vXb}")
    a(f"v_add_f32_dpp v{T2}, v{T2}, v{T2} row_ror:1 {DPP}")
    a(f"v_and_b32 v{vXa}, 0xffff0000, v{vXa}")
    a(f"v_mov_b32 v{T1}, v{T2}")
    a(f"v_and_b32 v{vXb}, 0xffff0000, v{vXb}")
    a("s_nop 0")
    a(f"v_permlane16_swap_b32 v{T2}, v{T1}"); a(f"v_add_f32 v{T2}, v{T2}, v{T1}")
    a(f"v_mov_b32 v{T1}, v{T2}"); a("s_nop 1")
    a(f"v_permlane32_swap_b32 v{T2}, v{T1}"); a(f"v_add_f32 v{T2}, v{T2}, v{T1}")
    a(f"v_mul_f32 v{T2}, 0x3acccccd, v{T2}")
    rnd(T2)
    a(f"v_add_f32 v{T2}, 0x3727c5ac, v{T2}")
    rnd(T2)
    a(f"v_sqrt_f32 v{T2}, v{T2}"); a("s_nop 0")
    rnd(T2)
    a(f"v_rcp_f32 v{T2}, v{T2}"); a("s_nop 0")
    for r in (vXa, vXb): a(f"v_mul_f32 v{r}, v{r}, v{T2}")
    for r in (vXa, vXb): a(f"v_cvt_pk_bf16_f32 v{r}, v{r}, v{r}")
    a(f"v_and_b32 v{vXah}, 0xffff0000, v{vXa}"); a(f"v_and_b32 v{vXbh}, 0xffff0000, v{vXb}")
    a(f"v_and_b32 v{vXa}, 0xffff, v{vXa}"); a(f"v_and_b32 v{vXb}, 0xffff, v{vXb}")
    a(f"v_mov_b32 v{T1}, s{sT}")
    a(f"v_mov_b32 v{T3}, s{sT}")
    stamp("ln")
    vm_ln = list(a.vm)
    a(f"s_cmp_eq_u32 s{sW}, 0")
    a("s_cbranch_scc0 L_role_h1")
    for i in range(20):
        a.wait_vm(f"t{i}")
        if i == 19: stamp("tl")
        lo, hi = (vXa, vXah) if i < 16 else (vXb, vXbh)
        for k in range(4):
            a(f"v_dot2c_f32_bf16_dpp v{vAcc+2*k}, v{lo}, v{vTile+4*i+k} row_newbcast:{i%16} {DPP}")
            a(f"v_dot2c_f32_bf16_dpp v{vAcc+2*k+1}, v{hi}, v{vTile+4*i+k} row_newbcast:{i%16} {DPP}")
    a("s_nop 2")
    red32(vAcc+0, vAcc+4); red32(vAcc+2, vAcc+6); red32(vAcc+1, vAcc+5); red32(vAcc+3, vAcc+7)
    a("s_nop 0")
    red16(vAcc+0, vAcc+2, d=T0); red16(vAcc+1, vAcc+3, d=T2)
    a(f"buffer_store_dwordx4 v[{T0}:{T3}], v{aPub}, {srd(S_WS)}, s{sPub} offen sc1")
    a("s_branch L_front_done")
    a.label("L_role_h1")
    a.vm = list(vm_ln)
    for i in range(20):
        a.wait_vm(f"t{i}")
        lo, hi = (vXa, vXah) if i < 16 else (vXb, vXbh)
        for k in range(2):
            a(f"v_dot2c_f32_bf16_dpp v{vAcc+2*k}, v{lo}, v{vTile+2*i+k} row_newbcast:{i%16} {DPP}")
            a(f"v_dot2c_f32_bf16_dpp v{vAcc+2*k+1}, v{hi}, v{vTile+2*i+k} row_newbcast:{i%16} {DPP}")
    a("s_nop 2")
    red32(vAcc+0, vAcc+2); red32(vAcc+1, vAcc+3)
    a("s_nop 1")
    red16(vAcc+0, vAcc+1, d=T0)
    a(f"s_cmp_eq_u32 s{sMlp}, 0")
    a("s_cbranch_scc1 L_front_done")
    a(f"buffer_store_dwordx2 v[{T0}:{T1}], v{aPub}, {srd(S_WS)}, s{sPub} offen sc1")
    a.label("L_front_done")
    a("s_setprio 0")
    stamp("pq1")
    a("s_branch L_aux")
    a.label("L_aux23")
    a(f"v_mov_b32 v{T4}, 0")
    a(f"v_lshlrev_b32 v{aLq}, 2, v{vL}")
    a(f"ds_write_b32 v{aLq}, v{T4} offset:{L_FQ}")
    a("s_waitcnt lgkmcnt(0)")
    a("s_barrier")
    a(f"buffer_load_dword v{vE}, v{aZero}, {srd(S_WS)}, 0 offen sc1")
    a("s_waitcnt vmcnt(0)")
    a(f"v_readfirstlane_b32 s{sT}, v{vE}")
    a("s_nop 0")
    a(f"s_add_u32 s{sT}, s{sT}, {TAGC}")
    a.label("L_aux")
    a.vm = []
    for _ in range(kvseq.count("bar")): a("s_barrier")
    a(f"""
    v_lshrrev_b32 v{T0}, 4, v{vL}
    v_and_b32 v{T1}, 15, v{vL}
    v_lshrrev_b32 v{T2}, 3, v{vL}
    v_and_b32 v{T3}, 7, v{vL}
    v_mul_u32_u24 v{aWOm}, 1280, v{T2}
    v_lshl_add_u32 v{aWOm}, v{T3}, 4, v{aWOm}
    v_lshrrev_b32 v{T4}, 1, v{vL}
    v_mul_u32_u24 v{aWOe}, 1280, v{T4}
    v_and_b32 v{aW2e}, 1, v{vL}
    v_lshl_add_u32 v{aWOe}, v{aW2e}, 4, v{aWOe}
    v_add_u32 v{aWOe}, 128, v{aWOe}
    v_mov_b32 v{aG}, {OOB}
    v_cmp_gt_u32 vcc, 32, v{vL}
    v_lshlrev_b32 v{aL8}, 3, v{vL}
    v_lshlrev_b32 v{aS}, 12, v{T2}
    v_cndmask_b32 v{aW2e}, v{aG}, v{aWOe}, vcc
    v_lshl_add_u32 v{aS}, v{T3}, 4, v{aS}
    v_lshlrev_b32 v{aG}, 10, v{T0}
    v_lshl_add_u32 v{aG}, v{T1}, 4, v{aG}              ; p4*1024 + c*16
    v_lshlrev_b32 v{aGh}, 9, v{T2}
    v_lshl_add_u32 v{aGh}, v{T3}, 4, v{aGh}            ; p8*512 + c3*16
    v_add_u32 v{aSt1}, v{T0}, v{T1}
    v_and_b32 v{aSt1}, 7, v{aSt1}
    v_lshlrev_b32 v{aSt1}, 7, v{aSt1}                  ; ((c+p4)&7)*128
    v_lshlrev_b32 v{aLSm}, 5, v{T3}
    v_lshl_add_u32 v{aLSm}, v{T0}, 3, v{aLSm}
    s_mul_i32 s{t0}, s{sW}, 320
    v_add_u32 v{aLSm}, s{t0}, v{aLSm}
    v_and_b32 v{aLSe}, 1, v{vL}
    v_lshlrev_b32 v{aLSe}, 5, v{aLSe}
    v_lshl_add_u32 v{aLSe}, v{T0}, 3, v{aLSe}
    v_add_u32 v{aLSe}, s{t0}, v{aLSe}
    v_add_u32 v{aLSe}, 256, v{aLSe}
    v_and_b32 v{aBm}, 1, v{T2}
    v_lshlrev_b32 v{aBm}, 5, v{aBm}
    v_lshrrev_b32 v{aBe}, 1, v{T2}
    v_add_lshl_u32 v{aBm}, v{aBm}, v{aBe}, 2           ; ((r8&1)*32 + (r8>>1))*4
    v_and_b32 v{aBe}, 1, v{T4}
    v_lshlrev_b32 v{aBe}, 5, v{aBe}
    v_lshrrev_b32 v{aBe2}, 1, v{T4}
    v_add_lshl_u32 v{aBe}, v{aBe}, v{aBe2}, 2          ; d=l>>1 (0..31): ((d&1)*32 + (d>>1))*4
    v_and_b32 v{aBe2}, 0x9c, v{aBe}
    v_lshrrev_b32 v{aB1}, 5, v{vL}
    v_lshl_add_u32 v{aB1}, v{T3}, 1, v{aB1}
    v_lshlrev_b32 v{aB1}, 1, v{aB1}                    ; (2c3+hi)*2
    v_lshlrev_b32 v{aLq}, 2, v{vL}                     ; l*4
    s_add_u32 s{sGC}, s{sG}, {SHIFT}
    s_and_b32 s{sGC}, s{sGC}, 31
    s_lshl_b32 s{t0}, s{sGC}, 7
    s_lshl_b32 s{t1}, s{sW}, 5
    s_add_u32 s{t0}, s{t0}, s{t1}
    s_mul_i32 s{sWO[0]}, s{t0}, 1280
    s_mul_i32 s{t2}, s{sJ}, 160
    s_add_u32 s{sWO[0]}, s{sWO[0]}, s{t2}
    s_add_u32 s{sWO[1]}, s{sWO[0]}, 10240
    s_add_u32 s{sWO[2]}, s{sWO[0]}, 20480
    s_add_u32 s{sWO[3]}, s{sWO[0]}, 30720
    s_lshl_b32 s{t0}, s{sG}, 6
    s_lshl_b32 s{t1}, s{sW}, 4
    s_add_u32 s{t0}, s{t0}, s{t1}
    s_mul_i32 s{sW2[0]}, s{t0}, 1280
    s_add_u32 s{sW2[0]}, s{sW2[0]}, s{t2}
    s_add_u32 s{sW2[0]}, s{sW2[0]}, s{sOobM}
    s_add_u32 s{sW2[1]}, s{sW2[0]}, 10240
    s_lshl_b32 s{t0}, s{sG}, 13
    s_add_u32 s{sQg}, s{t0}, {WS_Q}
    s_add_u32 s{sPub}, s{sQg}, 4096
    s_lshl_b32 s{t1}, s{sW}, 8
    s_lshl_b32 s{t3}, s{sGC}, 13
    s_add_u32 s{t1}, s{t1}, s{t3}
    s_add_u32 s{sOg}, s{t1}, {WS_O}
    s_add_u32 s{sOg2}, s{sOg}, 4096
    s_lshl_b32 s{t1}, s{sJ}, 10
    s_add_u32 s{t1}, s{t1}, s{t0}
    s_add_u32 s{sOp}, s{t1}, {WS_O}
    s_lshl_b32 s{t0}, s{sG}, 12
    s_lshl_b32 s{t1}, s{sW}, 7
    s_add_u32 s{t1}, s{t1}, s{t0}
    s_add_u32 s{sHg}, s{t1}, {WS_H}
    s_cmp_eq_u32 s{sMlp}, 0
    s_cselect_b32 s{sHg}, s{sQg}, s{sHg}
    s_lshl_b32 s{t0}, s{sG}, 10
    s_add_u32 s{sStp}, s{t0}, {WS_ST}
    s_lshl_b32 s{t1}, s{sJ}, 7
    s_add_u32 s{sStp}, s{sStp}, s{t1}
    s_lshl_b32 s{t0}, s{sGC}, 10
    s_add_u32 s{sSt}, s{t0}, {WS_ST}
    s_lshl_b32 s{t0}, s{sG}, 7
    s_mul_i32 s{t1}, s{sJ}, {5*4096}
    s_add_u32 s{sSp}, s{t1}, s{t0}
    s_lshl_b32 s{t0}, s{sGC}, 7
    s_add_u32 s{sK}, s{t1}, s{t0}
    s_add_u32 s{sK}, s{sK}, {WS_S}
    s_sub_u32 s{t0}, s{sG}, 27
    s_lshl_b32 s{t0}, s{t0}, 3
    s_add_u32 s{t0}, s{t0}, s{sJ}
    s_lshl_b32 s{sC}, s{t0}, 5
    s_lshl_b32 s{t0}, s{t0}, 12
    s_add_u32 s{sFY}, s{t0}, {WS_Y}
    s_add_u32 s{sFS}, s{t0}, {WS_S}
    """)
    a("s_barrier")
    stamp("b0")
    a(f"s_cmp_eq_u32 s{sW}, 0")
    a("s_cbranch_scc0 L_nop1")
    def p1_loads():
        for p in range(8):
            so = sQg if p < 4 else sPub
            a(f"buffer_load_dwordx4 {q4(vP1+4*p)}, v{aKV}, {srd(S_WS)}, s{so} offen offset:{1024*(p%4)} sc1")
    p1_loads()
    a.label("L_nop1")
    a("s_barrier")
    auxseq = opts.get("auxseq", "b1 ph w20 w21 w22 wo0 wo1 wo2 wo3 wo4").split() if "auxseq" not in opts else opts["auxseq"].replace("+", " ").split()
    def ld(x):
        if x == "b1":
            a(f"s_lshl_b32 s{t0}, s{sG}, 7"); a(f"s_lshl_b32 s{t1}, s{sW}, 5"); a(f"s_add_u32 s{t0}, s{t0}, s{t1}")
            a.vmem(f"buffer_load_ushort v{vB1}, v{aB1}, {srd(S_B1)}, s{t0} offen", "b1")
        elif x == "ph":
            a.vmem(f"buffer_load_dwordx4 {q4(vGh)}, v{aGh}, {srd(S_WS)}, s{sHg} offen sc1", "ph")
        elif x in ("w20", "w21"):
            i = int(x[2]); a.vmem(f"buffer_load_dwordx4 {q4(vW2+4*i)}, v{aWOm}, {srd(S_W2)}, s{sW2[i]} offen{NT}", "w2")
        elif x == "w22":
            a.vmem(f"buffer_load_dwordx4 {q4(vW2+8)}, v{aW2e}, {srd(S_W2)}, s{sW2[0]} offen{NT}", "w2")
        elif x == "wo4":
            a.vmem(f"buffer_load_dwordx4 {q4(vWO+16)}, v{aWOe}, {srd(S_WO)}, s{sWO[0]} offen{NT}", "wo")
        elif x.startswith("wo"):
            i = int(x[2]); a.vmem(f"buffer_load_dwordx4 {q4(vWO+4*i)}, v{aWOm}, {srd(S_WO)}, s{sWO[i]} offen{NT}", "wo")
        elif x == "xf":
            a(f"v_and_b32 v{aX4}, 28, v{aLq}")
            a.vmem(f"buffer_load_dword v{vXf}, v{aX4}, {srd(S_X)}, s{sC} offen", "xf")
            a.vmem(f"buffer_load_dword v{vB2}, v{aX4}, {srd(S_B2)}, s{sC} offen", "xf")
    a(f"s_cmp_eq_u32 s{sW}, 0")
    a("s_cbranch_scc1 L_a0_q")
    for x in auxseq: ld(x)
    ld("xf")
    a("s_branch L_aux_b3")
    vm_aux = list(a.vm)
    a.label("L_a0_q")
    ptags = [vP1+4*p+k for p in range(8) for k in (1, 3)]
    a("s_waitcnt vmcnt(0)")
    stamp("p1ret")
    check_mm(ptags, T0, T1)
    a("s_cbranch_vccz L_qok")
    a.label("L_qretry")
    a(f"s_add_u32 s{sSpin}, s{sSpin}, 256")
    a(f"s_cmp_gt_u32 s{sSpin}, {1<<22}")
    a("s_cbranch_scc1 L_qok")
    p1_loads()
    a("s_waitcnt vmcnt(0)")
    check_mm(ptags, T0, T1)
    a("s_cbranch_vccnz L_qretry")
    a.label("L_qok")
    for off in (0, 2):
        a(f"v_add_f32 v{vP1+off}, v{vP1+off}, v{vP1+4+off}")
        a(f"v_add_f32 v{vP1+8+off}, v{vP1+8+off}, v{vP1+12+off}")
        a(f"v_add_f32 v{vP1+16+off}, v{vP1+16+off}, v{vP1+20+off}")
        a(f"v_add_f32 v{vP1+24+off}, v{vP1+24+off}, v{vP1+28+off}")
    for off in (0, 2):
        a(f"v_add_f32 v{vP1+off}, v{vP1+off}, v{vP1+8+off}")
        a(f"v_add_f32 v{vP1+16+off}, v{vP1+16+off}, v{vP1+24+off}")
    for off in (0, 2):
        a(f"v_add_f32 v{vP1+off}, v{vP1+off}, v{vP1+16+off}")
    a(f"v_cvt_pk_bf16_f32 v{T0}, v{vP1}, v{vP1+2}")
    a(f"ds_write_b32 v{aLq}, v{T0} offset:{L_Q}")
    a(f"v_mov_b32 v{T1}, 1")
    a(f"ds_write_b32 v{aZero}, v{T1} offset:{L_FQ}")
    stamp("pollq")
    a.vm = []
    for x in auxseq: ld(x)
    ld("xf")
    assert a.vm == vm_aux
    a.label("L_aux_b3")
    zero(vAcc); zero(vAcc2)
    a(f"s_cmp_gt_u32 s{sW}, 1")
    a("s_cbranch_scc1 L_pubo_done")
    a(f"s_cmp_eq_u32 s{sW}, 0")
    a("s_cbranch_scc0 L_pub_st")
    a(f"v_mov_b32 v{T1}, s{sT}")
    a(f"v_mov_b32 v{T3}, s{sT}")
    a.label("L_wo8")
    a(f"ds_read_b32 v{T4}, v{aZero} offset:{L_FO}")
    for k in range(8):
        a(f"ds_read_b64 {q2(vS0+2*k)}, v{aL8} offset:{L_OP+512*k}")
    a("s_waitcnt lgkmcnt(8)")
    a(f"v_readfirstlane_b32 s{t0}, v{T4}")
    a("s_nop 0")
    a(f"s_cmp_lt_u32 s{t0}, 8")
    a("s_cbranch_scc1 L_wo8w")
    stamp("b4")
    for k in range(0, 8, 2):
        a(f"s_waitcnt lgkmcnt({8 - (k+2)})")
        a(f"v_add_f32 v{vS0+2*k}, v{vS0+2*k}, v{vS0+2*k+2}")
        a(f"v_add_f32 v{vS0+2*k+1}, v{vS0+2*k+1}, v{vS0+2*k+3}")
    for k in (0, 4):
        a(f"v_add_f32 v{vS0+2*k}, v{vS0+2*k}, v{vS0+2*k+4}")
        a(f"v_add_f32 v{vS0+2*k+1}, v{vS0+2*k+1}, v{vS0+2*k+5}")
    a(f"v_add_f32 v{T0}, v{vS0}, v{vS0+8}")
    a(f"v_add_f32 v{T2}, v{vS0+1}, v{vS0+9}")
    a(f"buffer_store_dwordx4 v[{T0}:{T3}], v{aKV}, {srd(S_WS)}, s{sOp} offen sc1")
    a("s_branch L_pubo_done")
    a.label("L_wo8w")
    a("s_waitcnt lgkmcnt(0)")
    a("s_branch L_wo8")
    a.label("L_pub_st")
    a.label("L_wst")
    a(f"""
    ds_read_b32 v{T4}, v{aZero} offset:{L_FO}
    ds_read_b128 {q4(vG)}, v{aZero} offset:{L_LS}
    ds_read_b128 {q4(vG+4)}, v{aZero} offset:{L_LS+16}
    ds_read_b128 {q4(vG+8)}, v{aZero} offset:{L_MX}
    ds_read_b128 {q4(vG+12)}, v{aZero} offset:{L_MX+16}
    v_mov_b32 v{T1}, s{sT}
    v_mov_b32 v{T3}, s{sT}
    s_waitcnt lgkmcnt(0)
    v_readfirstlane_b32 s{t0}, v{T4}
    s_nop 0
    s_cmp_lt_u32 s{t0}, 8
    s_cbranch_scc1 L_wst
    v_add_f32 v{vG}, v{vG}, v{vG+1}
    v_add_f32 v{vG+2}, v{vG+2}, v{vG+3}
    v_add_f32 v{vG+4}, v{vG+4}, v{vG+5}
    v_add_f32 v{vG+6}, v{vG+6}, v{vG+7}
    v_add_f32 v{vG}, v{vG}, v{vG+2}
    v_add_f32 v{vG+4}, v{vG+4}, v{vG+6}
    v_add_f32 v{T2}, v{vG}, v{vG+4}
    v_max3_f32 v{T0}, v{vG+8}, v{vG+9}, v{vG+10}
    v_max3_f32 v{T4}, v{vG+11}, v{vG+12}, v{vG+13}
    v_max3_f32 v{T0}, v{T0}, v{vG+14}, v{vG+15}
    v_max_f32 v{T0}, v{T0}, v{T4}
    s_mov_b64 exec, 0xff
    buffer_store_dwordx4 v[{T0}:{T3}], v{aKV}, {srd(S_WS)}, s{sStp} offen sc1
    s_mov_b64 exec, -1
    """)
    a.label("L_pubo_done")
    stamp("pubo")
    a.wait_vm("ph")
    check([vGh+1, vGh+3])
    a("s_cbranch_vccz L_hok")
    a.label("L_hretry")
    a(f"s_add_u32 s{sSpin}, s{sSpin}, 16")
    a(f"s_cmp_gt_u32 s{sSpin}, {1<<22}")
    a("s_cbranch_scc1 L_hok")
    a(f"buffer_load_dwordx4 {q4(vGh)}, v{aGh}, {srd(S_WS)}, s{sHg} offen sc1")
    a("s_waitcnt vmcnt(0)")
    check([vGh+1, vGh+3])
    a("s_cbranch_vccnz L_hretry")
    a.label("L_hok")
    red32(vGh, vGh+2)
    a(f"v_mov_b32 v{T0}, v{vGh}"); a("s_nop 1")
    red16(vGh, T0)
    a("s_nop 1")
    a(f"v_add_f32_dpp v{vGh}, v{vGh}, v{vGh} row_ror:8 {DPP}")
    a.wait_vm("b1")
    a(f"v_lshlrev_b32 v{vB1}, 16, v{vB1}")
    rnd(vGh)
    a(f"v_add_f32 v{vHs}, v{vGh}, v{vB1}")
    rnd(vHs)
    a(f"""
    s_mov_b32 s{t0}, 0x3d372713
    s_mov_b32 s{t1}, 0xc0135761
    v_mul_f32 v{T0}, v{vHs}, v{vHs}
    v_mul_f32 v{T0}, s{t0}, v{T0}
    v_fma_f32 v{T0}, v{T0}, v{vHs}, v{vHs}
    v_mul_f32 v{T0}, s{t1}, v{T0}
    v_exp_f32 v{T0}, v{T0}
    s_nop 0
    v_add_f32 v{T0}, 1.0, v{T0}
    v_rcp_f32 v{T0}, v{T0}
    s_nop 0
    v_mul_f32 v{T0}, v{vHs}, v{T0}
    v_cvt_pk_bf16_f32 v{T0}, v{T0}, v{T0}
    v_and_b32 v{T0}, 0xffff, v{T0}
    ds_bpermute_b32 v{vXq}, v{aBm}, v{T0}
    ds_bpermute_b32 v{vXq+1}, v{aBm}, v{T0} offset:16
    ds_bpermute_b32 v{vXq+2}, v{aBe2}, v{T0}
    """)
    zero(vAcc3)
    a("s_waitcnt lgkmcnt(0)")
    for i in range(3): a(f"v_lshlrev_b32 v{vXqh+i}, 16, v{vXq+i}")
    a.wait_vm("w2")
    for i in range(2): mac8(vAcc2, vW2+4*i, vXq+i, vXqh+i)
    mac8(vAcc3, vW2+8, vXq+2, vXqh+2)
    def red_tile(accM, accE, lbase):
        red8regs(accM, accE)
        a("s_nop 1")
        for r in (accM, accM+1, accE, accE+1):
            a(f"v_add_f32_dpp v{r}, v{r}, v{r} row_ror:8 {DPP}")
        a("s_nop 0")
        for r in (accE, accE+1):
            a(f"v_add_f32_dpp v{r}, v{r}, v{r} row_ror:4 {DPP}")
        a(f"ds_write_b64 v{aLSm}, {q2(accM)} offset:{lbase}")
        a("s_nop 0")
        for r in (accE, accE+1):
            a(f"v_add_f32_dpp v{r}, v{r}, v{r} quad_perm:[2,3,0,1] {DPP}")
        a(f"ds_write_b64 v{aLSe}, {q2(accE)} offset:{lbase}")
    red_tile(vAcc2, vAcc3, L_YP)
    zero(vAcc2)
    stamp("mlp")
    otags = [vG+1, vG+3, vG+5, vG+7, vG+9, vG+11]
    vGB = vS0
    LF = opts.get("lf", "sc1").replace("+", " ")
    def po_loads(b):
        a(f"buffer_load_dwordx4 {q4(b)}, v{aG}, {srd(S_WS)}, s{sOg} offen {LF}")
        a(f"buffer_load_dwordx4 {q4(b+4)}, v{aG}, {srd(S_WS)}, s{sOg2} offen {LF}")
        a(f"buffer_load_dwordx4 {q4(b+8)}, v{aSt1}, {srd(S_WS)}, s{sSt} offen {LF}")
    C0, C1, C2, C3, CM, CL = [vAcc3 + k for k in range(6)]
    def copyC(b):
        for d, k in ((C0, 0), (C1, 2), (C2, 4), (C3, 6), (CM, 8), (CL, 10)): a(f"v_mov_b32 v{d}, v{b+k}")
    if opts.get("gate", "1") == "1":
        a.label("L_gate")
        a(f"ds_read_b32 v{T4}, v{aZero} offset:{L_FO}")
        a("s_waitcnt lgkmcnt(0)")
        a(f"v_readfirstlane_b32 s{t0}, v{T4}")
        a("s_nop 0")
        a(f"s_cmp_lt_u32 s{t0}, 8")
        a("s_cbranch_scc0 L_gate_ok")
        a("s_sleep 1")
        a("s_branch L_gate")
        a.label("L_gate_ok")
    if int(opts.get("presleep", "0")): a(f"s_sleep {opts['presleep']}")
    if opts.get("pipe", "0") == "1":
        po_loads(vG)
        a(f"s_sleep {opts.get('posleep', '6')}")
        a.label("L_oretry")
        po_loads(vGB)
        a(f"s_add_u32 s{sSpin}, s{sSpin}, 65536")
        a("s_waitcnt vmcnt(3)")
        check_mm(otags, T0, T1)
        a(f"s_cmp_gt_u32 s{sSpin}, 0x7f000000")
        a("s_cbranch_scc1 L_ookA")
        a("s_cbranch_vccz L_ookA")
        po_loads(vG)
        a(f"s_add_u32 s{sSpin}, s{sSpin}, 65536")
        a("s_waitcnt vmcnt(3)")
        check_mm([t - vG + vGB for t in otags], T0, T1)
        a("s_cbranch_vccnz L_oretry")
        copyC(vGB)
        a("s_branch L_ook")
        a.label("L_ookA")
        copyC(vG)
    else:
        a.label("L_oretry")
        po_loads(vG)
        a(f"s_add_u32 s{sSpin}, s{sSpin}, 65536")
        a("s_waitcnt vmcnt(0)")
        check_mm(otags, T0, T1)
        a(f"s_cmp_gt_u32 s{sSpin}, 0x7f000000")
        a("s_cbranch_scc1 L_ookA")
        a("s_cbranch_vccz L_ookA")
        if int(opts.get("loopsleep", "0")): a(f"s_sleep {opts['loopsleep']}")
        a("s_branch L_oretry")
        a.label("L_ookA")
        copyC(vG)
    a.label("L_ook")
    a.vm = []
    stamp("pollo")
    a(f"v_mov_b32 v{T0}, v{CM}")
    for n in (4, 2, 1):
        a("s_nop 1")
        a(f"v_max_f32_dpp v{T0}, v{T0}, v{T0} row_ror:{n} {DPP}")
    a(f"""
    v_sub_f32 v{T1}, v{CM}, v{T0}
    v_mul_f32 v{T1}, s{sLog2e}, v{T1}
    v_exp_f32 v{T1}, v{T1}
    s_nop 0
    v_mul_f32 v{T2}, v{T1}, v{CL}
    s_nop 0
    v_mov_b32_dpp v{T3}, v{T1} row_newbcast:0 {DPP}
    v_mov_b32_dpp v{T4}, v{T1} row_newbcast:4 {DPP}
    v_add_f32_dpp v{T2}, v{T2}, v{T2} row_ror:4 {DPP}
    v_mul_f32 v{C0}, v{C0}, v{T3}
    v_mul_f32 v{C1}, v{C1}, v{T3}
    v_add_f32_dpp v{T2}, v{T2}, v{T2} row_ror:2 {DPP}
    v_fmac_f32 v{C0}, v{C2}, v{T4}
    v_fmac_f32 v{C1}, v{C3}, v{T4}
    v_add_f32_dpp v{T2}, v{T2}, v{T2} row_ror:1 {DPP}
    s_nop 0
    v_permlane32_swap_b32 v{C0}, v{C1}
    v_add_f32 v{C0}, v{C0}, v{C1}
    v_rcp_f32 v{T2}, v{T2}
    v_mov_b32 v{T0}, v{C0}
    s_nop 1
    v_permlane16_swap_b32 v{C0}, v{T0}
    v_add_f32 v{C0}, v{C0}, v{T0}
    v_mul_f32 v{C0}, v{C0}, v{T2}
    v_cvt_pk_bf16_f32 v{C0}, v{C0}, v{C0}
    v_and_b32 v{C0}, 0xffff, v{C0}
    """)
    for i in range(4): a(f"ds_bpermute_b32 v{vXq+i}, v{aBm}, v{C0} offset:{16*i}")
    a(f"ds_bpermute_b32 v{vXq+4}, v{aBe}, v{C0}")
    for i in range(5):
        a(f"s_waitcnt lgkmcnt({4-i})")
        a(f"v_lshlrev_b32 v{vXqh+i}, 16, v{vXq+i}")
        mac8(vAcc if i < 4 else vAcc2, vWO+4*i, vXq+i, vXqh+i)
    red_tile(vAcc, vAcc2, L_SP)
    a("s_waitcnt vmcnt(0) lgkmcnt(0)")
    a("s_barrier")
    a(f"""
    s_cmp_gt_u32 s{sW}, 1
    s_cbranch_scc1 L_pubs_done
    s_mov_b32 exec_hi, 0xff
    s_cmp_eq_u32 s{sW}, 0
    s_cbranch_scc1 L_pubs_s
    s_cmp_eq_u32 s{sMlp}, 0
    s_cbranch_scc1 L_pubs_skip
    s_add_u32 s{t0}, s{sSp}, {WS_Y}
    """)
    pub_sum(4, L_YP, 320, t0, voff=aS)
    a("s_branch L_pubs_skip")
    a.label("L_pubs_s")
    pub_sum(4, L_SP, 320, sK, voff=aS)
    a.label("L_pubs_skip")
    a("s_mov_b64 exec, -1")
    a.label("L_pubs_done")
    if opts.get("b6", "1") == "1": a("s_barrier")
    stamp("pubs")
    nfin = int(opts.get("nfin", "2"))
    a(f"""
    s_cmp_lt_u32 s{sG}, 27
    s_cbranch_scc1 L_fin
    s_cmp_lt_u32 s{sW}, {4-nfin}
    s_cbranch_scc1 L_fin
    v_mov_b32 v{vFF+28}, 0
    v_mov_b32 v{vFF+29}, s{sT}
    v_mov_b32 v{vFF+30}, 0
    v_mov_b32 v{vFF+31}, s{sT}
    """)
    if int(opts.get("fpre", "0")): a(f"s_sleep {opts['fpre']}")
    a.label("L_pollf")
    for i in range(4):
        a(f"buffer_load_dwordx4 {q4(vFF+4*i)}, v{aKV}, {srd(S_WS)}, s{sFS} offen offset:{1024*i} sc1")
    for i in range(3):
        a(f"buffer_load_dwordx4 {q4(vFF+16+4*i)}, v{aKV}, {srd(S_WS)}, s{sFY} offen offset:{1024*i} sc1")
    a("s_mov_b32 exec_lo, 0xffffff")
    a("s_mov_b32 exec_hi, 0")
    a(f"buffer_load_dwordx4 {q4(vFF+28)}, v{aKV}, {srd(S_WS)}, s{sFY} offen offset:3072 sc1")
    a("s_mov_b64 exec, -1")
    a(f"s_add_u32 s{sSpin}, s{sSpin}, 65536")
    a("s_waitcnt vmcnt(0)")
    check_mm([vFF+4*i+k for i in range(8) for k in (1, 3)], T0, T1)
    a(f"s_cmp_gt_u32 s{sSpin}, 0x7f000000")
    a("s_cbranch_scc1 L_pollf_done")
    a("s_cbranch_vccz L_pollf_done")
    if int(opts.get("floop", "0")): a(f"s_sleep {opts['floop']}")
    a("s_branch L_pollf")
    a.label("L_pollf_done")
    for (dst, base) in ((vG, vFF), (vG+2, vFF+16)):
        a(f"v_add_f32 v{dst}, v{base}, v{base+4}")
        a(f"v_add_f32 v{dst+1}, v{base+2}, v{base+6}")
        a(f"v_add_f32 v{T2}, v{base+8}, v{base+12}")
        a(f"v_add_f32 v{T3}, v{base+10}, v{base+14}")
        a(f"v_add_f32 v{dst}, v{dst}, v{T2}")
        a(f"v_add_f32 v{dst+1}, v{dst+1}, v{T3}")
    a("s_nop 0")
    red32(vG, vG+1); red32(vG+2, vG+3)
    a(f"v_mov_b32 v{T2}, v{vG}"); a(f"v_mov_b32 v{T3}, v{vG+2}"); a("s_nop 0")
    red16(vG, T2); red16(vG+2, T3)
    a("s_nop 0")
    a(f"v_add_f32_dpp v{vG}, v{vG}, v{vG} row_ror:8 {DPP}")
    a(f"v_add_f32_dpp v{vG+2}, v{vG+2}, v{vG+2} row_ror:8 {DPP}")
    a(f"""
    v_lshrrev_b32 v{T4}, 5, v{vL}
    v_lshlrev_b32 v{T4}, 4, v{T4}
    v_lshrrev_b32 v{vB2}, v{T4}, v{vB2}
    v_lshlrev_b32 v{vB2}, 16, v{vB2}
    v_lshrrev_b32 v{vXf}, v{T4}, v{vXf}
    v_lshlrev_b32 v{vXf}, 16, v{vXf}
    """)
    rnd(vG); rnd(vG+2)
    a(f"v_add_f32 v{vG+2}, v{vG+2}, v{vB2}")
    rnd(vG+2)
    a(f"""
    v_mul_f32 v{T2}, s{sLog2e}, v{vG+2}
    v_sub_f32 v{T2}, 0, v{T2}
    v_exp_f32 v{T2}, v{T2}
    s_nop 0
    v_add_f32 v{T2}, 1.0, v{T2}
    v_rcp_f32 v{T2}, v{T2}
    s_nop 0
    v_mul_f32 v{vG+2}, v{vG+2}, v{T2}
    """)
    rnd(vG+2)
    a(f"v_mul_f32 v{vG}, v{vG}, v{vG+2}")
    rnd(vG)
    a(f"""
    v_add_f32 v{vG}, v{vG}, v{vXf}
    v_cvt_pk_bf16_f32 v{vG}, v{vG}, v{vG}
    v_lshrrev_b32 v{T4}, 5, v{vL}
    v_lshl_add_u32 v{aX4}, v{T4}, 1, v{aX4}
    s_mov_b32 exec_lo, 0xff
    s_mov_b32 exec_hi, 0xff
    buffer_store_short v{vG}, v{aX4}, {srd(S_OUT)}, s{sC} offen
    s_cmp_eq_u32 s{sC}, 0
    s_cbranch_scc0 L_fin0
    s_cmp_eq_u32 s{sW}, 3
    s_cbranch_scc0 L_fin0
    v_mov_b32 v{T2}, s{sT}
    s_mov_b64 exec, 1
    buffer_store_dword v{T2}, v{aZero}, {srd(S_WS)}, 0 offen sc1
    """)
    a.label("L_fin0")
    a("s_mov_b64 exec, -1")
    a("s_branch L_fin")
    a.label("L_kv")
    a.vm = []
    a(f"""
    s_sub_u32 s{sKW}, s{sW}, {NAUX}
    s_lshl_b32 s{sK}, s{sG}, 20
    s_lshl_b32 s{t2}, s{sJ}, 15
    s_add_u32 s{sK}, s{sK}, s{t2}
    s_lshl_b32 s{t2}, s{sKW}, 12
    s_add_u32 s{sK}, s{sK}, s{t2}
    s_add_u32 s{sK}, s{sK}, {3072*256}
    v_lshlrev_b32 v{aLq}, 5, v{T1}
    v_lshl_add_u32 v{aLq}, v{T0}, 3, v{aLq}
    s_lshl_b32 s{t0}, s{sKW}, 9
    v_add_u32 v{aLq}, s{t0}, v{aLq}
    v_lshlrev_b32 v{aLqr}, 4, v{T1}
    s_mov_b32 s{sScale}, 0x3db504f3
    s_lshl_b32 s{t0}, s{sKW}, 2
    v_mov_b32 v{aPub}, s{t0}
    s_waitcnt lgkmcnt(0)
    s_barrier                                    ; Bs
    """)
    for x in kvseq:
        if x[0] == "k": a.vmem(f"buffer_load_dwordx4 {q4(vK+4*int(x[1]))}, v{aKV}, {srd(S_K)}, s{sK} offen offset:{1024*int(x[1])}{NT}", x)
        elif x[0] == "v": a.vmem(f"buffer_load_dwordx4 {q4(vV+4*int(x[1]))}, v{aKV}, {srd(S_V)}, s{sK} offen offset:{1024*int(x[1])}{NT}", x)
        elif x[0] == "W": a.wait_vm(x[1:])
        elif x == "bar": a("s_barrier")
        elif x[0] == "S":
            kw = int(x[1]); tg = x[2:]
            idx = a.vm.index(tg)
            a(f"s_cmp_eq_u32 s{sKW}, {kw}")
            a(f"s_cbranch_scc0 L_skipS")
            a(f"s_waitcnt vmcnt({len(a.vm)-1-idx})")
            a.label("L_skipS")
    for i in range(4): a(f"v_mov_b32 v{vAcc3+i}, 0")
    zero(vAcc)
    a("s_barrier")
    stamp("b0")
    a("s_barrier")
    a.wait_vm("k0", "k1", "k2", "k3")
    a(f"v_mov_b32 v{vE}, 1")
    a.label("L_wq")
    a(f"ds_read_b32 v{T4}, v{aZero} offset:{L_FQ}")
    a(f"ds_read_b128 {q4(vQ)}, v{aLqr} offset:{L_Q}")
    a("s_waitcnt lgkmcnt(0)")
    a(f"v_readfirstlane_b32 s{t0}, v{T4}")
    a("s_nop 0")
    a(f"s_cmp_eq_u32 s{t0}, 0")
    a("s_cbranch_scc1 L_wq")
    stamp("pollq")
    vSc = vAcc3
    for k in range(4):
        for i in range(4):
            a(f"v_dot2c_f32_bf16 v{vSc+i}, v{vK+4*i+k}, v{vQ+k}")
    a("s_nop 2")
    D = "row_mask:0xf"
    a(f"v_add_f32_dpp v{T0}, v{vSc+0}, v{vSc+0} row_ror:8 {D} bank_mask:0x3")
    a(f"v_add_f32_dpp v{T1}, v{vSc+1}, v{vSc+1} row_ror:8 {D} bank_mask:0x3")
    a(f"v_add_f32_dpp v{T0}, v{vSc+2}, v{vSc+2} row_ror:8 {D} bank_mask:0xc")
    a(f"v_add_f32_dpp v{T1}, v{vSc+3}, v{vSc+3} row_ror:8 {D} bank_mask:0xc")
    a("s_nop 0")
    a(f"v_add_f32_dpp v{T2}, v{T0}, v{T0} row_shl:4 {D} bank_mask:0x5")
    a(f"v_add_f32_dpp v{T2}, v{T1}, v{T1} row_shr:4 {D} bank_mask:0xa")
    a("s_nop 1")
    a(f"v_add_f32_dpp v{T2}, v{T2}, v{T2} quad_perm:[2,3,0,1] {DPP}")
    a("s_nop 1")
    a(f"v_add_f32_dpp v{T2}, v{T2}, v{T2} quad_perm:[1,0,3,2] {DPP}")
    rnd(T2)
    a(f"v_mul_f32 v{T2}, s{sScale}, v{T2}")
    rnd(T2)
    a(f"v_mov_b32 v{T0}, v{T2}")
    wave_red("max", T0, T1, rors=(8, 4))
    a(f"""
    ds_write_b32 v{aPub}, v{T0} offset:{L_MX}
    s_mov_b64 exec, 1
    ds_add_u32 v{aZero}, v{vE} offset:{L_FM}
    s_mov_b64 exec, -1
    L_wm:
    ds_read_b32 v{T4}, v{aZero} offset:{L_FM}
    ds_read_b128 {q4(vG)}, v{aZero} offset:{L_MX}
    ds_read_b128 {q4(vG+8)}, v{aZero} offset:{L_MX+16}
    s_waitcnt lgkmcnt(0)
    v_readfirstlane_b32 s{t0}, v{T4}
    s_nop 0
    s_cmp_lt_u32 s{t0}, 8
    s_cbranch_scc1 L_wm
    v_max3_f32 v{T0}, v{vG}, v{vG+1}, v{vG+2}
    v_max3_f32 v{T1}, v{vG+3}, v{vG+8}, v{vG+9}
    v_max3_f32 v{T0}, v{T0}, v{vG+10}, v{vG+11}
    v_max_f32 v{vMj}, v{T0}, v{T1}
    v_sub_f32 v{T2}, v{T2}, v{vMj}
    v_mul_f32 v{T2}, s{sLog2e}, v{T2}
    v_exp_f32 v{T2}, v{T2}
    s_nop 0
    v_cvt_pk_bf16_f32 v{vPl}, v{T2}, v{T2}
    v_mov_b32 v{vLs}, v{T2}
    v_and_b32 v{vPh}, 0xffff0000, v{vPl}
    v_and_b32 v{vPl}, 0xffff, v{vPl}
    """)
    stamp("smax")
    a("s_nop 1")
    for i in range(4):
        a.wait_vm(f"v{i}")
        mac8(vAcc, vV+4*i, vPl, vPh, dpp=f"row_newbcast:{4*i}")
    red8regs(vAcc)
    a(f"ds_write_b64 v{aLq}, {q2(vAcc)} offset:{L_OP}")
    wave_red("add", vLs, T1, rors=(8, 4), first_nop=False)
    a(f"""
    ds_write_b32 v{aPub}, v{vLs} offset:{L_LS}
    s_mov_b64 exec, 1
    ds_add_u32 v{aZero}, v{vE} offset:{L_FO}
    s_mov_b64 exec, -1
    """)
    stamp("b4")
    a.label("L_fin")
    if stamps and echo is not None:
        stamp("end")
        ie = sel.index("end")
        a(f"""
        s_waitcnt lgkmcnt(0)
        s_cmp_eq_u32 s2, 27
        s_cbranch_scc0 L_end
        s_cmp_eq_u32 s{sW}, 3
        s_cbranch_scc0 L_end
        s_sub_u32 s{t0}, s{SP[echo]}, s{SP[0]}
        s_add_u32 s{t0}, s{t0}, s{SP[ie]}
        """)
        a.label("L_echo")
        a(f"""
        s_memrealtime s[16:17]
        s_waitcnt lgkmcnt(0)
        s_sub_u32 s18, s16, s{t0}
        s_cmp_lt_i32 s18, 0
        s_cbranch_scc1 L_echo
        """)
    elif stamps:
        stamp("end")
        a("s_waitcnt lgkmcnt(0)")
        a(f"""
        s_lshl_b32 s{t0}, s2, 4
        s_add_u32 s{t0}, s{t0}, s{sW}
        s_lshl_b32 s{t0}, s{t0}, 7
        s_add_u32 s{t0}, s{t0}, {WS_TS}
        """)
        for k in range(len(SP)):
            a(f"v_mov_b32 v{vG+k}, s{SP[k]}")
        a(f"v_mov_b32 v{vG+len(SP)}, s{sSpin}")
        a("s_mov_b64 exec, 1")
        for k in range(3):
            a(f"buffer_store_dwordx4 {q4(vG+4*k)}, v{aZero}, {srd(S_WS)}, s{t0} offen offset:{16*k}")
    a.label("L_end")
    a("s_endpgm")
    SFL = opts.get("sf", "sc1").replace("+", " ")
    if SFL != "sc1":
        a.l = [(l.replace(" offen sc1", " offen " + SFL) if ("buffer_store" in l and l.endswith("sc1")) else l) for l in a.l]
    FFL = opts.get("ff", "sc1").replace("+", " ")
    if FFL != "sc1":
        a.l = [(l[:-3] + FFL if ("buffer_load_dwordx4" in l and l.endswith("sc1") and (f"s{sFS} offen" in l or f"s{sFY} offen" in l)) else l) for l in a.l]
    body = "\n".join(a.l) + "\n"
    src = HDR_COMMENT + f"""; Override launch geometry by editing the next line (default: block=256,
; grid=ceil(out_elems/256), lds=0). Harness parses it; keep it on one line.
; @launch grid=(256,1,1) block=({NW*64},1,1) lds={LDS}
.amdgcn_target "amdgcn-amd-amdhsa--gfx950"
.text
.globl {KN}
.p2align 8
.type {KN},@function
{KN}:
{body}
.section .rodata,"a"
.p2align 6
.amdhsa_kernel {KN}
  .amdhsa_next_free_vgpr {NV}
  .amdhsa_next_free_sgpr 102
  .amdhsa_accum_offset {NV}
  .amdhsa_group_segment_fixed_size 0
  .amdhsa_kernarg_size 104
  .amdhsa_user_sgpr_count 2
  .amdhsa_user_sgpr_kernarg_segment_ptr 1
  .amdhsa_system_sgpr_workgroup_id_x 1
.end_amdhsa_kernel
"""
    return src

if __name__ == "__main__":
    import argparse
    p = argparse.ArgumentParser()
    p.add_argument("-o", default="k8.s")
    p.add_argument("--stamps", action="store_true")
    p.add_argument("--no-nt", action="store_true")
    p.add_argument("--echo", type=int, default=None)
    p.add_argument("--opt", action="append", default=[])
    args = p.parse_args()
    opts = dict(o.split("=") for o in args.opt)
    open(args.o, "w").write(gen(nt=not args.no_nt, stamps=args.stamps, echo=args.echo, opts=opts))
```

```python
import sys
KN = "recurrent_scan__sliding_block_cached__dense_activation_gelu__decode_kernel"
HDR_COMMENT = open("recurrent_scan__sliding_block_cached__dense_activation_gelu__decode.s.ref").read().split("; Override launch")[0]

class A:
    def __init__(self):
        self.l = []; self.vm = []
    def __call__(self, s):
        for line in s.strip("\n").split("\n"):
            line = line.strip()
            if line: self.l.append("  " + line)
    def label(self, n): self.l.append(n + ":")
    def vmem(self, s, tag):
        self(s); self.vm.append(tag)
    def wait_vm(self, *tags):
        idxs = [i for i, t in enumerate(self.vm) if t in tags]
        if not idxs: return
        idx = max(idxs)
        n = len(self.vm) - 1 - idx
        self(f"s_waitcnt vmcnt({min(n,63)})")
        self.vm = self.vm[idx + 1:]

WS_EPOCH = 0
WS_Q  = 0x1000
WS_H  = WS_Q + 32*8*1024
WS_O  = WS_H + 32*8*512
WS_ST = WS_O + 32*8*1024
WS_S  = WS_ST + 32*8*128
WS_Y  = WS_S + 40*32*128
WS_TS = WS_Y + 40*32*128
NW = 12
NAUX = 4
TSW = 16
WS_END = WS_TS + 256*TSW*128
TAGC = 0x9E3779B9
OOB = 0x7f000000
DEF_STAMPS = "start,pq1,b0,pollq,smax,pubo,pollo,pubs,end"

def gen(nt=True, stamps=False, echo=None, opts=None):
    opts = opts or {}
    a = A()
    NT = " nt" if nt else ""
    S_X, S_K, S_V, S_WQ, S_WO, S_W1, S_B1, S_W2, S_B2, S_OUT, S_WS = [44 + 4*i for i in range(11)]
    srd = lambda b: f"s[{b}:{b+3}]"
    sG, sJ, sW, sT = 3, 4, 5, 6
    t0, t1, t2, t3 = 7, 8, 9, 10
    sSpin = 11
    sM = 12
    sKW = 14
    sA0 = 16
    sK = 21; sWO = [17,18,19,20]; sW2 = [22,23]
    sXo = 25
    sQg = 26; sHg = 27; sOg = 28; sSt = 29
    sPub = 30; sOg2 = 31; sOp = 32; sStp = 33
    sSp = 34; sMlp = 35
    sScale, sLog2e = 36, 37
    sC = 38; sOobM = 39
    sFS = 24; sFY = 15; sGC = 16
    SHIFT = int(opts.get('shift', '1'))
    SP = [88,90,92,94,96,98,100,40,42]
    sel = opts.get("stamps", DEF_STAMPS).split(",")
    def stamp(name):
        if stamps and name in sel:
            r = SP[sel.index(name)]; a(f"s_memrealtime s[{r}:{r+1}]")
    vL = 1
    (aKV, aT, aWOm, aWOe, aW2e, aXa, aX4, aG, aGh, aSt1,
     aLq, aL8, aLqr, aLSm, aLSe, aS, aBm, aBe, aZero, aPub, aB1, aBe2) = range(2, 24)
    T0, T1, T2, T3, T4 = 26, 27, 28, 29, 30
    vE = 31; vX4 = 32; vX16 = 36
    vXa = 40; vXb = 41; vXah = 42; vXbh = 43
    vXq = 44; vXqh = 49
    vMj = 54; vLs = 55; vB1 = 56; vXf = 57; vB2 = 58; vPl = 59; vPh = 60; vHs = 61
    vQ = 64; vAcc = 68; vAcc2 = 76; vAcc3 = 84; vG = 92
    vK = 108; vV = 124
    vTile = 76; xs = list(range(156, 166))
    vP1 = 124
    vWO = 108
    NV = 168
    vP1 = 76; vWO = 108; vW2 = 128; vGh = 140; vS0 = 144; vFF = 108
    q4 = lambda b: f"v[{b}:{b+3}]"
    q2 = lambda b: f"v[{b}:{b+1}]"
    L_OP = 0; L_Q = 4096; L_MX = 4352; L_LS = 4384; L_SP = 4608; L_YP = 5888; L_FQ = 7168; L_FM = 7172; L_FO = 7176; LDS = 7424
    DPP = "row_mask:0xf bank_mask:0xf"

    def zero(base, n=8):
        for k in range(n): a(f"v_mov_b32 v{base+k}, 0")
    def rnd(v):
        a(f"v_cvt_pk_bf16_f32 v{v}, v{v}, v{v}"); a(f"v_and_b32 v{v}, 0xffff0000, v{v}")
    def wave_red(op, v, t, rors=(8,4,2,1), s16=True, s32=True, first_nop=True):
        for n_i, n in enumerate(rors):
            if n_i > 0 or first_nop: a("s_nop 1")
            a(f"v_{op}_f32_dpp v{v}, v{v}, v{v} row_ror:{n} {DPP}")
        if s16:
            a(f"v_mov_b32 v{t}, v{v}"); a("s_nop 1")
            a(f"v_permlane16_swap_b32 v{v}, v{t}"); a(f"v_{op}_f32 v{v}, v{v}, v{t}")
        if s32:
            a(f"v_mov_b32 v{t}, v{v}"); a("s_nop 1")
            a(f"v_permlane32_swap_b32 v{v}, v{t}"); a(f"v_{op}_f32 v{v}, v{v}, v{t}")
    def red32(x, y):
        a(f"v_permlane32_swap_b32 v{x}, v{y}"); a(f"v_add_f32 v{x}, v{x}, v{y}")
    def red16(x, y, d=None):
        a(f"v_permlane16_swap_b32 v{x}, v{y}"); a(f"v_add_f32 v{x if d is None else d}, v{x}, v{y}")
    def red8regs(*accs):
        a("s_nop 2")
        for acc in accs:
            red32(acc+0, acc+4); red32(acc+2, acc+6); red32(acc+1, acc+5); red32(acc+3, acc+7)
        a("s_nop 0")
        for acc in accs:
            red16(acc+0, acc+2); red16(acc+1, acc+3)
    def mac8(acc, w, lo, hi, dpp=""):
        for k in range(4):
            if dpp:
                a(f"v_dot2c_f32_bf16_dpp v{acc+2*k}, v{lo}, v{w+k} {dpp} {DPP}")
                a(f"v_dot2c_f32_bf16_dpp v{acc+2*k+1}, v{hi}, v{w+k} {dpp} {DPP}")
            else:
                a(f"v_dot2c_f32_bf16 v{acc+2*k}, v{w+k}, v{lo}")
                a(f"v_dot2c_f32_bf16 v{acc+2*k+1}, v{w+k}, v{hi}")
    def check(tags):
        if opts.get("noexch") == "1":
            a("s_mov_b64 vcc, 0"); return
        a(f"v_cmp_ne_u32 vcc, s{sT}, v{tags[0]}")
        for tg in tags[1:]:
            a(f"v_cmp_ne_u32 s[{sM}:{sM+1}], s{sT}, v{tg}")
            a(f"s_or_b64 vcc, vcc, s[{sM}:{sM+1}]")
    def check_mm(tags, ta, tb):
        for op, t in (("min", ta), ("max", tb)):
            a(f"v_{op}3_u32 v{t}, v{tags[0]}, v{tags[1]}, v{tags[2]}")
            i = 3
            while i < len(tags):
                if i + 1 < len(tags):
                    a(f"v_{op}3_u32 v{t}, v{t}, v{tags[i]}, v{tags[i+1]}"); i += 2
                else:
                    a(f"v_{op}_u32 v{t}, v{t}, v{tags[i]}"); i += 1
        check([ta, tb])
    def pub_sum(nparts, lbase, stride, soff, voff=aKV):
        for k in range(nparts):
            a(f"ds_read_b64 {q2(vS0+2*k)}, v{aL8} offset:{lbase+stride*k}")
        a(f"v_mov_b32 v{T1}, s{sT}")
        a(f"v_mov_b32 v{T3}, s{sT}")
        step = 1; first = True
        while step < nparts:
            for k in range(0, nparts, 2*step):
                if first: a(f"s_waitcnt lgkmcnt({nparts - (k+2)})")
                last = (2*step >= nparts)
                d0, d1 = (T0, T2) if last else (vS0+2*k, vS0+2*k+1)
                a(f"v_add_f32 v{d0}, v{vS0+2*k}, v{vS0+2*(k+step)}")
                a(f"v_add_f32 v{d1}, v{vS0+2*k+1}, v{vS0+2*(k+step)+1}")
            first = False; step *= 2
        a(f"buffer_store_dwordx4 v[{T0}:{T3}], v{voff}, {srd(S_WS)}, s{soff} offen sc1")

    kvseq = opts.get("kvseq", "k0 k1 k2 k3 bar v0 v1 v2 v3 Wk3").replace("+", " ").split()

    a("s_cmp_ge_u32 s2, 256")
    a("s_cbranch_scc1 L_end")
    stamp("start")
    order = [(S_X,0),(S_WQ,3),(S_W1,6),(S_WS,12),(S_K,1),(S_V,2),(S_WO,4),(S_B1,7),(S_W2,8),(S_B2,9),(S_OUT,10)]
    for b, i in order:
        a(f"s_load_dwordx2 s[{b}:{b+1}], s[0:1], {8*i}")
    a(f"""
    v_lshrrev_b32 v{T0}, 6, v0
    v_and_b32 v{vL}, 63, v0
    s_and_b32 s{sG}, s2, 31
    s_lshr_b32 s{sJ}, s2, 5
    v_readfirstlane_b32 s{sW}, v{T0}
    v_lshlrev_b32 v{aKV}, 4, v{vL}
    v_lshrrev_b32 v{T0}, 4, v{vL}
    v_and_b32 v{T1}, 15, v{vL}
    v_lshrrev_b32 v{T2}, 3, v{vL}
    v_and_b32 v{T3}, 7, v{vL}
    v_mov_b32 v{aZero}, 0
    """)
    sizes = {S_X:1280, S_WQ:5242880, S_WS:WS_END, S_K:33554432, S_V:33554432, S_WO:5242880, S_W1:2211840, S_B1:3456, S_W2:2211840, S_B2:1280, S_OUT:1280}
    for b, sz in sizes.items():
        a(f"s_mov_b32 s{b+2}, {sz}")
        a(f"s_mov_b32 s{b+3}, 0x20000")
    a(f"""
    s_cmp_lt_u32 s{sG}, 27
    s_cselect_b32 s{sMlp}, 1, 0
    s_cselect_b32 s{sOobM}, 0, {OOB}
    s_mov_b32 s{sSpin}, 0
    s_mov_b32 s{sLog2e}, 0x3fb8aa3b
    s_cmp_ge_u32 s{sW}, {NAUX}
    s_cbranch_scc1 L_kv
    s_cmp_gt_u32 s{sW}, 1
    s_cbranch_scc1 L_aux23
    """)
    a(f"""
    s_setprio 3
    s_mul_i32 s{t0}, s{sJ}, 80
    s_lshl_b32 s{sXo}, s{t0}, 1
    v_lshlrev_b32 v{aX4}, 2, v{vL}
    v_lshl_add_u32 v{aXa}, v{T1}, 2, v{T0}
    v_lshlrev_b32 v{aXa}, 1, v{aXa}
    s_cmp_eq_u32 s{sW}, 0
    s_cbranch_scc0 L_role_h0
    v_lshlrev_b32 v{aT}, 13, v{T0}
    v_lshl_add_u32 v{aT}, v{T1}, 4, v{aT}
    s_lshl_b32 s{sA0}, s{t0}, 13
    s_lshl_b32 s{t2}, s{sG}, 8
    s_add_u32 s{sA0}, s{sA0}, s{t2}
    v_lshlrev_b32 v{aPub}, 6, v{T1}
    v_lshl_add_u32 v{aPub}, v{T0}, 4, v{aPub}
    s_lshl_b32 s{sPub}, s{sG}, 13
    s_lshl_b32 s{t2}, s{sJ}, 10
    s_add_u32 s{sPub}, s{sPub}, s{t2}
    s_add_u32 s{sPub}, s{sPub}, {WS_Q}
    s_waitcnt lgkmcnt(0)
    """)
    def xloads():
        a.vmem(f"buffer_load_dwordx4 {q4(vX16)}, v{aKV}, {srd(S_X)}, 0 offen", "x")
        a.vmem(f"buffer_load_dword v{vX4}, v{aX4}, {srd(S_X)}, 0 offen offset:1024", "x")
        a.vmem(f"buffer_load_ushort v{vXa}, v{aXa}, {srd(S_X)}, s{sXo} offen", "x")
        a.vmem(f"buffer_load_ushort v{vXb}, v{aXa}, {srd(S_X)}, s{sXo} offen offset:128", "x")
        a.vmem(f"buffer_load_dword v{vE}, v{aZero}, {srd(S_WS)}, 0 offen sc1", "x")
    xloads()
    for i in range(20):
        a.vmem(f"buffer_load_dwordx4 {q4(vTile+4*i)}, v{aT}, {srd(S_WQ)}, s{sA0} offen{NT}", f"t{i}")
        if i < 19: a(f"s_add_u32 s{sA0}, s{sA0}, 32768")
    a("s_branch L_ln")
    vm_front = list(a.vm)
    a.label("L_role_h0")
    a.vm = []
    a(f"""
    v_mul_u32_u24 v{aT}, 3456, v{T0}
    v_lshl_add_u32 v{aT}, v{T1}, 3, v{aT}
    s_mul_i32 s{sA0}, s{t0}, 3456
    s_lshl_b32 s{t2}, s{sG}, 7
    s_add_u32 s{sA0}, s{sA0}, s{t2}
    s_add_u32 s{sA0}, s{sA0}, s{sOobM}
    v_lshl_add_u32 v{aPub}, v{T1}, 2, v{T0}
    v_lshlrev_b32 v{aPub}, 3, v{aPub}
    s_lshl_b32 s{sPub}, s{sG}, 12
    s_lshl_b32 s{t2}, s{sJ}, 9
    s_add_u32 s{sPub}, s{sPub}, s{t2}
    s_add_u32 s{sPub}, s{sPub}, {WS_H}
    s_waitcnt lgkmcnt(0)
    """)
    xloads()
    for i in range(20):
        a.vmem(f"buffer_load_dwordx2 {q2(vTile+2*i)}, v{aT}, {srd(S_W1)}, s{sA0} offen{NT}", f"t{i}")
        if i < 19: a(f"s_add_u32 s{sA0}, s{sA0}, {4*3456}")
    assert a.vm == vm_front
    a.label("L_ln")
    a("s_barrier")
    zero(vAcc)
    a(f"v_mov_b32 v{T4}, 0x3f803f80")
    a(f"v_mov_b32 v{T0}, 0")
    a.wait_vm("x")
    stamp("x")
    a(f"v_readfirstlane_b32 s{sT}, v{vE}")
    xr = [vX16, vX16+1, vX16+2, vX16+3, vX4]
    for r in xr: a(f"v_dot2c_f32_bf16 v{T0}, v{r}, v{T4}")
    for k, r in enumerate(xr):
        a(f"v_lshlrev_b32 v{xs[2*k]}, 16, v{r}")
        a(f"v_and_b32 v{xs[2*k+1]}, 0xffff0000, v{r}")
    a(f"s_add_u32 s{sT}, s{sT}, {TAGC}")
    wave_red("add", T0, T1, first_nop=False)
    a(f"v_mul_f32 v{T0}, 0x3acccccd, v{T0}")
    for k in range(10): a(f"v_sub_f32 v{xs[k]}, v{xs[k]}, v{T0}")
    a(f"v_mul_f32 v{T2}, v{xs[0]}, v{xs[0]}"); a(f"v_mul_f32 v{T3}, v{xs[1]}, v{xs[1]}")
    for k in range(2, 10, 2):
        a(f"v_fmac_f32 v{T2}, v{xs[k]}, v{xs[k]}"); a(f"v_fmac_f32 v{T3}, v{xs[k+1]}, v{xs[k+1]}")
    a(f"v_add_f32 v{T2}, v{T2}, v{T3}")
    rnd(T0)
    a(f"v_add_f32_dpp v{T2}, v{T2}, v{T2} row_ror:8 {DPP}")
    a(f"v_lshlrev_b32 v{vXa}, 16, v{vXa}"); a(f"v_lshlrev_b32 v{vXb}, 16, v{vXb}")
    a(f"v_add_f32_dpp v{T2}, v{T2}, v{T2} row_ror:4 {DPP}")
    a(f"v_sub_f32 v{vXa}, v{vXa}, v{T0}"); a(f"v_sub_f32 v{vXb}, v{vXb}, v{T0}")
    a(f"v_add_f32_dpp v{T2}, v{T2}, v{T2} row_ror:2 {DPP}")
    a(f"v_cvt_pk_bf16_f32 v{vXa}, v{vXa}, v{vXa}"); a(f"v_cvt_pk_bf16_f32 v{vXb}, v{vXb}, v{vXb}")
    a(f"v_add_f32_dpp v{T2}, v{T2}, v{T2} row_ror:1 {DPP}")
    a(f"v_and_b32 v{vXa}, 0xffff0000, v{vXa}")
    a(f"v_mov_b32 v{T1}, v{T2}")
    a(f"v_and_b32 v{vXb}, 0xffff0000, v{vXb}")
    a("s_nop 0")
    a(f"v_permlane16_swap_b32 v{T2}, v{T1}"); a(f"v_add_f32 v{T2}, v{T2}, v{T1}")
    a(f"v_mov_b32 v{T1}, v{T2}"); a("s_nop 1")
    a(f"v_permlane32_swap_b32 v{T2}, v{T1}"); a(f"v_add_f32 v{T2}, v{T2}, v{T1}")
    a(f"v_mul_f32 v{T2}, 0x3acccccd, v{T2}")
    rnd(T2)
    a(f"v_add_f32 v{T2}, 0x3727c5ac, v{T2}")
    rnd(T2)
    a(f"v_sqrt_f32 v{T2}, v{T2}"); a("s_nop 0")
    rnd(T2)
    a(f"v_rcp_f32 v{T2}, v{T2}"); a("s_nop 0")
    for r in (vXa, vXb): a(f"v_mul_f32 v{r}, v{r}, v{T2}")
    for r in (vXa, vXb): a(f"v_cvt_pk_bf16_f32 v{r}, v{r}, v{r}")
    a(f"v_and_b32 v{vXah}, 0xffff0000, v{vXa}"); a(f"v_and_b32 v{vXbh}, 0xffff0000, v{vXb}")
    a(f"v_and_b32 v{vXa}, 0xffff, v{vXa}"); a(f"v_and_b32 v{vXb}, 0xffff, v{vXb}")
    a(f"v_mov_b32 v{T1}, s{sT}")
    a(f"v_mov_b32 v{T3}, s{sT}")
    stamp("ln")
    vm_ln = list(a.vm)
    a(f"s_cmp_eq_u32 s{sW}, 0")
    a("s_cbranch_scc0 L_role_h1")
    for i in range(20):
        a.wait_vm(f"t{i}")
        if i == 19: stamp("tl")
        lo, hi = (vXa, vXah) if i < 16 else (vXb, vXbh)
        for k in range(4):
            a(f"v_dot2c_f32_bf16_dpp v{vAcc+2*k}, v{lo}, v{vTile+4*i+k} row_newbcast:{i%16} {DPP}")
            a(f"v_dot2c_f32_bf16_dpp v{vAcc+2*k+1}, v{hi}, v{vTile+4*i+k} row_newbcast:{i%16} {DPP}")
    a("s_nop 2")
    red32(vAcc+0, vAcc+4); red32(vAcc+2, vAcc+6); red32(vAcc+1, vAcc+5); red32(vAcc+3, vAcc+7)
    a("s_nop 0")
    red16(vAcc+0, vAcc+2, d=T0); red16(vAcc+1, vAcc+3, d=T2)
    a(f"buffer_store_dwordx4 v[{T0}:{T3}], v{aPub}, {srd(S_WS)}, s{sPub} offen sc1")
    a("s_branch L_front_done")
    a.label("L_role_h1")
    a.vm = list(vm_ln)
    for i in range(20):
        a.wait_vm(f"t{i}")
        lo, hi = (vXa, vXah) if i < 16 else (vXb, vXbh)
        for k in range(2):
            a(f"v_dot2c_f32_bf16_dpp v{vAcc+2*k}, v{lo}, v{vTile+2*i+k} row_newbcast:{i%16} {DPP}")
            a(f"v_dot2c_f32_bf16_dpp v{vAcc+2*k+1}, v{hi}, v{vTile+2*i+k} row_newbcast:{i%16} {DPP}")
    a("s_nop 2")
    red32(vAcc+0, vAcc+2); red32(vAcc+1, vAcc+3)
    a("s_nop 1")
    red16(vAcc+0, vAcc+1, d=T0)
    a(f"s_cmp_eq_u32 s{sMlp}, 0")
    a("s_cbranch_scc1 L_front_done")
    a(f"buffer_store_dwordx2 v[{T0}:{T1}], v{aPub}, {srd(S_WS)}, s{sPub} offen sc1")
    a.label("L_front_done")
    a("s_setprio 0")
    stamp("pq1")
    a("s_branch L_aux")
    a.label("L_aux23")
    if opts.get("cpf", "0") != "0":
        nchunk = int(opts.get("cpfn", "9"))
        a(f"s_cmp_eq_u32 s{sW}, 3")
        a("s_cbranch_scc0 L_nocpf")
        a(f"s_and_b32 s{t0}, s{sJ}, {int(opts['cpf'])-1}")
        a(f"s_cmp_eq_u32 s{t0}, 0")
        a("s_cbranch_scc0 L_nocpf")
        a("s_getpc_b64 s[18:19]")
        a.label("L_pc")
        a(f"s_sub_u32 s18, s18, L_pc-{KN}")
        a("s_subb_u32 s19, s19, 0")
        a(f"v_mov_b32 v{vWO}, s18")
        a(f"v_mov_b32 v{vWO+1}, s19")
        a(f"v_add_co_u32 v{vWO}, vcc, v{vWO}, v{aKV}")
        a("s_nop 1")
        a(f"v_addc_co_u32 v{vWO+1}, vcc, 0, v{vWO+1}, vcc")
        for c in range(nchunk):
            a(f"global_load_dwordx4 v[{vWO+4}:{vWO+7}], v[{vWO}:{vWO+1}], off offset:{(c%4)*1024}")
            if c % 4 == 3:
                a(f"v_add_co_u32 v{vWO}, vcc, 0x1000, v{vWO}")
                a("s_nop 1")
                a(f"v_addc_co_u32 v{vWO+1}, vcc, 0, v{vWO+1}, vcc")
        a.label("L_nocpf")
    a(f"v_mov_b32 v{T4}, 0")
    a(f"v_lshlrev_b32 v{aLq}, 2, v{vL}")
    a(f"ds_write_b32 v{aLq}, v{T4} offset:{L_FQ}")
    a("s_waitcnt lgkmcnt(0)")
    a("s_barrier")
    a(f"buffer_load_dword v{vE}, v{aZero}, {srd(S_WS)}, 0 offen sc1")
    a("s_waitcnt vmcnt(0)")
    a(f"v_readfirstlane_b32 s{sT}, v{vE}")
    a("s_nop 0")
    a(f"s_add_u32 s{sT}, s{sT}, {TAGC}")
    auxseq = opts.get("auxseq", "b1 ph w20 w21 w22 wo0 wo1 wo2 wo3 wo4").split() if "auxseq" not in opts else opts["auxseq"].replace("+", " ").split()
    def ld(x):
        if x == "b1":
            a(f"s_lshl_b32 s{t0}, s{sG}, 7"); a(f"s_lshl_b32 s{t1}, s{sW}, 5"); a(f"s_add_u32 s{t0}, s{t0}, s{t1}")
            a.vmem(f"buffer_load_ushort v{vB1}, v{aB1}, {srd(S_B1)}, s{t0} offen", "b1")
        elif x == "ph":
            a.vmem(f"buffer_load_dwordx4 {q4(vGh)}, v{aGh}, {srd(S_WS)}, s{sHg} offen sc1", "ph")
        elif x in ("w20", "w21"):
            i = int(x[2]); a.vmem(f"buffer_load_dwordx4 {q4(vW2+4*i)}, v{aWOm}, {srd(S_W2)}, s{sW2[i]} offen{NT}", "w2")
        elif x == "w22":
            a.vmem(f"buffer_load_dwordx4 {q4(vW2+8)}, v{aW2e}, {srd(S_W2)}, s{sW2[0]} offen{NT}", "w2")
        elif x == "wo4":
            a.vmem(f"buffer_load_dwordx4 {q4(vWO+16)}, v{aWOe}, {srd(S_WO)}, s{sWO[0]} offen{NT}", "wo")
        elif x.startswith("wo"):
            i = int(x[2]); a.vmem(f"buffer_load_dwordx4 {q4(vWO+4*i)}, v{aWOm}, {srd(S_WO)}, s{sWO[i]} offen{NT}", "wo")
        elif x == "xf":
            a(f"v_and_b32 v{aX4}, 28, v{aLq}")
            a.vmem(f"buffer_load_dword v{vXf}, v{aX4}, {srd(S_X)}, s{sC} offen", "xf")
            a.vmem(f"buffer_load_dword v{vB2}, v{aX4}, {srd(S_B2)}, s{sC} offen", "xf")
    a.label("L_aux")
    a.vm = []
    a(f"""
    v_lshrrev_b32 v{T0}, 4, v{vL}
    v_and_b32 v{T1}, 15, v{vL}
    v_lshrrev_b32 v{T2}, 3, v{vL}
    v_and_b32 v{T3}, 7, v{vL}
    v_mul_u32_u24 v{aWOm}, 1280, v{T2}
    v_lshl_add_u32 v{aWOm}, v{T3}, 4, v{aWOm}
    v_lshrrev_b32 v{T4}, 1, v{vL}
    v_mul_u32_u24 v{aWOe}, 1280, v{T4}
    v_and_b32 v{aW2e}, 1, v{vL}
    v_lshl_add_u32 v{aWOe}, v{aW2e}, 4, v{aWOe}
    v_add_u32 v{aWOe}, 128, v{aWOe}
    v_mov_b32 v{aG}, {OOB}
    v_cmp_gt_u32 vcc, 32, v{vL}
    v_lshlrev_b32 v{aL8}, 3, v{vL}
    v_lshlrev_b32 v{aS}, 12, v{T2}
    v_cndmask_b32 v{aW2e}, v{aG}, v{aWOe}, vcc
    v_lshl_add_u32 v{aS}, v{T3}, 4, v{aS}
    v_lshlrev_b32 v{aG}, 10, v{T0}
    v_lshl_add_u32 v{aG}, v{T1}, 4, v{aG}              ; p4*1024 + c*16
    v_lshlrev_b32 v{aGh}, 9, v{T2}
    v_lshl_add_u32 v{aGh}, v{T3}, 4, v{aGh}            ; p8*512 + c3*16
    v_add_u32 v{aSt1}, v{T0}, v{T1}
    v_and_b32 v{aSt1}, 7, v{aSt1}
    v_lshlrev_b32 v{aSt1}, 7, v{aSt1}                  ; ((c+p4)&7)*128
    v_lshlrev_b32 v{aLSm}, 5, v{T3}
    v_lshl_add_u32 v{aLSm}, v{T0}, 3, v{aLSm}
    s_mul_i32 s{t0}, s{sW}, 320
    v_add_u32 v{aLSm}, s{t0}, v{aLSm}
    v_and_b32 v{aLSe}, 1, v{vL}
    v_lshlrev_b32 v{aLSe}, 5, v{aLSe}
    v_lshl_add_u32 v{aLSe}, v{T0}, 3, v{aLSe}
    v_add_u32 v{aLSe}, s{t0}, v{aLSe}
    v_add_u32 v{aLSe}, 256, v{aLSe}
    v_and_b32 v{aBm}, 1, v{T2}
    v_lshlrev_b32 v{aBm}, 5, v{aBm}
    v_lshrrev_b32 v{aBe}, 1, v{T2}
    v_add_lshl_u32 v{aBm}, v{aBm}, v{aBe}, 2           ; ((r8&1)*32 + (r8>>1))*4
    v_and_b32 v{aBe}, 1, v{T4}
    v_lshlrev_b32 v{aBe}, 5, v{aBe}
    v_lshrrev_b32 v{aBe2}, 1, v{T4}
    v_add_lshl_u32 v{aBe}, v{aBe}, v{aBe2}, 2          ; d=l>>1 (0..31): ((d&1)*32 + (d>>1))*4
    v_and_b32 v{aBe2}, 0x9c, v{aBe}
    v_lshrrev_b32 v{aB1}, 5, v{vL}
    v_lshl_add_u32 v{aB1}, v{T3}, 1, v{aB1}
    v_lshlrev_b32 v{aB1}, 1, v{aB1}                    ; (2c3+hi)*2
    v_lshlrev_b32 v{aLq}, 2, v{vL}                     ; l*4
    s_add_u32 s{sGC}, s{sG}, {SHIFT}
    s_and_b32 s{sGC}, s{sGC}, 31
    s_lshl_b32 s{t0}, s{sGC}, 7
    s_lshl_b32 s{t1}, s{sW}, 5
    s_add_u32 s{t0}, s{t0}, s{t1}
    s_mul_i32 s{sWO[0]}, s{t0}, 1280
    s_mul_i32 s{t2}, s{sJ}, 160
    s_add_u32 s{sWO[0]}, s{sWO[0]}, s{t2}
    s_add_u32 s{sWO[1]}, s{sWO[0]}, 10240
    s_add_u32 s{sWO[2]}, s{sWO[0]}, 20480
    s_add_u32 s{sWO[3]}, s{sWO[0]}, 30720
    s_lshl_b32 s{t0}, s{sG}, 6
    s_lshl_b32 s{t1}, s{sW}, 4
    s_add_u32 s{t0}, s{t0}, s{t1}
    s_mul_i32 s{sW2[0]}, s{t0}, 1280
    s_add_u32 s{sW2[0]}, s{sW2[0]}, s{t2}
    s_add_u32 s{sW2[0]}, s{sW2[0]}, s{sOobM}
    s_add_u32 s{sW2[1]}, s{sW2[0]}, 10240
    s_lshl_b32 s{t0}, s{sG}, 13
    s_add_u32 s{sQg}, s{t0}, {WS_Q}
    s_add_u32 s{sPub}, s{sQg}, 4096
    s_lshl_b32 s{t1}, s{sW}, 8
    s_lshl_b32 s{t3}, s{sGC}, 13
    s_add_u32 s{t1}, s{t1}, s{t3}
    s_add_u32 s{sOg}, s{t1}, {WS_O}
    s_add_u32 s{sOg2}, s{sOg}, 4096
    s_lshl_b32 s{t1}, s{sJ}, 10
    s_add_u32 s{t1}, s{t1}, s{t0}
    s_add_u32 s{sOp}, s{t1}, {WS_O}
    s_lshl_b32 s{t0}, s{sG}, 12
    s_lshl_b32 s{t1}, s{sW}, 7
    s_add_u32 s{t1}, s{t1}, s{t0}
    s_add_u32 s{sHg}, s{t1}, {WS_H}
    s_cmp_eq_u32 s{sMlp}, 0
    s_cselect_b32 s{sHg}, s{sQg}, s{sHg}
    s_lshl_b32 s{t0}, s{sG}, 10
    s_add_u32 s{sStp}, s{t0}, {WS_ST}
    s_lshl_b32 s{t1}, s{sJ}, 7
    s_add_u32 s{sStp}, s{sStp}, s{t1}
    s_lshl_b32 s{t0}, s{sGC}, 10
    s_add_u32 s{sSt}, s{t0}, {WS_ST}
    s_lshl_b32 s{t0}, s{sG}, 7
    s_mul_i32 s{t1}, s{sJ}, {5*4096}
    s_add_u32 s{sSp}, s{t1}, s{t0}
    s_lshl_b32 s{t0}, s{sGC}, 7
    s_add_u32 s{sK}, s{t1}, s{t0}
    s_add_u32 s{sK}, s{sK}, {WS_S}
    s_sub_u32 s{t0}, s{sG}, 27
    s_lshl_b32 s{t0}, s{t0}, 3
    s_add_u32 s{t0}, s{t0}, s{sJ}
    s_lshl_b32 s{sC}, s{t0}, 5
    s_lshl_b32 s{t0}, s{t0}, 12
    s_add_u32 s{sFY}, s{t0}, {WS_Y}
    s_add_u32 s{sFS}, s{t0}, {WS_S}
    """)
    for _ in range(kvseq.count("bar")): a("s_barrier")
    EARLY = int(opts.get("early", "4"))
    a(f"s_cmp_lt_u32 s{sW}, {EARLY}")
    a("s_cbranch_scc1 L_noearly")
    for x in auxseq: ld(x)
    ld("xf")
    vm_aux = list(a.vm)
    a.label("L_noearly")
    a("s_barrier")
    stamp("b0")
    a(f"s_cmp_eq_u32 s{sW}, 0")
    a("s_cbranch_scc0 L_nop1")
    def p1_loads():
        for p in range(8):
            so = sQg if p < 4 else sPub
            a(f"buffer_load_dwordx4 {q4(vP1+4*p)}, v{aKV}, {srd(S_WS)}, s{so} offen offset:{1024*(p%4)} sc1")
    p1_loads()
    a.label("L_nop1")
    a("s_barrier")
    a("s_barrier")
    A0LATE = opts.get("a0late", "1") == "1"
    a(f"s_cmp_ge_u32 s{sW}, {EARLY}")
    a("s_cbranch_scc1 L_late_done")
    if A0LATE:
        a(f"s_cmp_eq_u32 s{sW}, 0")
        a("s_cbranch_scc1 L_late_done")
    a.vm = []
    for x in auxseq: ld(x)
    ld("xf")
    assert a.vm == vm_aux
    a.label("L_late_done")
    a(f"s_cmp_eq_u32 s{sW}, 0")
    a("s_cbranch_scc0 L_aux_b3")
    ptags = [vP1+4*p+k for p in range(8) for k in (1, 3)]
    a(f"s_waitcnt vmcnt({0 if A0LATE else len(vm_aux)})")
    stamp("p1ret")
    check_mm(ptags, T0, T1)
    a("s_cbranch_vccz L_qok")
    a.label("L_qretry")
    a(f"s_add_u32 s{sSpin}, s{sSpin}, 256")
    a(f"s_cmp_gt_u32 s{sSpin}, {1<<22}")
    a("s_cbranch_scc1 L_qok")
    p1_loads()
    a("s_waitcnt vmcnt(0)")
    check_mm(ptags, T0, T1)
    a("s_cbranch_vccnz L_qretry")
    a.label("L_qok")
    for off in (0, 2):
        a(f"v_add_f32 v{vP1+off}, v{vP1+off}, v{vP1+4+off}")
        a(f"v_add_f32 v{vP1+8+off}, v{vP1+8+off}, v{vP1+12+off}")
        a(f"v_add_f32 v{vP1+16+off}, v{vP1+16+off}, v{vP1+20+off}")
        a(f"v_add_f32 v{vP1+24+off}, v{vP1+24+off}, v{vP1+28+off}")
    for off in (0, 2):
        a(f"v_add_f32 v{vP1+off}, v{vP1+off}, v{vP1+8+off}")
        a(f"v_add_f32 v{vP1+16+off}, v{vP1+16+off}, v{vP1+24+off}")
    for off in (0, 2):
        a(f"v_add_f32 v{vP1+off}, v{vP1+off}, v{vP1+16+off}")
    a(f"v_cvt_pk_bf16_f32 v{T0}, v{vP1}, v{vP1+2}")
    a(f"ds_write_b32 v{aLq}, v{T0} offset:{L_Q}")
    a(f"v_mov_b32 v{T1}, 1")
    a(f"ds_write_b32 v{aZero}, v{T1} offset:{L_FQ}")
    stamp("pollq")
    if A0LATE:
        a.vm = []
        for x in auxseq: ld(x)
        ld("xf")
    a.vm = list(vm_aux)
    a.label("L_aux_b3")
    zero(vAcc); zero(vAcc2)
    a(f"s_cmp_gt_u32 s{sW}, 1")
    a("s_cbranch_scc1 L_pubo_done")
    a(f"s_cmp_eq_u32 s{sW}, 0")
    a("s_cbranch_scc0 L_pub_st")
    a(f"v_mov_b32 v{T1}, s{sT}")
    a(f"v_mov_b32 v{T3}, s{sT}")
    a.label("L_wo8")
    a(f"ds_read_b32 v{T4}, v{aZero} offset:{L_FO}")
    for k in range(8):
        a(f"ds_read_b64 {q2(vS0+2*k)}, v{aL8} offset:{L_OP+512*k}")
    a("s_waitcnt lgkmcnt(8)")
    a(f"v_readfirstlane_b32 s{t0}, v{T4}")
    a("s_nop 0")
    a(f"s_cmp_lt_u32 s{t0}, 8")
    a("s_cbranch_scc1 L_wo8w")
    stamp("b4")
    for k in range(0, 8, 2):
        a(f"s_waitcnt lgkmcnt({8 - (k+2)})")
        a(f"v_add_f32 v{vS0+2*k}, v{vS0+2*k}, v{vS0+2*k+2}")
        a(f"v_add_f32 v{vS0+2*k+1}, v{vS0+2*k+1}, v{vS0+2*k+3}")
    for k in (0, 4):
        a(f"v_add_f32 v{vS0+2*k}, v{vS0+2*k}, v{vS0+2*k+4}")
        a(f"v_add_f32 v{vS0+2*k+1}, v{vS0+2*k+1}, v{vS0+2*k+5}")
    a(f"v_add_f32 v{T0}, v{vS0}, v{vS0+8}")
    a(f"v_add_f32 v{T2}, v{vS0+1}, v{vS0+9}")
    a(f"buffer_store_dwordx4 v[{T0}:{T3}], v{aKV}, {srd(S_WS)}, s{sOp} offen sc1")
    a("s_branch L_pubo_done")
    a.label("L_wo8w")
    a("s_waitcnt lgkmcnt(0)")
    a("s_branch L_wo8")
    a.label("L_pub_st")
    a.label("L_wst")
    a(f"""
    ds_read_b32 v{T4}, v{aZero} offset:{L_FO}
    ds_read_b128 {q4(vG)}, v{aZero} offset:{L_LS}
    ds_read_b128 {q4(vG+4)}, v{aZero} offset:{L_LS+16}
    ds_read_b128 {q4(vG+8)}, v{aZero} offset:{L_MX}
    ds_read_b128 {q4(vG+12)}, v{aZero} offset:{L_MX+16}
    v_mov_b32 v{T1}, s{sT}
    v_mov_b32 v{T3}, s{sT}
    s_waitcnt lgkmcnt(0)
    v_readfirstlane_b32 s{t0}, v{T4}
    s_nop 0
    s_cmp_lt_u32 s{t0}, 8
    s_cbranch_scc1 L_wst
    v_add_f32 v{vG}, v{vG}, v{vG+1}
    v_add_f32 v{vG+2}, v{vG+2}, v{vG+3}
    v_add_f32 v{vG+4}, v{vG+4}, v{vG+5}
    v_add_f32 v{vG+6}, v{vG+6}, v{vG+7}
    v_add_f32 v{vG}, v{vG}, v{vG+2}
    v_add_f32 v{vG+4}, v{vG+4}, v{vG+6}
    v_add_f32 v{T2}, v{vG}, v{vG+4}
    v_max3_f32 v{T0}, v{vG+8}, v{vG+9}, v{vG+10}
    v_max3_f32 v{T4}, v{vG+11}, v{vG+12}, v{vG+13}
    v_max3_f32 v{T0}, v{T0}, v{vG+14}, v{vG+15}
    v_max_f32 v{T0}, v{T0}, v{T4}
    s_mov_b64 exec, 0xff
    buffer_store_dwordx4 v[{T0}:{T3}], v{aKV}, {srd(S_WS)}, s{sStp} offen sc1
    s_mov_b64 exec, -1
    """)
    a.label("L_pubo_done")
    stamp("pubo")
    a.wait_vm("ph")
    check([vGh+1, vGh+3])
    a("s_cbranch_vccz L_hok")
    a.label("L_hretry")
    a(f"s_add_u32 s{sSpin}, s{sSpin}, 16")
    a(f"s_cmp_gt_u32 s{sSpin}, {1<<22}")
    a("s_cbranch_scc1 L_hok")
    a(f"buffer_load_dwordx4 {q4(vGh)}, v{aGh}, {srd(S_WS)}, s{sHg} offen sc1")
    a("s_waitcnt vmcnt(0)")
    check([vGh+1, vGh+3])
    a("s_cbranch_vccnz L_hretry")
    a.label("L_hok")
    red32(vGh, vGh+2)
    a(f"v_mov_b32 v{T0}, v{vGh}"); a("s_nop 1")
    red16(vGh, T0)
    a("s_nop 1")
    a(f"v_add_f32_dpp v{vGh}, v{vGh}, v{vGh} row_ror:8 {DPP}")
    a.wait_vm("b1")
    a(f"v_lshlrev_b32 v{vB1}, 16, v{vB1}")
    rnd(vGh)
    a(f"v_add_f32 v{vHs}, v{vGh}, v{vB1}")
    rnd(vHs)
    a(f"""
    s_mov_b32 s{t0}, 0x3d372713
    s_mov_b32 s{t1}, 0xc0135761
    v_mul_f32 v{T0}, v{vHs}, v{vHs}
    v_mul_f32 v{T0}, s{t0}, v{T0}
    v_fma_f32 v{T0}, v{T0}, v{vHs}, v{vHs}
    v_mul_f32 v{T0}, s{t1}, v{T0}
    v_exp_f32 v{T0}, v{T0}
    s_nop 0
    v_add_f32 v{T0}, 1.0, v{T0}
    v_rcp_f32 v{T0}, v{T0}
    s_nop 0
    v_mul_f32 v{T0}, v{vHs}, v{T0}
    v_cvt_pk_bf16_f32 v{T0}, v{T0}, v{T0}
    v_and_b32 v{T0}, 0xffff, v{T0}
    ds_bpermute_b32 v{vXq}, v{aBm}, v{T0}
    ds_bpermute_b32 v{vXq+1}, v{aBm}, v{T0} offset:16
    ds_bpermute_b32 v{vXq+2}, v{aBe2}, v{T0}
    """)
    zero(vAcc3)
    a("s_waitcnt lgkmcnt(0)")
    for i in range(3): a(f"v_lshlrev_b32 v{vXqh+i}, 16, v{vXq+i}")
    a.wait_vm("w2")
    if stamps and "awo" in sel:
        a.wait_vm("wo"); stamp("awo")
    for i in range(2): mac8(vAcc2, vW2+4*i, vXq+i, vXqh+i)
    mac8(vAcc3, vW2+8, vXq+2, vXqh+2)
    def red_tile(accM, accE, lbase):
        red8regs(accM, accE)
        a("s_nop 1")
        for r in (accM, accM+1, accE, accE+1):
            a(f"v_add_f32_dpp v{r}, v{r}, v{r} row_ror:8 {DPP}")
        a("s_nop 0")
        for r in (accE, accE+1):
            a(f"v_add_f32_dpp v{r}, v{r}, v{r} row_ror:4 {DPP}")
        a(f"ds_write_b64 v{aLSm}, {q2(accM)} offset:{lbase}")
        a("s_nop 0")
        for r in (accE, accE+1):
            a(f"v_add_f32_dpp v{r}, v{r}, v{r} quad_perm:[2,3,0,1] {DPP}")
        a(f"ds_write_b64 v{aLSe}, {q2(accE)} offset:{lbase}")
    red_tile(vAcc2, vAcc3, L_YP)
    zero(vAcc2)
    stamp("mlp")
    otags = [vG+1, vG+3, vG+5, vG+7, vG+9, vG+11]
    vGB = vS0
    LF = opts.get("lf", "sc1").replace("+", " ")
    def po_loads(b):
        a(f"buffer_load_dwordx4 {q4(b)}, v{aG}, {srd(S_WS)}, s{sOg} offen {LF}")
        a(f"buffer_load_dwordx4 {q4(b+4)}, v{aG}, {srd(S_WS)}, s{sOg2} offen {LF}")
        a(f"buffer_load_dwordx4 {q4(b+8)}, v{aSt1}, {srd(S_WS)}, s{sSt} offen {LF}")
    C0, C1, C2, C3, CM, CL = [vAcc3 + k for k in range(6)]
    def copyC(b):
        for d, k in ((C0, 0), (C1, 2), (C2, 4), (C3, 6), (CM, 8), (CL, 10)): a(f"v_mov_b32 v{d}, v{b+k}")
    if opts.get("gate", "1") == "1":
        a.label("L_gate")
        a(f"ds_read_b32 v{T4}, v{aZero} offset:{L_FO}")
        a("s_waitcnt lgkmcnt(0)")
        a(f"v_readfirstlane_b32 s{t0}, v{T4}")
        a("s_nop 0")
        a(f"s_cmp_lt_u32 s{t0}, 8")
        a("s_cbranch_scc0 L_gate_ok")
        a("s_sleep 1")
        a("s_branch L_gate")
        a.label("L_gate_ok")
    if int(opts.get("presleep", "0")): a(f"s_sleep {opts['presleep']}")
    if opts.get("pipe", "0") == "1":
        po_loads(vG)
        a(f"s_sleep {opts.get('posleep', '6')}")
        a.label("L_oretry")
        po_loads(vGB)
        a(f"s_add_u32 s{sSpin}, s{sSpin}, 65536")
        a("s_waitcnt vmcnt(3)")
        check_mm(otags, T0, T1)
        a(f"s_cmp_gt_u32 s{sSpin}, 0x7f000000")
        a("s_cbranch_scc1 L_ookA")
        a("s_cbranch_vccz L_ookA")
        po_loads(vG)
        a(f"s_add_u32 s{sSpin}, s{sSpin}, 65536")
        a("s_waitcnt vmcnt(3)")
        check_mm([t - vG + vGB for t in otags], T0, T1)
        a("s_cbranch_vccnz L_oretry")
        copyC(vGB)
        a("s_branch L_ook")
        a.label("L_ookA")
        copyC(vG)
    else:
        a.label("L_oretry")
        po_loads(vG)
        a(f"s_add_u32 s{sSpin}, s{sSpin}, 65536")
        a("s_waitcnt vmcnt(0)")
        check_mm(otags, T0, T1)
        a(f"s_cmp_gt_u32 s{sSpin}, 0x7f000000")
        a("s_cbranch_scc1 L_ookA")
        a("s_cbranch_vccz L_ookA")
        if int(opts.get("loopsleep", "0")): a(f"s_sleep {opts['loopsleep']}")
        a("s_branch L_oretry")
        a.label("L_ookA")
        copyC(vG)
    a.label("L_ook")
    a.vm = []
    stamp("pollo")
    a(f"v_mov_b32 v{T0}, v{CM}")
    for n in (4, 2, 1):
        a("s_nop 1")
        a(f"v_max_f32_dpp v{T0}, v{T0}, v{T0} row_ror:{n} {DPP}")
    a(f"""
    v_sub_f32 v{T1}, v{CM}, v{T0}
    v_mul_f32 v{T1}, s{sLog2e}, v{T1}
    v_exp_f32 v{T1}, v{T1}
    s_nop 0
    v_mul_f32 v{T2}, v{T1}, v{CL}
    s_nop 0
    v_mov_b32_dpp v{T3}, v{T1} row_newbcast:0 {DPP}
    v_mov_b32_dpp v{T4}, v{T1} row_newbcast:4 {DPP}
    v_add_f32_dpp v{T2}, v{T2}, v{T2} row_ror:4 {DPP}
    v_mul_f32 v{C0}, v{C0}, v{T3}
    v_mul_f32 v{C1}, v{C1}, v{T3}
    v_add_f32_dpp v{T2}, v{T2}, v{T2} row_ror:2 {DPP}
    v_fmac_f32 v{C0}, v{C2}, v{T4}
    v_fmac_f32 v{C1}, v{C3}, v{T4}
    v_add_f32_dpp v{T2}, v{T2}, v{T2} row_ror:1 {DPP}
    s_nop 0
    v_permlane32_swap_b32 v{C0}, v{C1}
    v_add_f32 v{C0}, v{C0}, v{C1}
    v_rcp_f32 v{T2}, v{T2}
    v_mov_b32 v{T0}, v{C0}
    s_nop 1
    v_permlane16_swap_b32 v{C0}, v{T0}
    v_add_f32 v{C0}, v{C0}, v{T0}
    v_mul_f32 v{C0}, v{C0}, v{T2}
    v_cvt_pk_bf16_f32 v{C0}, v{C0}, v{C0}
    v_and_b32 v{C0}, 0xffff, v{C0}
    """)
    for i in range(4): a(f"ds_bpermute_b32 v{vXq+i}, v{aBm}, v{C0} offset:{16*i}")
    a(f"ds_bpermute_b32 v{vXq+4}, v{aBe}, v{C0}")
    for i in range(5):
        a(f"s_waitcnt lgkmcnt({4-i})")
        a(f"v_lshlrev_b32 v{vXqh+i}, 16, v{vXq+i}")
        mac8(vAcc if i < 4 else vAcc2, vWO+4*i, vXq+i, vXqh+i)
    red_tile(vAcc, vAcc2, L_SP)
    a("s_waitcnt vmcnt(0) lgkmcnt(0)")
    a("s_barrier")
    a(f"""
    s_cmp_gt_u32 s{sW}, 1
    s_cbranch_scc1 L_pubs_done
    s_mov_b32 exec_hi, 0xff
    s_cmp_eq_u32 s{sW}, 0
    s_cbranch_scc1 L_pubs_s
    s_cmp_eq_u32 s{sMlp}, 0
    s_cbranch_scc1 L_pubs_skip
    s_add_u32 s{t0}, s{sSp}, {WS_Y}
    """)
    pub_sum(4, L_YP, 320, t0, voff=aS)
    a("s_branch L_pubs_skip")
    a.label("L_pubs_s")
    pub_sum(4, L_SP, 320, sK, voff=aS)
    a.label("L_pubs_skip")
    a("s_mov_b64 exec, -1")
    a.label("L_pubs_done")
    if opts.get("b6", "1") == "1": a("s_barrier")
    stamp("pubs")
    nfin = int(opts.get("nfin", "1"))
    a(f"""
    s_cmp_lt_u32 s{sG}, 27
    s_cbranch_scc1 L_fin
    s_cmp_lt_u32 s{sW}, {4-nfin}
    s_cbranch_scc1 L_fin
    v_mov_b32 v{vFF+28}, 0
    v_mov_b32 v{vFF+29}, s{sT}
    v_mov_b32 v{vFF+30}, 0
    v_mov_b32 v{vFF+31}, s{sT}
    """)
    if int(opts.get("fpre", "0")): a(f"s_sleep {opts['fpre']}")
    a.label("L_pollf")
    for i in range(4):
        a(f"buffer_load_dwordx4 {q4(vFF+4*i)}, v{aKV}, {srd(S_WS)}, s{sFS} offen offset:{1024*i} sc1")
    for i in range(3):
        a(f"buffer_load_dwordx4 {q4(vFF+16+4*i)}, v{aKV}, {srd(S_WS)}, s{sFY} offen offset:{1024*i} sc1")
    a("s_mov_b32 exec_lo, 0xffffff")
    a("s_mov_b32 exec_hi, 0")
    a(f"buffer_load_dwordx4 {q4(vFF+28)}, v{aKV}, {srd(S_WS)}, s{sFY} offen offset:3072 sc1")
    a("s_mov_b64 exec, -1")
    a(f"s_add_u32 s{sSpin}, s{sSpin}, 65536")
    a("s_waitcnt vmcnt(0)")
    check_mm([vFF+4*i+k for i in range(8) for k in (1, 3)], T0, T1)
    a(f"s_cmp_gt_u32 s{sSpin}, 0x7f000000")
    a("s_cbranch_scc1 L_pollf_done")
    a("s_cbranch_vccz L_pollf_done")
    if int(opts.get("floop", "0")): a(f"s_sleep {opts['floop']}")
    a("s_branch L_pollf")
    a.label("L_pollf_done")
    for (dst, base) in ((vG, vFF), (vG+2, vFF+16)):
        a(f"v_add_f32 v{dst}, v{base}, v{base+4}")
        a(f"v_add_f32 v{dst+1}, v{base+2}, v{base+6}")
        a(f"v_add_f32 v{T2}, v{base+8}, v{base+12}")
        a(f"v_add_f32 v{T3}, v{base+10}, v{base+14}")
        a(f"v_add_f32 v{dst}, v{dst}, v{T2}")
        a(f"v_add_f32 v{dst+1}, v{dst+1}, v{T3}")
    a("s_nop 0")
    red32(vG, vG+1); red32(vG+2, vG+3)
    a(f"v_mov_b32 v{T2}, v{vG}"); a(f"v_mov_b32 v{T3}, v{vG+2}"); a("s_nop 0")
    red16(vG, T2); red16(vG+2, T3)
    a("s_nop 0")
    a(f"v_add_f32_dpp v{vG}, v{vG}, v{vG} row_ror:8 {DPP}")
    a(f"v_add_f32_dpp v{vG+2}, v{vG+2}, v{vG+2} row_ror:8 {DPP}")
    a(f"""
    v_lshrrev_b32 v{T4}, 5, v{vL}
    v_lshlrev_b32 v{T4}, 4, v{T4}
    v_lshrrev_b32 v{vB2}, v{T4}, v{vB2}
    v_lshlrev_b32 v{vB2}, 16, v{vB2}
    v_lshrrev_b32 v{vXf}, v{T4}, v{vXf}
    v_lshlrev_b32 v{vXf}, 16, v{vXf}
    """)
    rnd(vG); rnd(vG+2)
    a(f"v_add_f32 v{vG+2}, v{vG+2}, v{vB2}")
    rnd(vG+2)
    a(f"""
    v_mul_f32 v{T2}, s{sLog2e}, v{vG+2}
    v_sub_f32 v{T2}, 0, v{T2}
    v_exp_f32 v{T2}, v{T2}
    s_nop 0
    v_add_f32 v{T2}, 1.0, v{T2}
    v_rcp_f32 v{T2}, v{T2}
    s_nop 0
    v_mul_f32 v{vG+2}, v{vG+2}, v{T2}
    """)
    rnd(vG+2)
    a(f"v_mul_f32 v{vG}, v{vG}, v{vG+2}")
    rnd(vG)
    a(f"""
    v_add_f32 v{vG}, v{vG}, v{vXf}
    v_cvt_pk_bf16_f32 v{vG}, v{vG}, v{vG}
    v_lshrrev_b32 v{T4}, 5, v{vL}
    v_lshl_add_u32 v{aX4}, v{T4}, 1, v{aX4}
    s_mov_b32 exec_lo, 0xff
    s_mov_b32 exec_hi, 0xff
    buffer_store_short v{vG}, v{aX4}, {srd(S_OUT)}, s{sC} offen
    s_cmp_eq_u32 s{sC}, 0
    s_cbranch_scc0 L_fin0
    s_cmp_eq_u32 s{sW}, 3
    s_cbranch_scc0 L_fin0
    v_mov_b32 v{T2}, s{sT}
    s_mov_b64 exec, 1
    buffer_store_dword v{T2}, v{aZero}, {srd(S_WS)}, 0 offen sc1
    """)
    a.label("L_fin0")
    a("s_mov_b64 exec, -1")
    a("s_branch L_fin")
    a.label("L_kv")
    a.vm = []
    a(f"""
    s_sub_u32 s{sKW}, s{sW}, {NAUX}
    s_lshl_b32 s{sK}, s{sG}, 20
    s_lshl_b32 s{t2}, s{sJ}, 15
    s_add_u32 s{sK}, s{sK}, s{t2}
    s_lshl_b32 s{t2}, s{sKW}, 12
    s_add_u32 s{sK}, s{sK}, s{t2}
    s_add_u32 s{sK}, s{sK}, {3072*256}
    v_lshlrev_b32 v{aLq}, 5, v{T1}
    v_lshl_add_u32 v{aLq}, v{T0}, 3, v{aLq}
    s_lshl_b32 s{t0}, s{sKW}, 9
    v_add_u32 v{aLq}, s{t0}, v{aLq}
    v_lshlrev_b32 v{aLqr}, 4, v{T1}
    s_mov_b32 s{sScale}, 0x3db504f3
    s_lshl_b32 s{t0}, s{sKW}, 2
    v_mov_b32 v{aPub}, s{t0}
    s_waitcnt lgkmcnt(0)
    s_barrier                                    ; Bs
    """)
    for x in kvseq:
        if x[0] == "k": a.vmem(f"buffer_load_dwordx4 {q4(vK+4*int(x[1]))}, v{aKV}, {srd(S_K)}, s{sK} offen offset:{1024*int(x[1])}{NT}", x)
        elif x[0] == "v": a.vmem(f"buffer_load_dwordx4 {q4(vV+4*int(x[1]))}, v{aKV}, {srd(S_V)}, s{sK} offen offset:{1024*int(x[1])}{NT}", x)
        elif x[0] == "W": a.wait_vm(x[1:])
        elif x == "bar": a("s_barrier")
        elif x[0] == "S":
            kw = int(x[1]); tg = x[2:]
            idx = a.vm.index(tg)
            a(f"s_cmp_eq_u32 s{sKW}, {kw}")
            a(f"s_cbranch_scc0 L_skipS")
            a(f"s_waitcnt vmcnt({len(a.vm)-1-idx})")
            a.label("L_skipS")
    for i in range(4): a(f"v_mov_b32 v{vAcc3+i}, 0")
    zero(vAcc)
    a("s_barrier")
    stamp("b0")
    a("s_barrier")
    kvpost = opts.get("kvpost", "").replace("+", " ").split()
    for x in kvpost:
        a.vmem(f"buffer_load_dwordx4 {q4(vV+4*int(x[1]))}, v{aKV}, {srd(S_V)}, s{sK} offen offset:{1024*int(x[1])}{NT}", x)
    a("s_barrier")
    a.wait_vm("k0", "k1", "k2", "k3")
    if stamps and "av3" in sel:
        a.wait_vm("v3"); stamp("av3")
    a(f"v_mov_b32 v{vE}, 1")
    a.label("L_wq")
    a(f"ds_read_b32 v{T4}, v{aZero} offset:{L_FQ}")
    a(f"ds_read_b128 {q4(vQ)}, v{aLqr} offset:{L_Q}")
    a("s_waitcnt lgkmcnt(0)")
    a(f"v_readfirstlane_b32 s{t0}, v{T4}")
    a("s_nop 0")
    a(f"s_cmp_eq_u32 s{t0}, 0")
    a("s_cbranch_scc1 L_wq")
    stamp("pollq")
    vSc = vAcc3
    for k in range(4):
        for i in range(4):
            a(f"v_dot2c_f32_bf16 v{vSc+i}, v{vK+4*i+k}, v{vQ+k}")
    a("s_nop 2")
    D = "row_mask:0xf"
    a(f"v_add_f32_dpp v{T0}, v{vSc+0}, v{vSc+0} row_ror:8 {D} bank_mask:0x3")
    a(f"v_add_f32_dpp v{T1}, v{vSc+1}, v{vSc+1} row_ror:8 {D} bank_mask:0x3")
    a(f"v_add_f32_dpp v{T0}, v{vSc+2}, v{vSc+2} row_ror:8 {D} bank_mask:0xc")
    a(f"v_add_f32_dpp v{T1}, v{vSc+3}, v{vSc+3} row_ror:8 {D} bank_mask:0xc")
    a("s_nop 0")
    a(f"v_add_f32_dpp v{T2}, v{T0}, v{T0} row_shl:4 {D} bank_mask:0x5")
    a(f"v_add_f32_dpp v{T2}, v{T1}, v{T1} row_shr:4 {D} bank_mask:0xa")
    a("s_nop 1")
    a(f"v_add_f32_dpp v{T2}, v{T2}, v{T2} quad_perm:[2,3,0,1] {DPP}")
    a("s_nop 1")
    a(f"v_add_f32_dpp v{T2}, v{T2}, v{T2} quad_perm:[1,0,3,2] {DPP}")
    rnd(T2)
    a(f"v_mul_f32 v{T2}, s{sScale}, v{T2}")
    rnd(T2)
    a(f"v_mov_b32 v{T0}, v{T2}")
    wave_red("max", T0, T1, rors=(8, 4))
    a(f"""
    ds_write_b32 v{aPub}, v{T0} offset:{L_MX}
    s_mov_b64 exec, 1
    ds_add_u32 v{aZero}, v{vE} offset:{L_FM}
    s_mov_b64 exec, -1
    L_wm:
    ds_read_b32 v{T4}, v{aZero} offset:{L_FM}
    ds_read_b128 {q4(vG)}, v{aZero} offset:{L_MX}
    ds_read_b128 {q4(vG+8)}, v{aZero} offset:{L_MX+16}
    s_waitcnt lgkmcnt(0)
    v_readfirstlane_b32 s{t0}, v{T4}
    s_nop 0
    s_cmp_lt_u32 s{t0}, 8
    s_cbranch_scc1 L_wm
    v_max3_f32 v{T0}, v{vG}, v{vG+1}, v{vG+2}
    v_max3_f32 v{T1}, v{vG+3}, v{vG+8}, v{vG+9}
    v_max3_f32 v{T0}, v{T0}, v{vG+10}, v{vG+11}
    v_max_f32 v{vMj}, v{T0}, v{T1}
    v_sub_f32 v{T2}, v{T2}, v{vMj}
    v_mul_f32 v{T2}, s{sLog2e}, v{T2}
    v_exp_f32 v{T2}, v{T2}
    s_nop 0
    v_cvt_pk_bf16_f32 v{vPl}, v{T2}, v{T2}
    v_mov_b32 v{vLs}, v{T2}
    v_and_b32 v{vPh}, 0xffff0000, v{vPl}
    v_and_b32 v{vPl}, 0xffff, v{vPl}
    """)
    stamp("smax")
    a("s_nop 1")
    for i in range(4):
        a.wait_vm(f"v{i}")
        mac8(vAcc, vV+4*i, vPl, vPh, dpp=f"row_newbcast:{4*i}")
    red8regs(vAcc)
    a(f"ds_write_b64 v{aLq}, {q2(vAcc)} offset:{L_OP}")
    wave_red("add", vLs, T1, rors=(8, 4), first_nop=False)
    a(f"""
    ds_write_b32 v{aPub}, v{vLs} offset:{L_LS}
    s_mov_b64 exec, 1
    ds_add_u32 v{aZero}, v{vE} offset:{L_FO}
    s_mov_b64 exec, -1
    """)
    stamp("b4")
    a.label("L_fin")
    if stamps and echo is not None:
        stamp("end")
        ie = sel.index("end")
        a(f"""
        s_waitcnt lgkmcnt(0)
        s_cmp_eq_u32 s2, 27
        s_cbranch_scc0 L_end
        s_cmp_eq_u32 s{sW}, 3
        s_cbranch_scc0 L_end
        s_sub_u32 s{t0}, s{SP[echo]}, s{SP[0]}
        s_add_u32 s{t0}, s{t0}, s{SP[ie]}
        """)
        a.label("L_echo")
        a(f"""
        s_memrealtime s[16:17]
        s_waitcnt lgkmcnt(0)
        s_sub_u32 s18, s16, s{t0}
        s_cmp_lt_i32 s18, 0
        s_cbranch_scc1 L_echo
        """)
    elif stamps:
        stamp("end")
        a("s_waitcnt lgkmcnt(0)")
        a(f"""
        s_lshl_b32 s{t0}, s2, 4
        s_add_u32 s{t0}, s{t0}, s{sW}
        s_lshl_b32 s{t0}, s{t0}, 7
        s_add_u32 s{t0}, s{t0}, {WS_TS}
        """)
        for k in range(len(SP)):
            a(f"v_mov_b32 v{vG+k}, s{SP[k]}")
        a(f"v_mov_b32 v{vG+len(SP)}, s{sSpin}")
        a("s_mov_b64 exec, 1")
        for k in range(3):
            a(f"buffer_store_dwordx4 {q4(vG+4*k)}, v{aZero}, {srd(S_WS)}, s{t0} offen offset:{16*k}")
    a.label("L_end")
    a("s_endpgm")
    SFL = opts.get("sf", "sc1").replace("+", " ")
    if SFL != "sc1":
        a.l = [(l.replace(" offen sc1", " offen " + SFL) if ("buffer_store" in l and l.endswith("sc1")) else l) for l in a.l]
    FFL = opts.get("ff", "sc1").replace("+", " ")
    if FFL != "sc1":
        a.l = [(l[:-3] + FFL if ("buffer_load_dwordx4" in l and l.endswith("sc1") and (f"s{sFS} offen" in l or f"s{sFY} offen" in l)) else l) for l in a.l]
    body = "\n".join(a.l) + "\n"
    src = HDR_COMMENT + f"""; Override launch geometry by editing the next line (default: block=256,
; grid=ceil(out_elems/256), lds=0). Harness parses it; keep it on one line.
; @launch grid=(256,1,1) block=({NW*64},1,1) lds={LDS}
.amdgcn_target "amdgcn-amd-amdhsa--gfx950"
.text
.globl {KN}
.p2align 8
.type {KN},@function
{KN}:
{body}
.section .rodata,"a"
.p2align 6
.amdhsa_kernel {KN}
  .amdhsa_next_free_vgpr {NV}
  .amdhsa_next_free_sgpr 102
  .amdhsa_accum_offset {NV}
  .amdhsa_group_segment_fixed_size 0
  .amdhsa_kernarg_size 104
  .amdhsa_user_sgpr_count 2
  .amdhsa_user_sgpr_kernarg_segment_ptr 1
  .amdhsa_system_sgpr_workgroup_id_x 1
.end_amdhsa_kernel
"""
    return src

if __name__ == "__main__":
    import argparse
    p = argparse.ArgumentParser()
    p.add_argument("-o", default="k8.s")
    p.add_argument("--stamps", action="store_true")
    p.add_argument("--no-nt", action="store_true")
    p.add_argument("--echo", type=int, default=None)
    p.add_argument("--opt", action="append", default=[])
    args = p.parse_args()
    opts = dict(o.split("=") for o in args.opt)
    open(args.o, "w").write(gen(nt=not args.no_nt, stamps=args.stamps, echo=args.echo, opts=opts))
```

```python
import sys
KN = "recurrent_scan__sliding_block_cached__dense_activation_gelu__decode_kernel"
HDR_COMMENT = open("recurrent_scan__sliding_block_cached__dense_activation_gelu__decode.s.ref").read().split("; Override launch")[0]

class A:
    def __init__(self):
        self.l = []; self.vm = []
    def __call__(self, s):
        for line in s.strip("\n").split("\n"):
            line = line.strip()
            if line: self.l.append("  " + line)
    def label(self, n): self.l.append(n + ":")
    def vmem(self, s, tag):
        self(s); self.vm.append(tag)
    def wait_vm(self, *tags):
        idxs = [i for i, t in enumerate(self.vm) if t in tags]
        if not idxs: return
        idx = max(idxs)
        n = len(self.vm) - 1 - idx
        self(f"s_waitcnt vmcnt({min(n,63)})")
        self.vm = self.vm[idx + 1:]

WS_EPOCH = 0
WS_Q  = 0x1000
WS_H  = WS_Q + 32*8*1024
WS_O  = WS_H + 32*8*512
WS_ST = WS_O + 32*8*1024
WS_S  = WS_ST + 32*8*128
WS_Y  = WS_S + 40*32*128
WS_TS = WS_Y + 40*32*128
NW = 12
NAUX = 4
TSW = 16
WS_END = WS_TS + 256*TSW*128
TAGC = 0x9E3779B9
OOB = 0x7f000000
DEF_STAMPS = "start,pq1,b0,pollq,smax,pubo,pollo,pubs,end"

def gen(nt=True, stamps=False, echo=None, opts=None):
    opts = opts or {}
    a = A()
    NT = " nt" if nt else ""
    S_X, S_K, S_V, S_WQ, S_WO, S_W1, S_B1, S_W2, S_B2, S_OUT, S_WS = [44 + 4*i for i in range(11)]
    srd = lambda b: f"s[{b}:{b+3}]"
    sG, sJ, sW, sT = 3, 4, 5, 6
    t0, t1, t2, t3 = 7, 8, 9, 10
    sSpin = 11
    sM = 12
    sKW = 14
    sA0 = 16
    sK = 21; sWO = [17,18,19,20]; sW2 = [22,23]
    sXo = 25
    sQg = 26; sHg = 27; sOg = 28; sSt = 29
    sPub = 30; sOg2 = 31; sOp = 32; sStp = 33
    sSp = 34; sMlp = 35
    sScale, sLog2e = 36, 37
    sC = 38; sOobM = 39
    sFS = 24; sFY = 15; sGC = 16
    SHIFT = int(opts.get('shift', '1'))
    SP = [88,90,92,94,96,98,100,40,42]
    sel = opts.get("stamps", DEF_STAMPS).split(",")
    def stamp(name):
        if stamps and name in sel:
            r = SP[sel.index(name)]; a(f"s_memrealtime s[{r}:{r+1}]")
    vL = 1
    (aKV, aT, aWOm, aWOe, aW2e, aXa, aX4, aG, aGh, aSt1,
     aLq, aL8, aLqr, aLSm, aLSe, aS, aBm, aBe, aZero, aPub, aB1, aBe2) = range(2, 24)
    T0, T1, T2, T3, T4 = 26, 27, 28, 29, 30
    vE = 31; vX4 = 32; vX16 = 36
    vXa = 40; vXb = 41; vXah = 42; vXbh = 43
    vXq = 44; vXqh = 49
    vMj = 54; vLs = 55; vB1 = 56; vXf = 57; vB2 = 58; vPl = 59; vPh = 60; vHs = 61
    vQ = 64; vAcc = 68; vAcc2 = 76; vAcc3 = 84; vG = 92
    vK = 108; vV = 124
    vTile = 76; xs = list(range(156, 166))
    vP1 = 124
    vWO = 108
    NV = 168
    vP1 = 76; vWO = 108; vW2 = 128; vGh = 140; vS0 = 144; vFF = 108
    q4 = lambda b: f"v[{b}:{b+3}]"
    q2 = lambda b: f"v[{b}:{b+1}]"
    L_OP = 0; L_Q = 4096; L_MX = 4352; L_LS = 4384; L_SP = 4608; L_YP = 5888; L_FQ = 7168; L_FM = 7172; L_FO = 7176; LDS = 7424
    DPP = "row_mask:0xf bank_mask:0xf"

    def zero(base, n=8):
        for k in range(n): a(f"v_mov_b32 v{base+k}, 0")
    def rnd(v):
        a(f"v_cvt_pk_bf16_f32 v{v}, v{v}, v{v}"); a(f"v_and_b32 v{v}, 0xffff0000, v{v}")
    def wave_red(op, v, t, rors=(8,4,2,1), s16=True, s32=True, first_nop=True):
        for n_i, n in enumerate(rors):
            if n_i > 0 or first_nop: a("s_nop 1")
            a(f"v_{op}_f32_dpp v{v}, v{v}, v{v} row_ror:{n} {DPP}")
        if s16:
            a(f"v_mov_b32 v{t}, v{v}"); a("s_nop 1")
            a(f"v_permlane16_swap_b32 v{v}, v{t}"); a(f"v_{op}_f32 v{v}, v{v}, v{t}")
        if s32:
            a(f"v_mov_b32 v{t}, v{v}"); a("s_nop 1")
            a(f"v_permlane32_swap_b32 v{v}, v{t}"); a(f"v_{op}_f32 v{v}, v{v}, v{t}")
    def red32(x, y):
        a(f"v_permlane32_swap_b32 v{x}, v{y}"); a(f"v_add_f32 v{x}, v{x}, v{y}")
    def red16(x, y, d=None):
        a(f"v_permlane16_swap_b32 v{x}, v{y}"); a(f"v_add_f32 v{x if d is None else d}, v{x}, v{y}")
    def red8regs(*accs):
        a("s_nop 2")
        for acc in accs:
            red32(acc+0, acc+4); red32(acc+2, acc+6); red32(acc+1, acc+5); red32(acc+3, acc+7)
        a("s_nop 0")
        for acc in accs:
            red16(acc+0, acc+2); red16(acc+1, acc+3)
    def mac8(acc, w, lo, hi, dpp=""):
        for k in range(4):
            if dpp:
                a(f"v_dot2c_f32_bf16_dpp v{acc+2*k}, v{lo}, v{w+k} {dpp} {DPP}")
                a(f"v_dot2c_f32_bf16_dpp v{acc+2*k+1}, v{hi}, v{w+k} {dpp} {DPP}")
            else:
                a(f"v_dot2c_f32_bf16 v{acc+2*k}, v{w+k}, v{lo}")
                a(f"v_dot2c_f32_bf16 v{acc+2*k+1}, v{w+k}, v{hi}")
    def check(tags):
        if opts.get("noexch") == "1":
            a("s_mov_b64 vcc, 0"); return
        a(f"v_cmp_ne_u32 vcc, s{sT}, v{tags[0]}")
        for tg in tags[1:]:
            a(f"v_cmp_ne_u32 s[{sM}:{sM+1}], s{sT}, v{tg}")
            a(f"s_or_b64 vcc, vcc, s[{sM}:{sM+1}]")
    def check_mm(tags, ta, tb):
        for op, t in (("min", ta), ("max", tb)):
            a(f"v_{op}3_u32 v{t}, v{tags[0]}, v{tags[1]}, v{tags[2]}")
            i = 3
            while i < len(tags):
                if i + 1 < len(tags):
                    a(f"v_{op}3_u32 v{t}, v{t}, v{tags[i]}, v{tags[i+1]}"); i += 2
                else:
                    a(f"v_{op}_u32 v{t}, v{t}, v{tags[i]}"); i += 1
        check([ta, tb])
    def pub_sum(nparts, lbase, stride, soff, voff=aKV):
        for k in range(nparts):
            a(f"ds_read_b64 {q2(vS0+2*k)}, v{aL8} offset:{lbase+stride*k}")
        a(f"v_mov_b32 v{T1}, s{sT}")
        a(f"v_mov_b32 v{T3}, s{sT}")
        step = 1; first = True
        while step < nparts:
            for k in range(0, nparts, 2*step):
                if first: a(f"s_waitcnt lgkmcnt({nparts - (k+2)})")
                last = (2*step >= nparts)
                d0, d1 = (T0, T2) if last else (vS0+2*k, vS0+2*k+1)
                a(f"v_add_f32 v{d0}, v{vS0+2*k}, v{vS0+2*(k+step)}")
                a(f"v_add_f32 v{d1}, v{vS0+2*k+1}, v{vS0+2*(k+step)+1}")
            first = False; step *= 2
        a(f"buffer_store_dwordx4 v[{T0}:{T3}], v{voff}, {srd(S_WS)}, s{soff} offen sc1")

    kvseq = opts.get("kvseq", "k0 k1 k2 k3 bar v0 v1 v2 v3 Wk3").replace("+", " ").split()

    a("s_cmp_ge_u32 s2, 256")
    a("s_cbranch_scc1 L_end")
    stamp("start")
    order = [(S_X,0),(S_WQ,3),(S_W1,6),(S_WS,12),(S_K,1),(S_V,2),(S_WO,4),(S_B1,7),(S_W2,8),(S_B2,9),(S_OUT,10)]
    for b, i in order:
        a(f"s_load_dwordx2 s[{b}:{b+1}], s[0:1], {8*i}")
    a(f"""
    v_lshrrev_b32 v{T0}, 6, v0
    v_and_b32 v{vL}, 63, v0
    s_and_b32 s{sG}, s2, 31
    s_lshr_b32 s{sJ}, s2, 5
    v_readfirstlane_b32 s{sW}, v{T0}
    v_lshlrev_b32 v{aKV}, 4, v{vL}
    v_lshrrev_b32 v{T0}, 4, v{vL}
    v_and_b32 v{T1}, 15, v{vL}
    v_lshrrev_b32 v{T2}, 3, v{vL}
    v_and_b32 v{T3}, 7, v{vL}
    v_mov_b32 v{aZero}, 0
    """)
    sizes = {S_X:1280, S_WQ:5242880, S_WS:WS_END, S_K:33554432, S_V:33554432, S_WO:5242880, S_W1:2211840, S_B1:3456, S_W2:2211840, S_B2:1280, S_OUT:1280}
    for b, sz in sizes.items():
        a(f"s_mov_b32 s{b+2}, {sz}")
        a(f"s_mov_b32 s{b+3}, 0x20000")
    a(f"""
    s_cmp_lt_u32 s{sG}, 27
    s_cselect_b32 s{sMlp}, 1, 0
    s_cselect_b32 s{sOobM}, 0, {OOB}
    s_mov_b32 s{sSpin}, 0
    s_mov_b32 s{sLog2e}, 0x3fb8aa3b
    s_cmp_ge_u32 s{sW}, {NAUX}
    s_cbranch_scc1 L_kv
    s_cmp_gt_u32 s{sW}, 1
    s_cbranch_scc1 L_aux23
    """)
    a(f"""
    s_setprio 3
    s_mul_i32 s{t0}, s{sJ}, 80
    s_lshl_b32 s{sXo}, s{t0}, 1
    v_lshlrev_b32 v{aX4}, 2, v{vL}
    v_lshl_add_u32 v{aXa}, v{T1}, 2, v{T0}
    v_lshlrev_b32 v{aXa}, 1, v{aXa}
    s_cmp_eq_u32 s{sW}, 0
    s_cbranch_scc0 L_role_h0
    v_lshlrev_b32 v{aT}, 13, v{T0}
    v_lshl_add_u32 v{aT}, v{T1}, 4, v{aT}
    s_lshl_b32 s{sA0}, s{t0}, 13
    s_lshl_b32 s{t2}, s{sG}, 8
    s_add_u32 s{sA0}, s{sA0}, s{t2}
    v_lshlrev_b32 v{aPub}, 6, v{T1}
    v_lshl_add_u32 v{aPub}, v{T0}, 4, v{aPub}
    s_lshl_b32 s{sPub}, s{sG}, 13
    s_lshl_b32 s{t2}, s{sJ}, 10
    s_add_u32 s{sPub}, s{sPub}, s{t2}
    s_add_u32 s{sPub}, s{sPub}, {WS_Q}
    s_waitcnt lgkmcnt(0)
    """)
    def xloads():
        a.vmem(f"buffer_load_dwordx4 {q4(vX16)}, v{aKV}, {srd(S_X)}, 0 offen", "x")
        a.vmem(f"buffer_load_dword v{vX4}, v{aX4}, {srd(S_X)}, 0 offen offset:1024", "x")
        a.vmem(f"buffer_load_ushort v{vXa}, v{aXa}, {srd(S_X)}, s{sXo} offen", "x")
        a.vmem(f"buffer_load_ushort v{vXb}, v{aXa}, {srd(S_X)}, s{sXo} offen offset:128", "x")
        a.vmem(f"buffer_load_dword v{vE}, v{aZero}, {srd(S_WS)}, 0 offen sc1", "x")
    xloads()
    for i in range(20):
        a.vmem(f"buffer_load_dwordx4 {q4(vTile+4*i)}, v{aT}, {srd(S_WQ)}, s{sA0} offen{NT}", f"t{i}")
        if i < 19: a(f"s_add_u32 s{sA0}, s{sA0}, 32768")
    a("s_branch L_ln")
    vm_front = list(a.vm)
    a.label("L_role_h0")
    a.vm = []
    a(f"""
    v_mul_u32_u24 v{aT}, 3456, v{T0}
    v_lshl_add_u32 v{aT}, v{T1}, 3, v{aT}
    s_mul_i32 s{sA0}, s{t0}, 3456
    s_lshl_b32 s{t2}, s{sG}, 7
    s_add_u32 s{sA0}, s{sA0}, s{t2}
    s_add_u32 s{sA0}, s{sA0}, s{sOobM}
    v_lshl_add_u32 v{aPub}, v{T1}, 2, v{T0}
    v_lshlrev_b32 v{aPub}, 3, v{aPub}
    s_lshl_b32 s{sPub}, s{sG}, 12
    s_lshl_b32 s{t2}, s{sJ}, 9
    s_add_u32 s{sPub}, s{sPub}, s{t2}
    s_add_u32 s{sPub}, s{sPub}, {WS_H}
    s_waitcnt lgkmcnt(0)
    """)
    xloads()
    for i in range(20):
        a.vmem(f"buffer_load_dwordx2 {q2(vTile+2*i)}, v{aT}, {srd(S_W1)}, s{sA0} offen{NT}", f"t{i}")
        if i < 19: a(f"s_add_u32 s{sA0}, s{sA0}, {4*3456}")
    assert a.vm == vm_front
    a.label("L_ln")
    a("s_barrier")
    zero(vAcc)
    a(f"v_mov_b32 v{T4}, 0x3f803f80")
    a(f"v_mov_b32 v{T0}, 0")
    a.wait_vm("x")
    stamp("x")
    a(f"v_readfirstlane_b32 s{sT}, v{vE}")
    xr = [vX16, vX16+1, vX16+2, vX16+3, vX4]
    for r in xr: a(f"v_dot2c_f32_bf16 v{T0}, v{r}, v{T4}")
    for k, r in enumerate(xr):
        a(f"v_lshlrev_b32 v{xs[2*k]}, 16, v{r}")
        a(f"v_and_b32 v{xs[2*k+1]}, 0xffff0000, v{r}")
    a(f"s_add_u32 s{sT}, s{sT}, {TAGC}")
    wave_red("add", T0, T1, first_nop=False)
    a(f"v_mul_f32 v{T0}, 0x3acccccd, v{T0}")
    for k in range(10): a(f"v_sub_f32 v{xs[k]}, v{xs[k]}, v{T0}")
    a(f"v_mul_f32 v{T2}, v{xs[0]}, v{xs[0]}"); a(f"v_mul_f32 v{T3}, v{xs[1]}, v{xs[1]}")
    for k in range(2, 10, 2):
        a(f"v_fmac_f32 v{T2}, v{xs[k]}, v{xs[k]}"); a(f"v_fmac_f32 v{T3}, v{xs[k+1]}, v{xs[k+1]}")
    a(f"v_add_f32 v{T2}, v{T2}, v{T3}")
    rnd(T0)
    a(f"v_add_f32_dpp v{T2}, v{T2}, v{T2} row_ror:8 {DPP}")
    a(f"v_lshlrev_b32 v{vXa}, 16, v{vXa}"); a(f"v_lshlrev_b32 v{vXb}, 16, v{vXb}")
    a(f"v_add_f32_dpp v{T2}, v{T2}, v{T2} row_ror:4 {DPP}")
    a(f"v_sub_f32 v{vXa}, v{vXa}, v{T0}"); a(f"v_sub_f32 v{vXb}, v{vXb}, v{T0}")
    a(f"v_add_f32_dpp v{T2}, v{T2}, v{T2} row_ror:2 {DPP}")
    a(f"v_cvt_pk_bf16_f32 v{vXa}, v{vXa}, v{vXa}"); a(f"v_cvt_pk_bf16_f32 v{vXb}, v{vXb}, v{vXb}")
    a(f"v_add_f32_dpp v{T2}, v{T2}, v{T2} row_ror:1 {DPP}")
    a(f"v_and_b32 v{vXa}, 0xffff0000, v{vXa}")
    a(f"v_mov_b32 v{T1}, v{T2}")
    a(f"v_and_b32 v{vXb}, 0xffff0000, v{vXb}")
    a("s_nop 0")
    a(f"v_permlane16_swap_b32 v{T2}, v{T1}"); a(f"v_add_f32 v{T2}, v{T2}, v{T1}")
    a(f"v_mov_b32 v{T1}, v{T2}"); a("s_nop 1")
    a(f"v_permlane32_swap_b32 v{T2}, v{T1}"); a(f"v_add_f32 v{T2}, v{T2}, v{T1}")
    a(f"v_mul_f32 v{T2}, 0x3acccccd, v{T2}")
    rnd(T2)
    a(f"v_add_f32 v{T2}, 0x3727c5ac, v{T2}")
    rnd(T2)
    a(f"v_sqrt_f32 v{T2}, v{T2}"); a("s_nop 0")
    rnd(T2)
    a(f"v_rcp_f32 v{T2}, v{T2}"); a("s_nop 0")
    for r in (vXa, vXb): a(f"v_mul_f32 v{r}, v{r}, v{T2}")
    for r in (vXa, vXb): a(f"v_cvt_pk_bf16_f32 v{r}, v{r}, v{r}")
    a(f"v_and_b32 v{vXah}, 0xffff0000, v{vXa}"); a(f"v_and_b32 v{vXbh}, 0xffff0000, v{vXb}")
    a(f"v_and_b32 v{vXa}, 0xffff, v{vXa}"); a(f"v_and_b32 v{vXb}, 0xffff, v{vXb}")
    a(f"v_mov_b32 v{T1}, s{sT}")
    a(f"v_mov_b32 v{T3}, s{sT}")
    stamp("ln")
    vm_ln = list(a.vm)
    a(f"s_cmp_eq_u32 s{sW}, 0")
    a("s_cbranch_scc0 L_role_h1")
    for i in range(20):
        a.wait_vm(f"t{i}")
        if i == 19: stamp("tl")
        lo, hi = (vXa, vXah) if i < 16 else (vXb, vXbh)
        for k in range(4):
            a(f"v_dot2c_f32_bf16_dpp v{vAcc+2*k}, v{lo}, v{vTile+4*i+k} row_newbcast:{i%16} {DPP}")
            a(f"v_dot2c_f32_bf16_dpp v{vAcc+2*k+1}, v{hi}, v{vTile+4*i+k} row_newbcast:{i%16} {DPP}")
    a("s_nop 2")
    red32(vAcc+0, vAcc+4); red32(vAcc+2, vAcc+6); red32(vAcc+1, vAcc+5); red32(vAcc+3, vAcc+7)
    a("s_nop 0")
    red16(vAcc+0, vAcc+2, d=T0); red16(vAcc+1, vAcc+3, d=T2)
    a(f"buffer_store_dwordx4 v[{T0}:{T3}], v{aPub}, {srd(S_WS)}, s{sPub} offen sc1")
    a("s_branch L_front_done")
    a.label("L_role_h1")
    a.vm = list(vm_ln)
    for i in range(20):
        a.wait_vm(f"t{i}")
        lo, hi = (vXa, vXah) if i < 16 else (vXb, vXbh)
        for k in range(2):
            a(f"v_dot2c_f32_bf16_dpp v{vAcc+2*k}, v{lo}, v{vTile+2*i+k} row_newbcast:{i%16} {DPP}")
            a(f"v_dot2c_f32_bf16_dpp v{vAcc+2*k+1}, v{hi}, v{vTile+2*i+k} row_newbcast:{i%16} {DPP}")
    a("s_nop 2")
    red32(vAcc+0, vAcc+2); red32(vAcc+1, vAcc+3)
    a("s_nop 1")
    red16(vAcc+0, vAcc+1, d=T0)
    a(f"s_cmp_eq_u32 s{sMlp}, 0")
    a("s_cbranch_scc1 L_front_done")
    a(f"buffer_store_dwordx2 v[{T0}:{T1}], v{aPub}, {srd(S_WS)}, s{sPub} offen sc1")
    a.label("L_front_done")
    a("s_setprio 0")
    stamp("pq1")
    a("s_branch L_aux")
    a.label("L_aux23")
    if opts.get("cpf", "0") != "0":
        nchunk = int(opts.get("cpfn", "9"))
        a(f"s_cmp_eq_u32 s{sW}, 3")
        a("s_cbranch_scc0 L_nocpf")
        a(f"s_and_b32 s{t0}, s{sJ}, {int(opts['cpf'])-1}")
        a(f"s_cmp_eq_u32 s{t0}, 0")
        a("s_cbranch_scc0 L_nocpf")
        a("s_getpc_b64 s[18:19]")
        a.label("L_pc")
        a(f"s_sub_u32 s18, s18, L_pc-{KN}")
        a("s_subb_u32 s19, s19, 0")
        a(f"v_mov_b32 v{vWO}, s18")
        a(f"v_mov_b32 v{vWO+1}, s19")
        a(f"v_add_co_u32 v{vWO}, vcc, v{vWO}, v{aKV}")
        a("s_nop 1")
        a(f"v_addc_co_u32 v{vWO+1}, vcc, 0, v{vWO+1}, vcc")
        for c in range(nchunk):
            a(f"global_load_dwordx4 v[{vWO+4}:{vWO+7}], v[{vWO}:{vWO+1}], off offset:{(c%4)*1024}")
            if c % 4 == 3:
                a(f"v_add_co_u32 v{vWO}, vcc, 0x1000, v{vWO}")
                a("s_nop 1")
                a(f"v_addc_co_u32 v{vWO+1}, vcc, 0, v{vWO+1}, vcc")
        a.label("L_nocpf")
    a(f"v_mov_b32 v{T4}, 0")
    a(f"v_lshlrev_b32 v{aLq}, 2, v{vL}")
    a(f"ds_write_b32 v{aLq}, v{T4} offset:{L_FQ}")
    a("s_waitcnt lgkmcnt(0)")
    a("s_barrier")
    if opts.get("tlbpf", "0") == "1":
        a(f"s_cmp_eq_u32 s{sW}, 2")
        a("s_cbranch_scc0 L_notlb")
        a(f"""
        s_lshl_b32 s{t0}, s{sG}, 20
        s_lshl_b32 s{t1}, s{sJ}, 15
        s_add_u32 s{t0}, s{t0}, s{t1}
        s_add_u32 s{t0}, s{t0}, {3072*256}
        s_load_dword s88, s[{S_V}:{S_V+1}], s{t0}
        s_add_u32 s{t1}, s{sG}, {SHIFT}
        s_and_b32 s{t1}, s{t1}, 31
        s_mul_i32 s{t1}, s{t1}, {128*1280}
        s_load_dword s89, s[{S_WO}:{S_WO+1}], s{t1}
        s_mul_i32 s{t1}, s{sG}, {64*1280}
        s_min_u32 s{t1}, s{t1}, {2211840-64}
        s_load_dword s90, s[{S_W2}:{S_W2+1}], s{t1}
        s_load_dword s91, s[{S_B1}:{S_B1+1}], 0
        s_load_dword s92, s[{S_B2}:{S_B2+1}], 0
        s_load_dword s93, s[{S_OUT}:{S_OUT+1}], 0
        s_load_dword s94, s[{S_WS}:{S_WS+1}], {WS_O}
        s_load_dword s95, s[{S_WS}:{S_WS+1}], {WS_S}
        """)
        a.label("L_notlb")
    a(f"buffer_load_dword v{vE}, v{aZero}, {srd(S_WS)}, 0 offen sc1")
    a("s_waitcnt vmcnt(0)")
    a(f"v_readfirstlane_b32 s{sT}, v{vE}")
    a("s_nop 0")
    a(f"s_add_u32 s{sT}, s{sT}, {TAGC}")
    auxseq = opts.get("auxseq", "b1 ph w20 w21 w22 wo0 wo1 wo2 wo3 wo4").split() if "auxseq" not in opts else opts["auxseq"].replace("+", " ").split()
    def ld(x):
        if x == "b1":
            a(f"s_lshl_b32 s{t0}, s{sG}, 7"); a(f"s_lshl_b32 s{t1}, s{sW}, 5"); a(f"s_add_u32 s{t0}, s{t0}, s{t1}")
            a.vmem(f"buffer_load_ushort v{vB1}, v{aB1}, {srd(S_B1)}, s{t0} offen", "b1")
        elif x == "ph":
            a.vmem(f"buffer_load_dwordx4 {q4(vGh)}, v{aGh}, {srd(S_WS)}, s{sHg} offen sc1", "ph")
        elif x in ("w20", "w21"):
            i = int(x[2]); a.vmem(f"buffer_load_dwordx4 {q4(vW2+4*i)}, v{aWOm}, {srd(S_W2)}, s{sW2[i]} offen{NT}", "w2")
        elif x == "w22":
            a.vmem(f"buffer_load_dwordx4 {q4(vW2+8)}, v{aW2e}, {srd(S_W2)}, s{sW2[0]} offen{NT}", "w2")
        elif x == "wo4":
            a.vmem(f"buffer_load_dwordx4 {q4(vWO+16)}, v{aWOe}, {srd(S_WO)}, s{sWO[0]} offen{NT}", "wo")
        elif x.startswith("wo"):
            i = int(x[2]); a.vmem(f"buffer_load_dwordx4 {q4(vWO+4*i)}, v{aWOm}, {srd(S_WO)}, s{sWO[i]} offen{NT}", "wo")
        elif x == "xf":
            a(f"v_and_b32 v{aX4}, 28, v{aLq}")
            a.vmem(f"buffer_load_dword v{vXf}, v{aX4}, {srd(S_X)}, s{sC} offen", "xf")
            a.vmem(f"buffer_load_dword v{vB2}, v{aX4}, {srd(S_B2)}, s{sC} offen", "xf")
    a.label("L_aux")
    a.vm = []
    a(f"""
    v_lshrrev_b32 v{T0}, 4, v{vL}
    v_and_b32 v{T1}, 15, v{vL}
    v_lshrrev_b32 v{T2}, 3, v{vL}
    v_and_b32 v{T3}, 7, v{vL}
    v_mul_u32_u24 v{aWOm}, 1280, v{T2}
    v_lshl_add_u32 v{aWOm}, v{T3}, 4, v{aWOm}
    v_lshrrev_b32 v{T4}, 1, v{vL}
    v_mul_u32_u24 v{aWOe}, 1280, v{T4}
    v_and_b32 v{aW2e}, 1, v{vL}
    v_lshl_add_u32 v{aWOe}, v{aW2e}, 4, v{aWOe}
    v_add_u32 v{aWOe}, 128, v{aWOe}
    v_mov_b32 v{aG}, {OOB}
    v_cmp_gt_u32 vcc, 32, v{vL}
    v_lshlrev_b32 v{aL8}, 3, v{vL}
    v_lshlrev_b32 v{aS}, 12, v{T2}
    v_cndmask_b32 v{aW2e}, v{aG}, v{aWOe}, vcc
    v_lshl_add_u32 v{aS}, v{T3}, 4, v{aS}
    v_lshlrev_b32 v{aG}, 10, v{T0}
    v_lshl_add_u32 v{aG}, v{T1}, 4, v{aG}              ; p4*1024 + c*16
    v_lshlrev_b32 v{aGh}, 9, v{T2}
    v_lshl_add_u32 v{aGh}, v{T3}, 4, v{aGh}            ; p8*512 + c3*16
    v_add_u32 v{aSt1}, v{T0}, v{T1}
    v_and_b32 v{aSt1}, 7, v{aSt1}
    v_lshlrev_b32 v{aSt1}, 7, v{aSt1}                  ; ((c+p4)&7)*128
    v_lshlrev_b32 v{aLSm}, 5, v{T3}
    v_lshl_add_u32 v{aLSm}, v{T0}, 3, v{aLSm}
    s_mul_i32 s{t0}, s{sW}, 320
    v_add_u32 v{aLSm}, s{t0}, v{aLSm}
    v_and_b32 v{aLSe}, 1, v{vL}
    v_lshlrev_b32 v{aLSe}, 5, v{aLSe}
    v_lshl_add_u32 v{aLSe}, v{T0}, 3, v{aLSe}
    v_add_u32 v{aLSe}, s{t0}, v{aLSe}
    v_add_u32 v{aLSe}, 256, v{aLSe}
    v_and_b32 v{aBm}, 1, v{T2}
    v_lshlrev_b32 v{aBm}, 5, v{aBm}
    v_lshrrev_b32 v{aBe}, 1, v{T2}
    v_add_lshl_u32 v{aBm}, v{aBm}, v{aBe}, 2           ; ((r8&1)*32 + (r8>>1))*4
    v_and_b32 v{aBe}, 1, v{T4}
    v_lshlrev_b32 v{aBe}, 5, v{aBe}
    v_lshrrev_b32 v{aBe2}, 1, v{T4}
    v_add_lshl_u32 v{aBe}, v{aBe}, v{aBe2}, 2          ; d=l>>1 (0..31): ((d&1)*32 + (d>>1))*4
    v_and_b32 v{aBe2}, 0x9c, v{aBe}
    v_lshrrev_b32 v{aB1}, 5, v{vL}
    v_lshl_add_u32 v{aB1}, v{T3}, 1, v{aB1}
    v_lshlrev_b32 v{aB1}, 1, v{aB1}                    ; (2c3+hi)*2
    v_lshlrev_b32 v{aLq}, 2, v{vL}                     ; l*4
    s_add_u32 s{sGC}, s{sG}, {SHIFT}
    s_and_b32 s{sGC}, s{sGC}, 31
    s_lshl_b32 s{t0}, s{sGC}, 7
    s_lshl_b32 s{t1}, s{sW}, 5
    s_add_u32 s{t0}, s{t0}, s{t1}
    s_mul_i32 s{sWO[0]}, s{t0}, 1280
    s_mul_i32 s{t2}, s{sJ}, 160
    s_add_u32 s{sWO[0]}, s{sWO[0]}, s{t2}
    s_add_u32 s{sWO[1]}, s{sWO[0]}, 10240
    s_add_u32 s{sWO[2]}, s{sWO[0]}, 20480
    s_add_u32 s{sWO[3]}, s{sWO[0]}, 30720
    s_lshl_b32 s{t0}, s{sG}, 6
    s_lshl_b32 s{t1}, s{sW}, 4
    s_add_u32 s{t0}, s{t0}, s{t1}
    s_mul_i32 s{sW2[0]}, s{t0}, 1280
    s_add_u32 s{sW2[0]}, s{sW2[0]}, s{t2}
    s_add_u32 s{sW2[0]}, s{sW2[0]}, s{sOobM}
    s_add_u32 s{sW2[1]}, s{sW2[0]}, 10240
    s_lshl_b32 s{t0}, s{sG}, 13
    s_add_u32 s{sQg}, s{t0}, {WS_Q}
    s_add_u32 s{sPub}, s{sQg}, 4096
    s_lshl_b32 s{t1}, s{sW}, 8
    s_lshl_b32 s{t3}, s{sGC}, 13
    s_add_u32 s{t1}, s{t1}, s{t3}
    s_add_u32 s{sOg}, s{t1}, {WS_O}
    s_add_u32 s{sOg2}, s{sOg}, 4096
    s_lshl_b32 s{t1}, s{sJ}, 10
    s_add_u32 s{t1}, s{t1}, s{t0}
    s_add_u32 s{sOp}, s{t1}, {WS_O}
    s_lshl_b32 s{t0}, s{sG}, 12
    s_lshl_b32 s{t1}, s{sW}, 7
    s_add_u32 s{t1}, s{t1}, s{t0}
    s_add_u32 s{sHg}, s{t1}, {WS_H}
    s_cmp_eq_u32 s{sMlp}, 0
    s_cselect_b32 s{sHg}, s{sQg}, s{sHg}
    s_lshl_b32 s{t0}, s{sG}, 10
    s_add_u32 s{sStp}, s{t0}, {WS_ST}
    s_lshl_b32 s{t1}, s{sJ}, 7
    s_add_u32 s{sStp}, s{sStp}, s{t1}
    s_lshl_b32 s{t0}, s{sGC}, 10
    s_add_u32 s{sSt}, s{t0}, {WS_ST}
    s_lshl_b32 s{t0}, s{sG}, 7
    s_mul_i32 s{t1}, s{sJ}, {5*4096}
    s_add_u32 s{sSp}, s{t1}, s{t0}
    s_lshl_b32 s{t0}, s{sGC}, 7
    s_add_u32 s{sK}, s{t1}, s{t0}
    s_add_u32 s{sK}, s{sK}, {WS_S}
    s_sub_u32 s{t0}, s{sG}, 27
    s_lshl_b32 s{t0}, s{t0}, 3
    s_add_u32 s{t0}, s{t0}, s{sJ}
    s_lshl_b32 s{sC}, s{t0}, 5
    s_lshl_b32 s{t0}, s{t0}, 12
    s_add_u32 s{sFY}, s{t0}, {WS_Y}
    s_add_u32 s{sFS}, s{t0}, {WS_S}
    """)
    for _ in range(kvseq.count("bar")): a("s_barrier")
    EARLY = int(opts.get("early", "4"))
    a(f"s_cmp_lt_u32 s{sW}, {EARLY}")
    a("s_cbranch_scc1 L_noearly")
    for x in auxseq: ld(x)
    ld("xf")
    vm_aux = list(a.vm)
    a.label("L_noearly")
    a("s_barrier")
    stamp("b0")
    a(f"s_cmp_eq_u32 s{sW}, 0")
    a("s_cbranch_scc0 L_nop1")
    def p1_loads():
        for p in range(8):
            so = sQg if p < 4 else sPub
            a(f"buffer_load_dwordx4 {q4(vP1+4*p)}, v{aKV}, {srd(S_WS)}, s{so} offen offset:{1024*(p%4)} sc1")
    p1_loads()
    a.label("L_nop1")
    a("s_barrier")
    a("s_barrier")
    A0LATE = opts.get("a0late", "1") == "1"
    a(f"s_cmp_ge_u32 s{sW}, {EARLY}")
    a("s_cbranch_scc1 L_late_done")
    if A0LATE:
        a(f"s_cmp_eq_u32 s{sW}, 0")
        a("s_cbranch_scc1 L_late_done")
    a.vm = []
    for x in auxseq: ld(x)
    ld("xf")
    assert a.vm == vm_aux
    a.label("L_late_done")
    a(f"s_cmp_eq_u32 s{sW}, 0")
    a("s_cbranch_scc0 L_aux_b3")
    ptags = [vP1+4*p+k for p in range(8) for k in (1, 3)]
    a(f"s_waitcnt vmcnt({0 if A0LATE else len(vm_aux)})")
    stamp("p1ret")
    check_mm(ptags, T0, T1)
    a("s_cbranch_vccz L_qok")
    a.label("L_qretry")
    a(f"s_add_u32 s{sSpin}, s{sSpin}, 256")
    a(f"s_cmp_gt_u32 s{sSpin}, {1<<22}")
    a("s_cbranch_scc1 L_qok")
    p1_loads()
    a("s_waitcnt vmcnt(0)")
    check_mm(ptags, T0, T1)
    a("s_cbranch_vccnz L_qretry")
    a.label("L_qok")
    for off in (0, 2):
        a(f"v_add_f32 v{vP1+off}, v{vP1+off}, v{vP1+4+off}")
        a(f"v_add_f32 v{vP1+8+off}, v{vP1+8+off}, v{vP1+12+off}")
        a(f"v_add_f32 v{vP1+16+off}, v{vP1+16+off}, v{vP1+20+off}")
        a(f"v_add_f32 v{vP1+24+off}, v{vP1+24+off}, v{vP1+28+off}")
    for off in (0, 2):
        a(f"v_add_f32 v{vP1+off}, v{vP1+off}, v{vP1+8+off}")
        a(f"v_add_f32 v{vP1+16+off}, v{vP1+16+off}, v{vP1+24+off}")
    for off in (0, 2):
        a(f"v_add_f32 v{vP1+off}, v{vP1+off}, v{vP1+16+off}")
    a(f"v_cvt_pk_bf16_f32 v{T0}, v{vP1}, v{vP1+2}")
    a(f"ds_write_b32 v{aLq}, v{T0} offset:{L_Q}")
    a(f"v_mov_b32 v{T1}, 1")
    a(f"ds_write_b32 v{aZero}, v{T1} offset:{L_FQ}")
    stamp("pollq")
    if A0LATE:
        a.vm = []
        for x in auxseq: ld(x)
        ld("xf")
    a.vm = list(vm_aux)
    a.label("L_aux_b3")
    zero(vAcc); zero(vAcc2)
    a(f"s_cmp_gt_u32 s{sW}, 1")
    a("s_cbranch_scc1 L_pubo_done")
    a(f"s_cmp_eq_u32 s{sW}, 0")
    a("s_cbranch_scc0 L_pub_st")
    a(f"v_mov_b32 v{T1}, s{sT}")
    a(f"v_mov_b32 v{T3}, s{sT}")
    a.label("L_wo8")
    a(f"ds_read_b32 v{T4}, v{aZero} offset:{L_FO}")
    for k in range(8):
        a(f"ds_read_b64 {q2(vS0+2*k)}, v{aL8} offset:{L_OP+512*k}")
    a("s_waitcnt lgkmcnt(8)")
    a(f"v_readfirstlane_b32 s{t0}, v{T4}")
    a("s_nop 0")
    a(f"s_cmp_lt_u32 s{t0}, 8")
    a("s_cbranch_scc1 L_wo8w")
    stamp("b4")
    for k in range(0, 8, 2):
        a(f"s_waitcnt lgkmcnt({8 - (k+2)})")
        a(f"v_add_f32 v{vS0+2*k}, v{vS0+2*k}, v{vS0+2*k+2}")
        a(f"v_add_f32 v{vS0+2*k+1}, v{vS0+2*k+1}, v{vS0+2*k+3}")
    for k in (0, 4):
        a(f"v_add_f32 v{vS0+2*k}, v{vS0+2*k}, v{vS0+2*k+4}")
        a(f"v_add_f32 v{vS0+2*k+1}, v{vS0+2*k+1}, v{vS0+2*k+5}")
    a(f"v_add_f32 v{T0}, v{vS0}, v{vS0+8}")
    a(f"v_add_f32 v{T2}, v{vS0+1}, v{vS0+9}")
    a(f"buffer_store_dwordx4 v[{T0}:{T3}], v{aKV}, {srd(S_WS)}, s{sOp} offen sc1")
    a("s_branch L_pubo_done")
    a.label("L_wo8w")
    a("s_waitcnt lgkmcnt(0)")
    a("s_branch L_wo8")
    a.label("L_pub_st")
    a.label("L_wst")
    a(f"""
    ds_read_b32 v{T4}, v{aZero} offset:{L_FO}
    ds_read_b128 {q4(vG)}, v{aZero} offset:{L_LS}
    ds_read_b128 {q4(vG+4)}, v{aZero} offset:{L_LS+16}
    ds_read_b128 {q4(vG+8)}, v{aZero} offset:{L_MX}
    ds_read_b128 {q4(vG+12)}, v{aZero} offset:{L_MX+16}
    v_mov_b32 v{T1}, s{sT}
    v_mov_b32 v{T3}, s{sT}
    s_waitcnt lgkmcnt(0)
    v_readfirstlane_b32 s{t0}, v{T4}
    s_nop 0
    s_cmp_lt_u32 s{t0}, 8
    s_cbranch_scc1 L_wst
    v_add_f32 v{vG}, v{vG}, v{vG+1}
    v_add_f32 v{vG+2}, v{vG+2}, v{vG+3}
    v_add_f32 v{vG+4}, v{vG+4}, v{vG+5}
    v_add_f32 v{vG+6}, v{vG+6}, v{vG+7}
    v_add_f32 v{vG}, v{vG}, v{vG+2}
    v_add_f32 v{vG+4}, v{vG+4}, v{vG+6}
    v_add_f32 v{T2}, v{vG}, v{vG+4}
    v_max3_f32 v{T0}, v{vG+8}, v{vG+9}, v{vG+10}
    v_max3_f32 v{T4}, v{vG+11}, v{vG+12}, v{vG+13}
    v_max3_f32 v{T0}, v{T0}, v{vG+14}, v{vG+15}
    v_max_f32 v{T0}, v{T0}, v{T4}
    s_mov_b64 exec, 0xff
    buffer_store_dwordx4 v[{T0}:{T3}], v{aKV}, {srd(S_WS)}, s{sStp} offen sc1
    s_mov_b64 exec, -1
    """)
    a.label("L_pubo_done")
    stamp("pubo")
    a.wait_vm("ph")
    check([vGh+1, vGh+3])
    a("s_cbranch_vccz L_hok")
    a.label("L_hretry")
    a(f"s_add_u32 s{sSpin}, s{sSpin}, 16")
    a(f"s_cmp_gt_u32 s{sSpin}, {1<<22}")
    a("s_cbranch_scc1 L_hok")
    a(f"buffer_load_dwordx4 {q4(vGh)}, v{aGh}, {srd(S_WS)}, s{sHg} offen sc1")
    a("s_waitcnt vmcnt(0)")
    check([vGh+1, vGh+3])
    a("s_cbranch_vccnz L_hretry")
    a.label("L_hok")
    red32(vGh, vGh+2)
    a(f"v_mov_b32 v{T0}, v{vGh}"); a("s_nop 1")
    red16(vGh, T0)
    a("s_nop 1")
    a(f"v_add_f32_dpp v{vGh}, v{vGh}, v{vGh} row_ror:8 {DPP}")
    a.wait_vm("b1")
    a(f"v_lshlrev_b32 v{vB1}, 16, v{vB1}")
    rnd(vGh)
    a(f"v_add_f32 v{vHs}, v{vGh}, v{vB1}")
    rnd(vHs)
    a(f"""
    s_mov_b32 s{t0}, 0x3d372713
    s_mov_b32 s{t1}, 0xc0135761
    v_mul_f32 v{T0}, v{vHs}, v{vHs}
    v_mul_f32 v{T0}, s{t0}, v{T0}
    v_fma_f32 v{T0}, v{T0}, v{vHs}, v{vHs}
    v_mul_f32 v{T0}, s{t1}, v{T0}
    v_exp_f32 v{T0}, v{T0}
    s_nop 0
    v_add_f32 v{T0}, 1.0, v{T0}
    v_rcp_f32 v{T0}, v{T0}
    s_nop 0
    v_mul_f32 v{T0}, v{vHs}, v{T0}
    v_cvt_pk_bf16_f32 v{T0}, v{T0}, v{T0}
    v_and_b32 v{T0}, 0xffff, v{T0}
    ds_bpermute_b32 v{vXq}, v{aBm}, v{T0}
    ds_bpermute_b32 v{vXq+1}, v{aBm}, v{T0} offset:16
    ds_bpermute_b32 v{vXq+2}, v{aBe2}, v{T0}
    """)
    zero(vAcc3)
    a("s_waitcnt lgkmcnt(0)")
    for i in range(3): a(f"v_lshlrev_b32 v{vXqh+i}, 16, v{vXq+i}")
    a.wait_vm("w2")
    if stamps and "awo" in sel:
        a.wait_vm("wo"); stamp("awo")
    for i in range(2): mac8(vAcc2, vW2+4*i, vXq+i, vXqh+i)
    mac8(vAcc3, vW2+8, vXq+2, vXqh+2)
    def red_tile(accM, accE, lbase):
        red8regs(accM, accE)
        a("s_nop 1")
        for r in (accM, accM+1, accE, accE+1):
            a(f"v_add_f32_dpp v{r}, v{r}, v{r} row_ror:8 {DPP}")
        a("s_nop 0")
        for r in (accE, accE+1):
            a(f"v_add_f32_dpp v{r}, v{r}, v{r} row_ror:4 {DPP}")
        a(f"ds_write_b64 v{aLSm}, {q2(accM)} offset:{lbase}")
        a("s_nop 0")
        for r in (accE, accE+1):
            a(f"v_add_f32_dpp v{r}, v{r}, v{r} quad_perm:[2,3,0,1] {DPP}")
        a(f"ds_write_b64 v{aLSe}, {q2(accE)} offset:{lbase}")
    red_tile(vAcc2, vAcc3, L_YP)
    zero(vAcc2)
    stamp("mlp")
    otags = [vG+1, vG+3, vG+5, vG+7, vG+9, vG+11]
    vGB = vS0
    LF = opts.get("lf", "sc1").replace("+", " ")
    def po_loads(b):
        a(f"buffer_load_dwordx4 {q4(b)}, v{aG}, {srd(S_WS)}, s{sOg} offen {LF}")
        a(f"buffer_load_dwordx4 {q4(b+4)}, v{aG}, {srd(S_WS)}, s{sOg2} offen {LF}")
        a(f"buffer_load_dwordx4 {q4(b+8)}, v{aSt1}, {srd(S_WS)}, s{sSt} offen {LF}")
    C0, C1, C2, C3, CM, CL = [vAcc3 + k for k in range(6)]
    def copyC(b):
        for d, k in ((C0, 0), (C1, 2), (C2, 4), (C3, 6), (CM, 8), (CL, 10)): a(f"v_mov_b32 v{d}, v{b+k}")
    if opts.get("gate", "1") == "1":
        a.label("L_gate")
        a(f"ds_read_b32 v{T4}, v{aZero} offset:{L_FO}")
        a("s_waitcnt lgkmcnt(0)")
        a(f"v_readfirstlane_b32 s{t0}, v{T4}")
        a("s_nop 0")
        a(f"s_cmp_lt_u32 s{t0}, 8")
        a("s_cbranch_scc0 L_gate_ok")
        a("s_sleep 1")
        a("s_branch L_gate")
        a.label("L_gate_ok")
    if int(opts.get("presleep", "0")): a(f"s_sleep {opts['presleep']}")
    if opts.get("pipe", "0") == "1":
        po_loads(vG)
        a(f"s_sleep {opts.get('posleep', '6')}")
        a.label("L_oretry")
        po_loads(vGB)
        a(f"s_add_u32 s{sSpin}, s{sSpin}, 65536")
        a("s_waitcnt vmcnt(3)")
        check_mm(otags, T0, T1)
        a(f"s_cmp_gt_u32 s{sSpin}, 0x7f000000")
        a("s_cbranch_scc1 L_ookA")
        a("s_cbranch_vccz L_ookA")
        po_loads(vG)
        a(f"s_add_u32 s{sSpin}, s{sSpin}, 65536")
        a("s_waitcnt vmcnt(3)")
        check_mm([t - vG + vGB for t in otags], T0, T1)
        a("s_cbranch_vccnz L_oretry")
        copyC(vGB)
        a("s_branch L_ook")
        a.label("L_ookA")
        copyC(vG)
    else:
        a.label("L_oretry")
        po_loads(vG)
        a(f"s_add_u32 s{sSpin}, s{sSpin}, 65536")
        a("s_waitcnt vmcnt(0)")
        check_mm(otags, T0, T1)
        a(f"s_cmp_gt_u32 s{sSpin}, 0x7f000000")
        a("s_cbranch_scc1 L_ookA")
        a("s_cbranch_vccz L_ookA")
        if int(opts.get("loopsleep", "0")): a(f"s_sleep {opts['loopsleep']}")
        a("s_branch L_oretry")
        a.label("L_ookA")
        copyC(vG)
    a.label("L_ook")
    a.vm = []
    stamp("pollo")
    a(f"v_mov_b32 v{T0}, v{CM}")
    for n in (4, 2, 1):
        a("s_nop 1")
        a(f"v_max_f32_dpp v{T0}, v{T0}, v{T0} row_ror:{n} {DPP}")
    a(f"""
    v_sub_f32 v{T1}, v{CM}, v{T0}
    v_mul_f32 v{T1}, s{sLog2e}, v{T1}
    v_exp_f32 v{T1}, v{T1}
    s_nop 0
    v_mul_f32 v{T2}, v{T1}, v{CL}
    s_nop 0
    v_mov_b32_dpp v{T3}, v{T1} row_newbcast:0 {DPP}
    v_mov_b32_dpp v{T4}, v{T1} row_newbcast:4 {DPP}
    v_add_f32_dpp v{T2}, v{T2}, v{T2} row_ror:4 {DPP}
    v_mul_f32 v{C0}, v{C0}, v{T3}
    v_mul_f32 v{C1}, v{C1}, v{T3}
    v_add_f32_dpp v{T2}, v{T2}, v{T2} row_ror:2 {DPP}
    v_fmac_f32 v{C0}, v{C2}, v{T4}
    v_fmac_f32 v{C1}, v{C3}, v{T4}
    v_add_f32_dpp v{T2}, v{T2}, v{T2} row_ror:1 {DPP}
    s_nop 0
    v_permlane32_swap_b32 v{C0}, v{C1}
    v_add_f32 v{C0}, v{C0}, v{C1}
    v_rcp_f32 v{T2}, v{T2}
    v_mov_b32 v{T0}, v{C0}
    s_nop 1
    v_permlane16_swap_b32 v{C0}, v{T0}
    v_add_f32 v{C0}, v{C0}, v{T0}
    v_mul_f32 v{C0}, v{C0}, v{T2}
    v_cvt_pk_bf16_f32 v{C0}, v{C0}, v{C0}
    v_and_b32 v{C0}, 0xffff, v{C0}
    """)
    for i in range(4): a(f"ds_bpermute_b32 v{vXq+i}, v{aBm}, v{C0} offset:{16*i}")
    a(f"ds_bpermute_b32 v{vXq+4}, v{aBe}, v{C0}")
    for i in range(5):
        a(f"s_waitcnt lgkmcnt({4-i})")
        a(f"v_lshlrev_b32 v{vXqh+i}, 16, v{vXq+i}")
        mac8(vAcc if i < 4 else vAcc2, vWO+4*i, vXq+i, vXqh+i)
    red_tile(vAcc, vAcc2, L_SP)
    a("s_waitcnt vmcnt(0) lgkmcnt(0)")
    a("s_barrier")
    a(f"""
    s_cmp_gt_u32 s{sW}, 1
    s_cbranch_scc1 L_pubs_done
    s_mov_b32 exec_hi, 0xff
    s_cmp_eq_u32 s{sW}, 0
    s_cbranch_scc1 L_pubs_s
    s_cmp_eq_u32 s{sMlp}, 0
    s_cbranch_scc1 L_pubs_skip
    s_add_u32 s{t0}, s{sSp}, {WS_Y}
    """)
    pub_sum(4, L_YP, 320, t0, voff=aS)
    a("s_branch L_pubs_skip")
    a.label("L_pubs_s")
    pub_sum(4, L_SP, 320, sK, voff=aS)
    a.label("L_pubs_skip")
    a("s_mov_b64 exec, -1")
    a.label("L_pubs_done")
    if opts.get("b6", "1") == "1": a("s_barrier")
    stamp("pubs")
    nfin = int(opts.get("nfin", "1"))
    a(f"""
    s_cmp_lt_u32 s{sG}, 27
    s_cbranch_scc1 L_fin
    s_cmp_lt_u32 s{sW}, {4-nfin}
    s_cbranch_scc1 L_fin
    v_mov_b32 v{vFF+28}, 0
    v_mov_b32 v{vFF+29}, s{sT}
    v_mov_b32 v{vFF+30}, 0
    v_mov_b32 v{vFF+31}, s{sT}
    """)
    if int(opts.get("fpre", "0")): a(f"s_sleep {opts['fpre']}")
    a.label("L_pollf")
    for i in range(4):
        a(f"buffer_load_dwordx4 {q4(vFF+4*i)}, v{aKV}, {srd(S_WS)}, s{sFS} offen offset:{1024*i} sc1")
    for i in range(3):
        a(f"buffer_load_dwordx4 {q4(vFF+16+4*i)}, v{aKV}, {srd(S_WS)}, s{sFY} offen offset:{1024*i} sc1")
    a("s_mov_b32 exec_lo, 0xffffff")
    a("s_mov_b32 exec_hi, 0")
    a(f"buffer_load_dwordx4 {q4(vFF+28)}, v{aKV}, {srd(S_WS)}, s{sFY} offen offset:3072 sc1")
    a("s_mov_b64 exec, -1")
    a(f"s_add_u32 s{sSpin}, s{sSpin}, 65536")
    a("s_waitcnt vmcnt(0)")
    check_mm([vFF+4*i+k for i in range(8) for k in (1, 3)], T0, T1)
    a(f"s_cmp_gt_u32 s{sSpin}, 0x7f000000")
    a("s_cbranch_scc1 L_pollf_done")
    a("s_cbranch_vccz L_pollf_done")
    if int(opts.get("floop", "0")): a(f"s_sleep {opts['floop']}")
    a("s_branch L_pollf")
    a.label("L_pollf_done")
    for (dst, base) in ((vG, vFF), (vG+2, vFF+16)):
        a(f"v_add_f32 v{dst}, v{base}, v{base+4}")
        a(f"v_add_f32 v{dst+1}, v{base+2}, v{base+6}")
        a(f"v_add_f32 v{T2}, v{base+8}, v{base+12}")
        a(f"v_add_f32 v{T3}, v{base+10}, v{base+14}")
        a(f"v_add_f32 v{dst}, v{dst}, v{T2}")
        a(f"v_add_f32 v{dst+1}, v{dst+1}, v{T3}")
    a("s_nop 0")
    red32(vG, vG+1); red32(vG+2, vG+3)
    a(f"v_mov_b32 v{T2}, v{vG}"); a(f"v_mov_b32 v{T3}, v{vG+2}"); a("s_nop 0")
    red16(vG, T2); red16(vG+2, T3)
    a("s_nop 0")
    a(f"v_add_f32_dpp v{vG}, v{vG}, v{vG} row_ror:8 {DPP}")
    a(f"v_add_f32_dpp v{vG+2}, v{vG+2}, v{vG+2} row_ror:8 {DPP}")
    a(f"""
    v_lshrrev_b32 v{T4}, 5, v{vL}
    v_lshlrev_b32 v{T4}, 4, v{T4}
    v_lshrrev_b32 v{vB2}, v{T4}, v{vB2}
    v_lshlrev_b32 v{vB2}, 16, v{vB2}
    v_lshrrev_b32 v{vXf}, v{T4}, v{vXf}
    v_lshlrev_b32 v{vXf}, 16, v{vXf}
    """)
    rnd(vG); rnd(vG+2)
    a(f"v_add_f32 v{vG+2}, v{vG+2}, v{vB2}")
    rnd(vG+2)
    a(f"""
    v_mul_f32 v{T2}, s{sLog2e}, v{vG+2}
    v_sub_f32 v{T2}, 0, v{T2}
    v_exp_f32 v{T2}, v{T2}
    s_nop 0
    v_add_f32 v{T2}, 1.0, v{T2}
    v_rcp_f32 v{T2}, v{T2}
    s_nop 0
    v_mul_f32 v{vG+2}, v{vG+2}, v{T2}
    """)
    rnd(vG+2)
    a(f"v_mul_f32 v{vG}, v{vG}, v{vG+2}")
    rnd(vG)
    a(f"""
    v_add_f32 v{vG}, v{vG}, v{vXf}
    v_cvt_pk_bf16_f32 v{vG}, v{vG}, v{vG}
    v_lshrrev_b32 v{T4}, 5, v{vL}
    v_lshl_add_u32 v{aX4}, v{T4}, 1, v{aX4}
    s_mov_b32 exec_lo, 0xff
    s_mov_b32 exec_hi, 0xff
    buffer_store_short v{vG}, v{aX4}, {srd(S_OUT)}, s{sC} offen
    s_cmp_eq_u32 s{sC}, 0
    s_cbranch_scc0 L_fin0
    s_cmp_eq_u32 s{sW}, 3
    s_cbranch_scc0 L_fin0
    v_mov_b32 v{T2}, s{sT}
    s_mov_b64 exec, 1
    buffer_store_dword v{T2}, v{aZero}, {srd(S_WS)}, 0 offen sc1
    """)
    a.label("L_fin0")
    a("s_mov_b64 exec, -1")
    a("s_branch L_fin")
    a.label("L_kv")
    a.vm = []
    a(f"""
    s_sub_u32 s{sKW}, s{sW}, {NAUX}
    s_lshl_b32 s{sK}, s{sG}, 20
    s_lshl_b32 s{t2}, s{sJ}, 15
    s_add_u32 s{sK}, s{sK}, s{t2}
    s_lshl_b32 s{t2}, s{sKW}, 12
    s_add_u32 s{sK}, s{sK}, s{t2}
    s_add_u32 s{sK}, s{sK}, {3072*256}
    v_lshlrev_b32 v{aLq}, 5, v{T1}
    v_lshl_add_u32 v{aLq}, v{T0}, 3, v{aLq}
    s_lshl_b32 s{t0}, s{sKW}, 9
    v_add_u32 v{aLq}, s{t0}, v{aLq}
    v_lshlrev_b32 v{aLqr}, 4, v{T1}
    s_mov_b32 s{sScale}, 0x3db504f3
    s_lshl_b32 s{t0}, s{sKW}, 2
    v_mov_b32 v{aPub}, s{t0}
    s_waitcnt lgkmcnt(0)
    s_barrier                                    ; Bs
    """)
    for x in kvseq:
        if x[0] == "k": a.vmem(f"buffer_load_dwordx4 {q4(vK+4*int(x[1]))}, v{aKV}, {srd(S_K)}, s{sK} offen offset:{1024*int(x[1])}{NT}", x)
        elif x[0] == "v": a.vmem(f"buffer_load_dwordx4 {q4(vV+4*int(x[1]))}, v{aKV}, {srd(S_V)}, s{sK} offen offset:{1024*int(x[1])}{NT}", x)
        elif x[0] == "W": a.wait_vm(x[1:])
        elif x == "bar": a("s_barrier")
        elif x[0] == "S":
            kw = int(x[1]); tg = x[2:]
            idx = a.vm.index(tg)
            a(f"s_cmp_eq_u32 s{sKW}, {kw}")
            a(f"s_cbranch_scc0 L_skipS")
            a(f"s_waitcnt vmcnt({len(a.vm)-1-idx})")
            a.label("L_skipS")
    for i in range(4): a(f"v_mov_b32 v{vAcc3+i}, 0")
    zero(vAcc)
    a("s_barrier")
    stamp("b0")
    a("s_barrier")
    kvpost = opts.get("kvpost", "").replace("+", " ").split()
    for x in kvpost:
        a.vmem(f"buffer_load_dwordx4 {q4(vV+4*int(x[1]))}, v{aKV}, {srd(S_V)}, s{sK} offen offset:{1024*int(x[1])}{NT}", x)
    a("s_barrier")
    a.wait_vm("k0", "k1", "k2", "k3")
    if stamps and "av3" in sel:
        a.wait_vm("v3"); stamp("av3")
    a(f"v_mov_b32 v{vE}, 1")
    a.label("L_wq")
    a(f"ds_read_b32 v{T4}, v{aZero} offset:{L_FQ}")
    a(f"ds_read_b128 {q4(vQ)}, v{aLqr} offset:{L_Q}")
    a("s_waitcnt lgkmcnt(0)")
    a(f"v_readfirstlane_b32 s{t0}, v{T4}")
    a("s_nop 0")
    a(f"s_cmp_eq_u32 s{t0}, 0")
    a("s_cbranch_scc1 L_wq")
    stamp("pollq")
    vSc = vAcc3
    for k in range(4):
        for i in range(4):
            a(f"v_dot2c_f32_bf16 v{vSc+i}, v{vK+4*i+k}, v{vQ+k}")
    a("s_nop 2")
    D = "row_mask:0xf"
    a(f"v_add_f32_dpp v{T0}, v{vSc+0}, v{vSc+0} row_ror:8 {D} bank_mask:0x3")
    a(f"v_add_f32_dpp v{T1}, v{vSc+1}, v{vSc+1} row_ror:8 {D} bank_mask:0x3")
    a(f"v_add_f32_dpp v{T0}, v{vSc+2}, v{vSc+2} row_ror:8 {D} bank_mask:0xc")
    a(f"v_add_f32_dpp v{T1}, v{vSc+3}, v{vSc+3} row_ror:8 {D} bank_mask:0xc")
    a("s_nop 0")
    a(f"v_add_f32_dpp v{T2}, v{T0}, v{T0} row_shl:4 {D} bank_mask:0x5")
    a(f"v_add_f32_dpp v{T2}, v{T1}, v{T1} row_shr:4 {D} bank_mask:0xa")
    a("s_nop 1")
    a(f"v_add_f32_dpp v{T2}, v{T2}, v{T2} quad_perm:[2,3,0,1] {DPP}")
    a("s_nop 1")
    a(f"v_add_f32_dpp v{T2}, v{T2}, v{T2} quad_perm:[1,0,3,2] {DPP}")
    rnd(T2)
    a(f"v_mul_f32 v{T2}, s{sScale}, v{T2}")
    rnd(T2)
    a(f"v_mov_b32 v{T0}, v{T2}")
    wave_red("max", T0, T1, rors=(8, 4))
    a(f"""
    ds_write_b32 v{aPub}, v{T0} offset:{L_MX}
    s_mov_b64 exec, 1
    ds_add_u32 v{aZero}, v{vE} offset:{L_FM}
    s_mov_b64 exec, -1
    L_wm:
    ds_read_b32 v{T4}, v{aZero} offset:{L_FM}
    ds_read_b128 {q4(vG)}, v{aZero} offset:{L_MX}
    ds_read_b128 {q4(vG+8)}, v{aZero} offset:{L_MX+16}
    s_waitcnt lgkmcnt(0)
    v_readfirstlane_b32 s{t0}, v{T4}
    s_nop 0
    s_cmp_lt_u32 s{t0}, 8
    s_cbranch_scc1 L_wm
    v_max3_f32 v{T0}, v{vG}, v{vG+1}, v{vG+2}
    v_max3_f32 v{T1}, v{vG+3}, v{vG+8}, v{vG+9}
    v_max3_f32 v{T0}, v{T0}, v{vG+10}, v{vG+11}
    v_max_f32 v{vMj}, v{T0}, v{T1}
    v_sub_f32 v{T2}, v{T2}, v{vMj}
    v_mul_f32 v{T2}, s{sLog2e}, v{T2}
    v_exp_f32 v{T2}, v{T2}
    s_nop 0
    v_cvt_pk_bf16_f32 v{vPl}, v{T2}, v{T2}
    v_mov_b32 v{vLs}, v{T2}
    v_and_b32 v{vPh}, 0xffff0000, v{vPl}
    v_and_b32 v{vPl}, 0xffff, v{vPl}
    """)
    stamp("smax")
    a("s_nop 1")
    for i in range(4):
        a.wait_vm(f"v{i}")
        mac8(vAcc, vV+4*i, vPl, vPh, dpp=f"row_newbcast:{4*i}")
    red8regs(vAcc)
    a(f"ds_write_b64 v{aLq}, {q2(vAcc)} offset:{L_OP}")
    wave_red("add", vLs, T1, rors=(8, 4), first_nop=False)
    a(f"""
    ds_write_b32 v{aPub}, v{vLs} offset:{L_LS}
    s_mov_b64 exec, 1
    ds_add_u32 v{aZero}, v{vE} offset:{L_FO}
    s_mov_b64 exec, -1
    """)
    stamp("b4")
    a.label("L_fin")
    if stamps and echo is not None:
        stamp("end")
        ie = sel.index("end")
        a(f"""
        s_waitcnt lgkmcnt(0)
        s_cmp_eq_u32 s2, 27
        s_cbranch_scc0 L_end
        s_cmp_eq_u32 s{sW}, 3
        s_cbranch_scc0 L_end
        s_sub_u32 s{t0}, s{SP[echo]}, s{SP[0]}
        s_add_u32 s{t0}, s{t0}, s{SP[ie]}
        """)
        a.label("L_echo")
        a(f"""
        s_memrealtime s[16:17]
        s_waitcnt lgkmcnt(0)
        s_sub_u32 s18, s16, s{t0}
        s_cmp_lt_i32 s18, 0
        s_cbranch_scc1 L_echo
        """)
    elif stamps:
        stamp("end")
        a("s_waitcnt lgkmcnt(0)")
        a(f"""
        s_lshl_b32 s{t0}, s2, 4
        s_add_u32 s{t0}, s{t0}, s{sW}
        s_lshl_b32 s{t0}, s{t0}, 7
        s_add_u32 s{t0}, s{t0}, {WS_TS}
        """)
        for k in range(len(SP)):
            a(f"v_mov_b32 v{vG+k}, s{SP[k]}")
        a(f"v_mov_b32 v{vG+len(SP)}, s{sSpin}")
        a("s_mov_b64 exec, 1")
        for k in range(3):
            a(f"buffer_store_dwordx4 {q4(vG+4*k)}, v{aZero}, {srd(S_WS)}, s{t0} offen offset:{16*k}")
    a.label("L_end")
    a("s_endpgm")
    SFL = opts.get("sf", "sc1").replace("+", " ")
    if SFL != "sc1":
        a.l = [(l.replace(" offen sc1", " offen " + SFL) if ("buffer_store" in l and l.endswith("sc1")) else l) for l in a.l]
    FFL = opts.get("ff", "sc1").replace("+", " ")
    if FFL != "sc1":
        a.l = [(l[:-3] + FFL if ("buffer_load_dwordx4" in l and l.endswith("sc1") and (f"s{sFS} offen" in l or f"s{sFY} offen" in l)) else l) for l in a.l]
    body = "\n".join(a.l) + "\n"
    src = HDR_COMMENT + f"""; Override launch geometry by editing the next line (default: block=256,
; grid=ceil(out_elems/256), lds=0). Harness parses it; keep it on one line.
; @launch grid=(256,1,1) block=({NW*64},1,1) lds={LDS}
.amdgcn_target "amdgcn-amd-amdhsa--gfx950"
.text
.globl {KN}
.p2align 8
.type {KN},@function
{KN}:
{body}
.section .rodata,"a"
.p2align 6
.amdhsa_kernel {KN}
  .amdhsa_next_free_vgpr {NV}
  .amdhsa_next_free_sgpr 102
  .amdhsa_accum_offset {NV}
  .amdhsa_group_segment_fixed_size 0
  .amdhsa_kernarg_size 104
  .amdhsa_user_sgpr_count 2
  .amdhsa_user_sgpr_kernarg_segment_ptr 1
  .amdhsa_system_sgpr_workgroup_id_x 1
.end_amdhsa_kernel
"""
    return src

if __name__ == "__main__":
    import argparse
    p = argparse.ArgumentParser()
    p.add_argument("-o", default="k8.s")
    p.add_argument("--stamps", action="store_true")
    p.add_argument("--no-nt", action="store_true")
    p.add_argument("--echo", type=int, default=None)
    p.add_argument("--opt", action="append", default=[])
    args = p.parse_args()
    opts = dict(o.split("=") for o in args.opt)
    open(args.o, "w").write(gen(nt=not args.no_nt, stamps=args.stamps, echo=args.echo, opts=opts))
```

```python
import sys
KN = "recurrent_scan__sliding_block_cached__dense_activation_gelu__decode_kernel"
HDR_COMMENT = open("recurrent_scan__sliding_block_cached__dense_activation_gelu__decode.s.ref").read().split("; Override launch")[0]

class A:
    def __init__(self):
        self.l = []; self.vm = []
    def __call__(self, s):
        for line in s.strip("\n").split("\n"):
            line = line.strip()
            if line: self.l.append("  " + line)
    def label(self, n): self.l.append(n + ":")
    def vmem(self, s, tag):
        self(s); self.vm.append(tag)
    def wait_vm(self, *tags):
        idxs = [i for i, t in enumerate(self.vm) if t in tags]
        if not idxs: return
        idx = max(idxs)
        n = len(self.vm) - 1 - idx
        self(f"s_waitcnt vmcnt({min(n,63)})")
        self.vm = self.vm[idx + 1:]

WS_EPOCH = 0
WS_Q  = 0x1000
WS_H  = WS_Q + 32*8*1024
WS_O  = WS_H + 32*8*512
WS_ST = WS_O + 32*8*1024
WS_S  = WS_ST + 32*8*128
WS_Y  = WS_S + 40*32*128
WS_TS = WS_Y + 40*32*128
NW = 12
NAUX = 4
TSW = 16
WS_END = WS_TS + 256*TSW*128
TAGC = 0x9E3779B9
OOB = 0x7f000000
DEF_STAMPS = "start,pq1,b0,pollq,smax,pubo,pollo,pubs,end"

def gen(nt=True, stamps=False, echo=None, opts=None):
    opts = opts or {}
    a = A()
    NT = " nt" if nt else ""
    S_X, S_K, S_V, S_WQ, S_WO, S_W1, S_B1, S_W2, S_B2, S_OUT, S_WS = [44 + 4*i for i in range(11)]
    srd = lambda b: f"s[{b}:{b+3}]"
    sG, sJ, sW, sT = 3, 4, 5, 6
    t0, t1, t2, t3 = 7, 8, 9, 10
    sSpin = 11
    sM = 12
    sKW = 14
    sA0 = 16
    sK = 21; sWO = [17,18,19,20]; sW2 = [22,23]
    sXo = 25
    sQg = 26; sHg = 27; sOg = 28; sSt = 29
    sPub = 30; sOg2 = 31; sOp = 32; sStp = 33
    sSp = 34; sMlp = 35
    sScale, sLog2e = 36, 37
    sC = 38; sOobM = 39
    sFS = 24; sFY = 15; sGC = 16
    SHIFT = int(opts.get('shift', '1'))
    SP = [88,90,92,94,96,98,100,40,42]
    sel = opts.get("stamps", DEF_STAMPS).split(",")
    def stamp(name):
        if stamps and name in sel:
            r = SP[sel.index(name)]; a(f"s_memrealtime s[{r}:{r+1}]")
    vL = 1
    (aKV, aT, aWOm, aWOe, aW2e, aXa, aX4, aG, aGh, aSt1,
     aLq, aL8, aLqr, aLSm, aLSe, aS, aBm, aBe, aZero, aPub, aB1, aBe2) = range(2, 24)
    T0, T1, T2, T3, T4 = 26, 27, 28, 29, 30
    vE = 31; vX4 = 32; vX16 = 36
    vXa = 40; vXb = 41; vXah = 42; vXbh = 43
    vXq = 44; vXqh = 49
    vMj = 54; vLs = 55; vB1 = 56; vXf = 57; vB2 = 58; vPl = 59; vPh = 60; vHs = 61
    vQ = 64; vAcc = 68; vAcc2 = 76; vAcc3 = 84; vG = 92
    vK = 108; vV = 124
    vTile = 76; xs = list(range(156, 166))
    vP1 = 124
    vWO = 108
    NV = 168
    vP1 = 76; vWO = 108; vW2 = 128; vGh = 140; vS0 = 144; vFF = 108
    q4 = lambda b: f"v[{b}:{b+3}]"
    q2 = lambda b: f"v[{b}:{b+1}]"
    L_OP = 0; L_Q = 4096; L_MX = 4352; L_LS = 4384; L_SP = 4608; L_YP = 5888; L_FQ = 7168; L_FM = 7172; L_FO = 7176; LDS = 7424
    DPP = "row_mask:0xf bank_mask:0xf"

    def zero(base, n=8):
        for k in range(n): a(f"v_mov_b32 v{base+k}, 0")
    def rnd(v):
        a(f"v_cvt_pk_bf16_f32 v{v}, v{v}, v{v}"); a(f"v_and_b32 v{v}, 0xffff0000, v{v}")
    def wave_red(op, v, t, rors=(8,4,2,1), s16=True, s32=True, first_nop=True):
        for n_i, n in enumerate(rors):
            if n_i > 0 or first_nop: a("s_nop 1")
            a(f"v_{op}_f32_dpp v{v}, v{v}, v{v} row_ror:{n} {DPP}")
        if s16:
            a(f"v_mov_b32 v{t}, v{v}"); a("s_nop 1")
            a(f"v_permlane16_swap_b32 v{v}, v{t}"); a(f"v_{op}_f32 v{v}, v{v}, v{t}")
        if s32:
            a(f"v_mov_b32 v{t}, v{v}"); a("s_nop 1")
            a(f"v_permlane32_swap_b32 v{v}, v{t}"); a(f"v_{op}_f32 v{v}, v{v}, v{t}")
    def red32(x, y):
        a(f"v_permlane32_swap_b32 v{x}, v{y}"); a(f"v_add_f32 v{x}, v{x}, v{y}")
    def red16(x, y, d=None):
        a(f"v_permlane16_swap_b32 v{x}, v{y}"); a(f"v_add_f32 v{x if d is None else d}, v{x}, v{y}")
    def red8regs(*accs):
        a("s_nop 2")
        for acc in accs:
            red32(acc+0, acc+4); red32(acc+2, acc+6); red32(acc+1, acc+5); red32(acc+3, acc+7)
        a("s_nop 0")
        for acc in accs:
            red16(acc+0, acc+2); red16(acc+1, acc+3)
    def mac8(acc, w, lo, hi, dpp=""):
        for k in range(4):
            if dpp:
                a(f"v_dot2c_f32_bf16_dpp v{acc+2*k}, v{lo}, v{w+k} {dpp} {DPP}")
                a(f"v_dot2c_f32_bf16_dpp v{acc+2*k+1}, v{hi}, v{w+k} {dpp} {DPP}")
            else:
                a(f"v_dot2c_f32_bf16 v{acc+2*k}, v{w+k}, v{lo}")
                a(f"v_dot2c_f32_bf16 v{acc+2*k+1}, v{w+k}, v{hi}")
    def check(tags):
        if opts.get("noexch") == "1":
            a("s_mov_b64 vcc, 0"); return
        a(f"v_cmp_ne_u32 vcc, s{sT}, v{tags[0]}")
        for tg in tags[1:]:
            a(f"v_cmp_ne_u32 s[{sM}:{sM+1}], s{sT}, v{tg}")
            a(f"s_or_b64 vcc, vcc, s[{sM}:{sM+1}]")
    def check_mm(tags, ta, tb):
        for op, t in (("min", ta), ("max", tb)):
            a(f"v_{op}3_u32 v{t}, v{tags[0]}, v{tags[1]}, v{tags[2]}")
            i = 3
            while i < len(tags):
                if i + 1 < len(tags):
                    a(f"v_{op}3_u32 v{t}, v{t}, v{tags[i]}, v{tags[i+1]}"); i += 2
                else:
                    a(f"v_{op}_u32 v{t}, v{t}, v{tags[i]}"); i += 1
        check([ta, tb])
    def pub_sum(nparts, lbase, stride, soff, voff=aKV):
        for k in range(nparts):
            a(f"ds_read_b64 {q2(vS0+2*k)}, v{aL8} offset:{lbase+stride*k}")
        a(f"v_mov_b32 v{T1}, s{sT}")
        a(f"v_mov_b32 v{T3}, s{sT}")
        step = 1; first = True
        while step < nparts:
            for k in range(0, nparts, 2*step):
                if first: a(f"s_waitcnt lgkmcnt({nparts - (k+2)})")
                last = (2*step >= nparts)
                d0, d1 = (T0, T2) if last else (vS0+2*k, vS0+2*k+1)
                a(f"v_add_f32 v{d0}, v{vS0+2*k}, v{vS0+2*(k+step)}")
                a(f"v_add_f32 v{d1}, v{vS0+2*k+1}, v{vS0+2*(k+step)+1}")
            first = False; step *= 2
        a(f"buffer_store_dwordx4 v[{T0}:{T3}], v{voff}, {srd(S_WS)}, s{soff} offen sc1")

    kvseq = opts.get("kvseq", "k0 k1 k2 k3 bar v0 v1 v2 v3 Wk3").replace("+", " ").split()

    a("s_cmp_ge_u32 s2, 256")
    a("s_cbranch_scc1 L_end")
    stamp("start")
    order = [(S_X,0),(S_WQ,3),(S_W1,6),(S_WS,12),(S_K,1),(S_V,2),(S_WO,4),(S_B1,7),(S_W2,8),(S_B2,9),(S_OUT,10)]
    for b, i in order:
        a(f"s_load_dwordx2 s[{b}:{b+1}], s[0:1], {8*i}")
    a(f"""
    v_lshrrev_b32 v{T0}, 6, v0
    v_and_b32 v{vL}, 63, v0
    s_and_b32 s{sG}, s2, 31
    s_lshr_b32 s{sJ}, s2, 5
    v_readfirstlane_b32 s{sW}, v{T0}
    v_lshlrev_b32 v{aKV}, 4, v{vL}
    v_lshrrev_b32 v{T0}, 4, v{vL}
    v_and_b32 v{T1}, 15, v{vL}
    v_lshrrev_b32 v{T2}, 3, v{vL}
    v_and_b32 v{T3}, 7, v{vL}
    v_mov_b32 v{aZero}, 0
    """)
    sizes = {S_X:1280, S_WQ:5242880, S_WS:WS_END, S_K:33554432, S_V:33554432, S_WO:5242880, S_W1:2211840, S_B1:3456, S_W2:2211840, S_B2:1280, S_OUT:1280}
    for b, sz in sizes.items():
        a(f"s_mov_b32 s{b+2}, {sz}")
        a(f"s_mov_b32 s{b+3}, 0x20000")
    a(f"""
    s_cmp_lt_u32 s{sG}, 27
    s_cselect_b32 s{sMlp}, 1, 0
    s_cselect_b32 s{sOobM}, 0, {OOB}
    s_mov_b32 s{sSpin}, 0
    s_mov_b32 s{sLog2e}, 0x3fb8aa3b
    s_cmp_ge_u32 s{sW}, {NAUX}
    s_cbranch_scc1 L_kv
    s_cmp_gt_u32 s{sW}, 1
    s_cbranch_scc1 L_aux23
    """)
    a(f"""
    s_setprio 3
    s_mul_i32 s{t0}, s{sJ}, 80
    s_lshl_b32 s{sXo}, s{t0}, 1
    v_lshlrev_b32 v{aX4}, 2, v{vL}
    v_lshl_add_u32 v{aXa}, v{T1}, 2, v{T0}
    v_lshlrev_b32 v{aXa}, 1, v{aXa}
    s_cmp_eq_u32 s{sW}, 0
    s_cbranch_scc0 L_role_h0
    v_lshlrev_b32 v{aT}, 13, v{T0}
    v_lshl_add_u32 v{aT}, v{T1}, 4, v{aT}
    s_lshl_b32 s{sA0}, s{t0}, 13
    s_lshl_b32 s{t2}, s{sG}, 8
    s_add_u32 s{sA0}, s{sA0}, s{t2}
    v_lshlrev_b32 v{aPub}, 6, v{T1}
    v_lshl_add_u32 v{aPub}, v{T0}, 4, v{aPub}
    s_lshl_b32 s{sPub}, s{sG}, 13
    s_lshl_b32 s{t2}, s{sJ}, 10
    s_add_u32 s{sPub}, s{sPub}, s{t2}
    s_add_u32 s{sPub}, s{sPub}, {WS_Q}
    s_waitcnt lgkmcnt(0)
    """)
    def xloads():
        a.vmem(f"buffer_load_dwordx4 {q4(vX16)}, v{aKV}, {srd(S_X)}, 0 offen", "x")
        a.vmem(f"buffer_load_dword v{vX4}, v{aX4}, {srd(S_X)}, 0 offen offset:1024", "x")
        a.vmem(f"buffer_load_ushort v{vXa}, v{aXa}, {srd(S_X)}, s{sXo} offen", "x")
        a.vmem(f"buffer_load_ushort v{vXb}, v{aXa}, {srd(S_X)}, s{sXo} offen offset:128", "x")
        a.vmem(f"buffer_load_dword v{vE}, v{aZero}, {srd(S_WS)}, 0 offen sc1", "x")
    xloads()
    for i in range(20):
        a.vmem(f"buffer_load_dwordx4 {q4(vTile+4*i)}, v{aT}, {srd(S_WQ)}, s{sA0} offen{NT}", f"t{i}")
        if i < 19: a(f"s_add_u32 s{sA0}, s{sA0}, 32768")
    a("s_branch L_ln")
    vm_front = list(a.vm)
    a.label("L_role_h0")
    a.vm = []
    a(f"""
    v_mul_u32_u24 v{aT}, 3456, v{T0}
    v_lshl_add_u32 v{aT}, v{T1}, 3, v{aT}
    s_mul_i32 s{sA0}, s{t0}, 3456
    s_lshl_b32 s{t2}, s{sG}, 7
    s_add_u32 s{sA0}, s{sA0}, s{t2}
    s_add_u32 s{sA0}, s{sA0}, s{sOobM}
    v_lshl_add_u32 v{aPub}, v{T1}, 2, v{T0}
    v_lshlrev_b32 v{aPub}, 3, v{aPub}
    s_lshl_b32 s{sPub}, s{sG}, 12
    s_lshl_b32 s{t2}, s{sJ}, 9
    s_add_u32 s{sPub}, s{sPub}, s{t2}
    s_add_u32 s{sPub}, s{sPub}, {WS_H}
    s_waitcnt lgkmcnt(0)
    """)
    xloads()
    for i in range(20):
        a.vmem(f"buffer_load_dwordx2 {q2(vTile+2*i)}, v{aT}, {srd(S_W1)}, s{sA0} offen{NT}", f"t{i}")
        if i < 19: a(f"s_add_u32 s{sA0}, s{sA0}, {4*3456}")
    assert a.vm == vm_front
    a.label("L_ln")
    a("s_barrier")
    zero(vAcc)
    a(f"v_mov_b32 v{T4}, 0x3f803f80")
    a(f"v_mov_b32 v{T0}, 0")
    a.wait_vm("x")
    stamp("x")
    a(f"v_readfirstlane_b32 s{sT}, v{vE}")
    xr = [vX16, vX16+1, vX16+2, vX16+3, vX4]
    for r in xr: a(f"v_dot2c_f32_bf16 v{T0}, v{r}, v{T4}")
    for k, r in enumerate(xr):
        a(f"v_lshlrev_b32 v{xs[2*k]}, 16, v{r}")
        a(f"v_and_b32 v{xs[2*k+1]}, 0xffff0000, v{r}")
    a(f"s_add_u32 s{sT}, s{sT}, {TAGC}")
    wave_red("add", T0, T1, first_nop=False)
    a(f"v_mul_f32 v{T0}, 0x3acccccd, v{T0}")
    for k in range(10): a(f"v_sub_f32 v{xs[k]}, v{xs[k]}, v{T0}")
    a(f"v_mul_f32 v{T2}, v{xs[0]}, v{xs[0]}"); a(f"v_mul_f32 v{T3}, v{xs[1]}, v{xs[1]}")
    for k in range(2, 10, 2):
        a(f"v_fmac_f32 v{T2}, v{xs[k]}, v{xs[k]}"); a(f"v_fmac_f32 v{T3}, v{xs[k+1]}, v{xs[k+1]}")
    a(f"v_add_f32 v{T2}, v{T2}, v{T3}")
    rnd(T0)
    a(f"v_add_f32_dpp v{T2}, v{T2}, v{T2} row_ror:8 {DPP}")
    a(f"v_lshlrev_b32 v{vXa}, 16, v{vXa}"); a(f"v_lshlrev_b32 v{vXb}, 16, v{vXb}")
    a(f"v_add_f32_dpp v{T2}, v{T2}, v{T2} row_ror:4 {DPP}")
    a(f"v_sub_f32 v{vXa}, v{vXa}, v{T0}"); a(f"v_sub_f32 v{vXb}, v{vXb}, v{T0}")
    a(f"v_add_f32_dpp v{T2}, v{T2}, v{T2} row_ror:2 {DPP}")
    a(f"v_cvt_pk_bf16_f32 v{vXa}, v{vXa}, v{vXa}"); a(f"v_cvt_pk_bf16_f32 v{vXb}, v{vXb}, v{vXb}")
    a(f"v_add_f32_dpp v{T2}, v{T2}, v{T2} row_ror:1 {DPP}")
    a(f"v_and_b32 v{vXa}, 0xffff0000, v{vXa}")
    a(f"v_mov_b32 v{T1}, v{T2}")
    a(f"v_and_b32 v{vXb}, 0xffff0000, v{vXb}")
    a("s_nop 0")
    a(f"v_permlane16_swap_b32 v{T2}, v{T1}"); a(f"v_add_f32 v{T2}, v{T2}, v{T1}")
    a(f"v_mov_b32 v{T1}, v{T2}"); a("s_nop 1")
    a(f"v_permlane32_swap_b32 v{T2}, v{T1}"); a(f"v_add_f32 v{T2}, v{T2}, v{T1}")
    a(f"v_mul_f32 v{T2}, 0x3acccccd, v{T2}")
    rnd(T2)
    a(f"v_add_f32 v{T2}, 0x3727c5ac, v{T2}")
    rnd(T2)
    a(f"v_sqrt_f32 v{T2}, v{T2}"); a("s_nop 0")
    rnd(T2)
    a(f"v_rcp_f32 v{T2}, v{T2}"); a("s_nop 0")
    for r in (vXa, vXb): a(f"v_mul_f32 v{r}, v{r}, v{T2}")
    for r in (vXa, vXb): a(f"v_cvt_pk_bf16_f32 v{r}, v{r}, v{r}")
    a(f"v_and_b32 v{vXah}, 0xffff0000, v{vXa}"); a(f"v_and_b32 v{vXbh}, 0xffff0000, v{vXb}")
    a(f"v_and_b32 v{vXa}, 0xffff, v{vXa}"); a(f"v_and_b32 v{vXb}, 0xffff, v{vXb}")
    a(f"v_mov_b32 v{T1}, s{sT}")
    a(f"v_mov_b32 v{T3}, s{sT}")
    stamp("ln")
    vm_ln = list(a.vm)
    a(f"s_cmp_eq_u32 s{sW}, 0")
    a("s_cbranch_scc0 L_role_h1")
    for i in range(20):
        a.wait_vm(f"t{i}")
        if i == 19: stamp("tl")
        lo, hi = (vXa, vXah) if i < 16 else (vXb, vXbh)
        for k in range(4):
            a(f"v_dot2c_f32_bf16_dpp v{vAcc+2*k}, v{lo}, v{vTile+4*i+k} row_newbcast:{i%16} {DPP}")
            a(f"v_dot2c_f32_bf16_dpp v{vAcc+2*k+1}, v{hi}, v{vTile+4*i+k} row_newbcast:{i%16} {DPP}")
    a("s_nop 2")
    red32(vAcc+0, vAcc+4); red32(vAcc+2, vAcc+6); red32(vAcc+1, vAcc+5); red32(vAcc+3, vAcc+7)
    a("s_nop 0")
    red16(vAcc+0, vAcc+2, d=T0); red16(vAcc+1, vAcc+3, d=T2)
    a(f"buffer_store_dwordx4 v[{T0}:{T3}], v{aPub}, {srd(S_WS)}, s{sPub} offen sc1")
    a("s_branch L_front_done")
    a.label("L_role_h1")
    a.vm = list(vm_ln)
    for i in range(20):
        a.wait_vm(f"t{i}")
        lo, hi = (vXa, vXah) if i < 16 else (vXb, vXbh)
        for k in range(2):
            a(f"v_dot2c_f32_bf16_dpp v{vAcc+2*k}, v{lo}, v{vTile+2*i+k} row_newbcast:{i%16} {DPP}")
            a(f"v_dot2c_f32_bf16_dpp v{vAcc+2*k+1}, v{hi}, v{vTile+2*i+k} row_newbcast:{i%16} {DPP}")
    a("s_nop 2")
    red32(vAcc+0, vAcc+2); red32(vAcc+1, vAcc+3)
    a("s_nop 1")
    red16(vAcc+0, vAcc+1, d=T0)
    a(f"s_cmp_eq_u32 s{sMlp}, 0")
    a("s_cbranch_scc1 L_front_done")
    a(f"buffer_store_dwordx2 v[{T0}:{T1}], v{aPub}, {srd(S_WS)}, s{sPub} offen sc1")
    a.label("L_front_done")
    a("s_setprio 0")
    stamp("pq1")
    a("s_branch L_aux")
    a.label("L_aux23")
    if opts.get("cpf", "0") != "0":
        nchunk = int(opts.get("cpfn", "9"))
        a(f"s_cmp_eq_u32 s{sW}, 3")
        a("s_cbranch_scc0 L_nocpf")
        a(f"s_and_b32 s{t0}, s{sJ}, {int(opts['cpf'])-1}")
        a(f"s_cmp_eq_u32 s{t0}, 0")
        a("s_cbranch_scc0 L_nocpf")
        a("s_getpc_b64 s[18:19]")
        a.label("L_pc")
        a(f"s_sub_u32 s18, s18, L_pc-{KN}")
        a("s_subb_u32 s19, s19, 0")
        a(f"v_mov_b32 v{vWO}, s18")
        a(f"v_mov_b32 v{vWO+1}, s19")
        a(f"v_add_co_u32 v{vWO}, vcc, v{vWO}, v{aKV}")
        a("s_nop 1")
        a(f"v_addc_co_u32 v{vWO+1}, vcc, 0, v{vWO+1}, vcc")
        for c in range(nchunk):
            a(f"global_load_dwordx4 v[{vWO+4}:{vWO+7}], v[{vWO}:{vWO+1}], off offset:{(c%4)*1024}")
            if c % 4 == 3:
                a(f"v_add_co_u32 v{vWO}, vcc, 0x1000, v{vWO}")
                a("s_nop 1")
                a(f"v_addc_co_u32 v{vWO+1}, vcc, 0, v{vWO+1}, vcc")
        a.label("L_nocpf")
    a(f"v_mov_b32 v{T4}, 0")
    a(f"v_lshlrev_b32 v{aLq}, 2, v{vL}")
    a(f"ds_write_b32 v{aLq}, v{T4} offset:{L_FQ}")
    a("s_waitcnt lgkmcnt(0)")
    a("s_barrier")
    if opts.get("tlbpf", "0") == "1":
        a(f"s_cmp_eq_u32 s{sW}, 2")
        a("s_cbranch_scc0 L_notlb")
        a(f"""
        s_lshl_b32 s{t0}, s{sG}, 20
        s_lshl_b32 s{t1}, s{sJ}, 15
        s_add_u32 s{t0}, s{t0}, s{t1}
        s_add_u32 s{t0}, s{t0}, {3072*256}
        s_load_dword s88, s[{S_V}:{S_V+1}], s{t0}
        s_add_u32 s{t1}, s{sG}, {SHIFT}
        s_and_b32 s{t1}, s{t1}, 31
        s_mul_i32 s{t1}, s{t1}, {128*1280}
        s_load_dword s89, s[{S_WO}:{S_WO+1}], s{t1}
        s_mul_i32 s{t1}, s{sG}, {64*1280}
        s_min_u32 s{t1}, s{t1}, {2211840-64}
        s_load_dword s90, s[{S_W2}:{S_W2+1}], s{t1}
        s_load_dword s91, s[{S_B1}:{S_B1+1}], 0
        s_load_dword s92, s[{S_B2}:{S_B2+1}], 0
        s_load_dword s93, s[{S_OUT}:{S_OUT+1}], 0
        s_load_dword s94, s[{S_WS}:{S_WS+1}], {WS_O}
        s_load_dword s95, s[{S_WS}:{S_WS+1}], {WS_S}
        """)
        a.label("L_notlb")
    a(f"buffer_load_dword v{vE}, v{aZero}, {srd(S_WS)}, 0 offen sc1")
    a("s_waitcnt vmcnt(0)")
    a(f"v_readfirstlane_b32 s{sT}, v{vE}")
    a("s_nop 0")
    a(f"s_add_u32 s{sT}, s{sT}, {TAGC}")
    auxseq = opts.get("auxseq", "b1 ph w20 w21 w22 wo0 wo1 wo2 wo3 wo4").split() if "auxseq" not in opts else opts["auxseq"].replace("+", " ").split()
    def ld(x):
        if x == "b1":
            a(f"s_lshl_b32 s{t0}, s{sG}, 7"); a(f"s_lshl_b32 s{t1}, s{sW}, 5"); a(f"s_add_u32 s{t0}, s{t0}, s{t1}")
            a.vmem(f"buffer_load_ushort v{vB1}, v{aB1}, {srd(S_B1)}, s{t0} offen", "b1")
        elif x == "ph":
            a.vmem(f"buffer_load_dwordx4 {q4(vGh)}, v{aGh}, {srd(S_WS)}, s{sHg} offen sc1", "ph")
        elif x in ("w20", "w21"):
            i = int(x[2]); a.vmem(f"buffer_load_dwordx4 {q4(vW2+4*i)}, v{aWOm}, {srd(S_W2)}, s{sW2[i]} offen{NT}", "w2")
        elif x == "w22":
            a.vmem(f"buffer_load_dwordx4 {q4(vW2+8)}, v{aW2e}, {srd(S_W2)}, s{sW2[0]} offen{NT}", "w2")
        elif x == "wo4":
            a.vmem(f"buffer_load_dwordx4 {q4(vWO+16)}, v{aWOe}, {srd(S_WO)}, s{sWO[0]} offen{NT}", "wo")
        elif x.startswith("wo"):
            i = int(x[2]); a.vmem(f"buffer_load_dwordx4 {q4(vWO+4*i)}, v{aWOm}, {srd(S_WO)}, s{sWO[i]} offen{NT}", "wo")
        elif x == "xf":
            a(f"v_and_b32 v{aX4}, 28, v{aLq}")
            a.vmem(f"buffer_load_dword v{vXf}, v{aX4}, {srd(S_X)}, s{sC} offen", "xf")
            a.vmem(f"buffer_load_dword v{vB2}, v{aX4}, {srd(S_B2)}, s{sC} offen", "xf")
    a.label("L_aux")
    a.vm = []
    a(f"""
    v_lshrrev_b32 v{T0}, 4, v{vL}
    v_and_b32 v{T1}, 15, v{vL}
    v_lshrrev_b32 v{T2}, 3, v{vL}
    v_and_b32 v{T3}, 7, v{vL}
    v_mul_u32_u24 v{aWOm}, 1280, v{T2}
    v_lshl_add_u32 v{aWOm}, v{T3}, 4, v{aWOm}
    v_lshrrev_b32 v{T4}, 1, v{vL}
    v_mul_u32_u24 v{aWOe}, 1280, v{T4}
    v_and_b32 v{aW2e}, 1, v{vL}
    v_lshl_add_u32 v{aWOe}, v{aW2e}, 4, v{aWOe}
    v_add_u32 v{aWOe}, 128, v{aWOe}
    v_mov_b32 v{aG}, {OOB}
    v_cmp_gt_u32 vcc, 32, v{vL}
    v_lshlrev_b32 v{aL8}, 3, v{vL}
    v_lshlrev_b32 v{aS}, 12, v{T2}
    v_cndmask_b32 v{aW2e}, v{aG}, v{aWOe}, vcc
    v_lshl_add_u32 v{aS}, v{T3}, 4, v{aS}
    v_lshlrev_b32 v{aG}, 10, v{T0}
    v_lshl_add_u32 v{aG}, v{T1}, 4, v{aG}              ; p4*1024 + c*16
    v_lshlrev_b32 v{aGh}, 9, v{T2}
    v_lshl_add_u32 v{aGh}, v{T3}, 4, v{aGh}            ; p8*512 + c3*16
    v_add_u32 v{aSt1}, v{T0}, v{T1}
    v_and_b32 v{aSt1}, 7, v{aSt1}
    v_lshlrev_b32 v{aSt1}, 7, v{aSt1}                  ; ((c+p4)&7)*128
    v_lshlrev_b32 v{aLSm}, 5, v{T3}
    v_lshl_add_u32 v{aLSm}, v{T0}, 3, v{aLSm}
    s_mul_i32 s{t0}, s{sW}, 320
    v_add_u32 v{aLSm}, s{t0}, v{aLSm}
    v_and_b32 v{aLSe}, 1, v{vL}
    v_lshlrev_b32 v{aLSe}, 5, v{aLSe}
    v_lshl_add_u32 v{aLSe}, v{T0}, 3, v{aLSe}
    v_add_u32 v{aLSe}, s{t0}, v{aLSe}
    v_add_u32 v{aLSe}, 256, v{aLSe}
    v_and_b32 v{aBm}, 1, v{T2}
    v_lshlrev_b32 v{aBm}, 5, v{aBm}
    v_lshrrev_b32 v{aBe}, 1, v{T2}
    v_add_lshl_u32 v{aBm}, v{aBm}, v{aBe}, 2           ; ((r8&1)*32 + (r8>>1))*4
    v_and_b32 v{aBe}, 1, v{T4}
    v_lshlrev_b32 v{aBe}, 5, v{aBe}
    v_lshrrev_b32 v{aBe2}, 1, v{T4}
    v_add_lshl_u32 v{aBe}, v{aBe}, v{aBe2}, 2          ; d=l>>1 (0..31): ((d&1)*32 + (d>>1))*4
    v_and_b32 v{aBe2}, 0x9c, v{aBe}
    v_lshrrev_b32 v{aB1}, 5, v{vL}
    v_lshl_add_u32 v{aB1}, v{T3}, 1, v{aB1}
    v_lshlrev_b32 v{aB1}, 1, v{aB1}                    ; (2c3+hi)*2
    v_lshlrev_b32 v{aLq}, 2, v{vL}                     ; l*4
    s_add_u32 s{sGC}, s{sG}, {SHIFT}
    s_and_b32 s{sGC}, s{sGC}, 31
    s_lshl_b32 s{t0}, s{sGC}, 7
    s_lshl_b32 s{t1}, s{sW}, 5
    s_add_u32 s{t0}, s{t0}, s{t1}
    s_mul_i32 s{sWO[0]}, s{t0}, 1280
    s_mul_i32 s{t2}, s{sJ}, 160
    s_add_u32 s{sWO[0]}, s{sWO[0]}, s{t2}
    s_add_u32 s{sWO[1]}, s{sWO[0]}, 10240
    s_add_u32 s{sWO[2]}, s{sWO[0]}, 20480
    s_add_u32 s{sWO[3]}, s{sWO[0]}, 30720
    s_lshl_b32 s{t0}, s{sG}, 6
    s_lshl_b32 s{t1}, s{sW}, 4
    s_add_u32 s{t0}, s{t0}, s{t1}
    s_mul_i32 s{sW2[0]}, s{t0}, 1280
    s_add_u32 s{sW2[0]}, s{sW2[0]}, s{t2}
    s_add_u32 s{sW2[0]}, s{sW2[0]}, s{sOobM}
    s_add_u32 s{sW2[1]}, s{sW2[0]}, 10240
    s_lshl_b32 s{t0}, s{sG}, 13
    s_add_u32 s{sQg}, s{t0}, {WS_Q}
    s_add_u32 s{sPub}, s{sQg}, 4096
    s_lshl_b32 s{t1}, s{sW}, 8
    s_lshl_b32 s{t3}, s{sGC}, 13
    s_add_u32 s{t1}, s{t1}, s{t3}
    s_add_u32 s{sOg}, s{t1}, {WS_O}
    s_add_u32 s{sOg2}, s{sOg}, 4096
    s_lshl_b32 s{t1}, s{sJ}, 10
    s_add_u32 s{t1}, s{t1}, s{t0}
    s_add_u32 s{sOp}, s{t1}, {WS_O}
    s_lshl_b32 s{t0}, s{sG}, 12
    s_lshl_b32 s{t1}, s{sW}, 7
    s_add_u32 s{t1}, s{t1}, s{t0}
    s_add_u32 s{sHg}, s{t1}, {WS_H}
    s_cmp_eq_u32 s{sMlp}, 0
    s_cselect_b32 s{sHg}, s{sQg}, s{sHg}
    s_lshl_b32 s{t0}, s{sG}, 10
    s_add_u32 s{sStp}, s{t0}, {WS_ST}
    s_lshl_b32 s{t1}, s{sJ}, 7
    s_add_u32 s{sStp}, s{sStp}, s{t1}
    s_lshl_b32 s{t0}, s{sGC}, 10
    s_add_u32 s{sSt}, s{t0}, {WS_ST}
    s_lshl_b32 s{t0}, s{sG}, 7
    s_mul_i32 s{t1}, s{sJ}, {5*4096}
    s_add_u32 s{sSp}, s{t1}, s{t0}
    s_lshl_b32 s{t0}, s{sGC}, 7
    s_add_u32 s{sK}, s{t1}, s{t0}
    s_add_u32 s{sK}, s{sK}, {WS_S}
    s_sub_u32 s{t0}, s{sG}, 27
    s_lshl_b32 s{t0}, s{t0}, 3
    s_add_u32 s{t0}, s{t0}, s{sJ}
    s_lshl_b32 s{sC}, s{t0}, 5
    s_lshl_b32 s{t0}, s{t0}, 12
    s_add_u32 s{sFY}, s{t0}, {WS_Y}
    s_add_u32 s{sFS}, s{t0}, {WS_S}
    """)
    for _ in range(kvseq.count("bar")): a("s_barrier")
    EARLY = int(opts.get("early", "4"))
    a(f"s_cmp_lt_u32 s{sW}, {EARLY}")
    a("s_cbranch_scc1 L_noearly")
    for x in auxseq: ld(x)
    ld("xf")
    vm_aux = list(a.vm)
    a.label("L_noearly")
    a("s_barrier")
    stamp("b0")
    a(f"s_cmp_eq_u32 s{sW}, 0")
    a("s_cbranch_scc0 L_nop1")
    def p1_loads():
        for p in range(8):
            so = sQg if p < 4 else sPub
            a(f"buffer_load_dwordx4 {q4(vP1+4*p)}, v{aKV}, {srd(S_WS)}, s{so} offen offset:{1024*(p%4)} sc1")
    p1_loads()
    a.label("L_nop1")
    a("s_barrier")
    a("s_barrier")
    A0LATE = opts.get("a0late", "1") in ("1", "2")
    A0L2 = opts.get("a0late", "1") == "2"
    a(f"s_cmp_ge_u32 s{sW}, {EARLY}")
    a("s_cbranch_scc1 L_late_done")
    if A0LATE:
        a(f"s_cmp_eq_u32 s{sW}, 0")
        a("s_cbranch_scc1 L_late_done")
    a.vm = []
    for x in auxseq: ld(x)
    ld("xf")
    assert a.vm == vm_aux
    a.label("L_late_done")
    a(f"s_cmp_eq_u32 s{sW}, 0")
    a("s_cbranch_scc0 L_aux_b3")
    ptags = [vP1+4*p+k for p in range(8) for k in (1, 3)]
    if opts.get("prio", "0") == "1": a("s_setprio 3")
    a(f"s_waitcnt vmcnt({0 if A0LATE else len(vm_aux)})")
    stamp("p1ret")
    check_mm(ptags, T0, T1)
    a("s_cbranch_vccz L_qok")
    a.label("L_qretry")
    a(f"s_add_u32 s{sSpin}, s{sSpin}, 256")
    a(f"s_cmp_gt_u32 s{sSpin}, {1<<22}")
    a("s_cbranch_scc1 L_qok")
    p1_loads()
    a("s_waitcnt vmcnt(0)")
    check_mm(ptags, T0, T1)
    a("s_cbranch_vccnz L_qretry")
    a.label("L_qok")
    for off in (0, 2):
        a(f"v_add_f32 v{vP1+off}, v{vP1+off}, v{vP1+4+off}")
        a(f"v_add_f32 v{vP1+8+off}, v{vP1+8+off}, v{vP1+12+off}")
        a(f"v_add_f32 v{vP1+16+off}, v{vP1+16+off}, v{vP1+20+off}")
        a(f"v_add_f32 v{vP1+24+off}, v{vP1+24+off}, v{vP1+28+off}")
    for off in (0, 2):
        a(f"v_add_f32 v{vP1+off}, v{vP1+off}, v{vP1+8+off}")
        a(f"v_add_f32 v{vP1+16+off}, v{vP1+16+off}, v{vP1+24+off}")
    for off in (0, 2):
        a(f"v_add_f32 v{vP1+off}, v{vP1+off}, v{vP1+16+off}")
    a(f"v_cvt_pk_bf16_f32 v{T0}, v{vP1}, v{vP1+2}")
    a(f"ds_write_b32 v{aLq}, v{T0} offset:{L_Q}")
    a(f"v_mov_b32 v{T1}, 1")
    a(f"ds_write_b32 v{aZero}, v{T1} offset:{L_FQ}")
    stamp("pollq")
    if A0LATE and not A0L2:
        a.vm = []
        for x in auxseq: ld(x)
        ld("xf")
    a.vm = list(vm_aux)
    a.label("L_aux_b3")
    zero(vAcc); zero(vAcc2)
    a(f"s_cmp_gt_u32 s{sW}, 1")
    a("s_cbranch_scc1 L_pubo_done")
    if opts.get("lspin", "0") == "1":
        a.label("L_lsp")
        a(f"ds_read_b32 v{T4}, v{aZero} offset:{L_FM}")
        a("s_waitcnt lgkmcnt(0)")
        a(f"v_readfirstlane_b32 s{t0}, v{T4}")
        a("s_nop 0")
        a(f"s_cmp_ge_u32 s{t0}, 8")
        a("s_cbranch_scc1 L_lsp_ok")
        a("s_sleep 2")
        a("s_branch L_lsp")
        a.label("L_lsp_ok")
    a(f"s_cmp_eq_u32 s{sW}, 0")
    a("s_cbranch_scc0 L_pub_st")
    a(f"v_mov_b32 v{T1}, s{sT}")
    a(f"v_mov_b32 v{T3}, s{sT}")
    a.label("L_wo8")
    a(f"ds_read_b32 v{T4}, v{aZero} offset:{L_FO}")
    for k in range(8):
        a(f"ds_read_b64 {q2(vS0+2*k)}, v{aL8} offset:{L_OP+512*k}")
    a("s_waitcnt lgkmcnt(8)")
    a(f"v_readfirstlane_b32 s{t0}, v{T4}")
    a("s_nop 0")
    a(f"s_cmp_lt_u32 s{t0}, 8")
    a("s_cbranch_scc1 L_wo8w")
    stamp("b4")
    for k in range(0, 8, 2):
        a(f"s_waitcnt lgkmcnt({8 - (k+2)})")
        a(f"v_add_f32 v{vS0+2*k}, v{vS0+2*k}, v{vS0+2*k+2}")
        a(f"v_add_f32 v{vS0+2*k+1}, v{vS0+2*k+1}, v{vS0+2*k+3}")
    for k in (0, 4):
        a(f"v_add_f32 v{vS0+2*k}, v{vS0+2*k}, v{vS0+2*k+4}")
        a(f"v_add_f32 v{vS0+2*k+1}, v{vS0+2*k+1}, v{vS0+2*k+5}")
    a(f"v_add_f32 v{T0}, v{vS0}, v{vS0+8}")
    a(f"v_add_f32 v{T2}, v{vS0+1}, v{vS0+9}")
    a(f"buffer_store_dwordx4 v[{T0}:{T3}], v{aKV}, {srd(S_WS)}, s{sOp} offen sc1")
    if A0L2:
        a.vm = []
        for x in auxseq: ld(x)
        ld("xf")
        a.vm = list(vm_aux)
    a("s_branch L_pubo_done")
    a.label("L_wo8w")
    a("s_waitcnt lgkmcnt(0)")
    a("s_branch L_wo8")
    a.label("L_pub_st")
    a.label("L_wst")
    a(f"""
    ds_read_b32 v{T4}, v{aZero} offset:{L_FO}
    ds_read_b128 {q4(vG)}, v{aZero} offset:{L_LS}
    ds_read_b128 {q4(vG+4)}, v{aZero} offset:{L_LS+16}
    ds_read_b128 {q4(vG+8)}, v{aZero} offset:{L_MX}
    ds_read_b128 {q4(vG+12)}, v{aZero} offset:{L_MX+16}
    v_mov_b32 v{T1}, s{sT}
    v_mov_b32 v{T3}, s{sT}
    s_waitcnt lgkmcnt(0)
    v_readfirstlane_b32 s{t0}, v{T4}
    s_nop 0
    s_cmp_lt_u32 s{t0}, 8
    s_cbranch_scc1 L_wst
    v_add_f32 v{vG}, v{vG}, v{vG+1}
    v_add_f32 v{vG+2}, v{vG+2}, v{vG+3}
    v_add_f32 v{vG+4}, v{vG+4}, v{vG+5}
    v_add_f32 v{vG+6}, v{vG+6}, v{vG+7}
    v_add_f32 v{vG}, v{vG}, v{vG+2}
    v_add_f32 v{vG+4}, v{vG+4}, v{vG+6}
    v_add_f32 v{T2}, v{vG}, v{vG+4}
    v_max3_f32 v{T0}, v{vG+8}, v{vG+9}, v{vG+10}
    v_max3_f32 v{T4}, v{vG+11}, v{vG+12}, v{vG+13}
    v_max3_f32 v{T0}, v{T0}, v{vG+14}, v{vG+15}
    v_max_f32 v{T0}, v{T0}, v{T4}
    s_mov_b64 exec, 0xff
    buffer_store_dwordx4 v[{T0}:{T3}], v{aKV}, {srd(S_WS)}, s{sStp} offen sc1
    s_mov_b64 exec, -1
    """)
    a.label("L_pubo_done")
    stamp("pubo")
    a.wait_vm("ph")
    check([vGh+1, vGh+3])
    a("s_cbranch_vccz L_hok")
    a.label("L_hretry")
    a(f"s_add_u32 s{sSpin}, s{sSpin}, 16")
    a(f"s_cmp_gt_u32 s{sSpin}, {1<<22}")
    a("s_cbranch_scc1 L_hok")
    a(f"buffer_load_dwordx4 {q4(vGh)}, v{aGh}, {srd(S_WS)}, s{sHg} offen sc1")
    a("s_waitcnt vmcnt(0)")
    check([vGh+1, vGh+3])
    a("s_cbranch_vccnz L_hretry")
    a.label("L_hok")
    red32(vGh, vGh+2)
    a(f"v_mov_b32 v{T0}, v{vGh}"); a("s_nop 1")
    red16(vGh, T0)
    a("s_nop 1")
    a(f"v_add_f32_dpp v{vGh}, v{vGh}, v{vGh} row_ror:8 {DPP}")
    a.wait_vm("b1")
    a(f"v_lshlrev_b32 v{vB1}, 16, v{vB1}")
    rnd(vGh)
    a(f"v_add_f32 v{vHs}, v{vGh}, v{vB1}")
    rnd(vHs)
    a(f"""
    s_mov_b32 s{t0}, 0x3d372713
    s_mov_b32 s{t1}, 0xc0135761
    v_mul_f32 v{T0}, v{vHs}, v{vHs}
    v_mul_f32 v{T0}, s{t0}, v{T0}
    v_fma_f32 v{T0}, v{T0}, v{vHs}, v{vHs}
    v_mul_f32 v{T0}, s{t1}, v{T0}
    v_exp_f32 v{T0}, v{T0}
    s_nop 0
    v_add_f32 v{T0}, 1.0, v{T0}
    v_rcp_f32 v{T0}, v{T0}
    s_nop 0
    v_mul_f32 v{T0}, v{vHs}, v{T0}
    v_cvt_pk_bf16_f32 v{T0}, v{T0}, v{T0}
    v_and_b32 v{T0}, 0xffff, v{T0}
    ds_bpermute_b32 v{vXq}, v{aBm}, v{T0}
    ds_bpermute_b32 v{vXq+1}, v{aBm}, v{T0} offset:16
    ds_bpermute_b32 v{vXq+2}, v{aBe2}, v{T0}
    """)
    zero(vAcc3)
    a("s_waitcnt lgkmcnt(0)")
    for i in range(3): a(f"v_lshlrev_b32 v{vXqh+i}, 16, v{vXq+i}")
    a.wait_vm("w2")
    if stamps and "awo" in sel:
        a.wait_vm("wo"); stamp("awo")
    for i in range(2): mac8(vAcc2, vW2+4*i, vXq+i, vXqh+i)
    mac8(vAcc3, vW2+8, vXq+2, vXqh+2)
    def red_tile(accM, accE, lbase):
        red8regs(accM, accE)
        a("s_nop 1")
        for r in (accM, accM+1, accE, accE+1):
            a(f"v_add_f32_dpp v{r}, v{r}, v{r} row_ror:8 {DPP}")
        a("s_nop 0")
        for r in (accE, accE+1):
            a(f"v_add_f32_dpp v{r}, v{r}, v{r} row_ror:4 {DPP}")
        a(f"ds_write_b64 v{aLSm}, {q2(accM)} offset:{lbase}")
        a("s_nop 0")
        for r in (accE, accE+1):
            a(f"v_add_f32_dpp v{r}, v{r}, v{r} quad_perm:[2,3,0,1] {DPP}")
        a(f"ds_write_b64 v{aLSe}, {q2(accE)} offset:{lbase}")
    red_tile(vAcc2, vAcc3, L_YP)
    zero(vAcc2)
    stamp("mlp")
    otags = [vG+1, vG+3, vG+5, vG+7, vG+9, vG+11]
    vGB = vS0
    LF = opts.get("lf", "sc1").replace("+", " ")
    def po_loads(b):
        a(f"buffer_load_dwordx4 {q4(b)}, v{aG}, {srd(S_WS)}, s{sOg} offen {LF}")
        a(f"buffer_load_dwordx4 {q4(b+4)}, v{aG}, {srd(S_WS)}, s{sOg2} offen {LF}")
        a(f"buffer_load_dwordx4 {q4(b+8)}, v{aSt1}, {srd(S_WS)}, s{sSt} offen {LF}")
    C0, C1, C2, C3, CM, CL = [vAcc3 + k for k in range(6)]
    def copyC(b):
        for d, k in ((C0, 0), (C1, 2), (C2, 4), (C3, 6), (CM, 8), (CL, 10)): a(f"v_mov_b32 v{d}, v{b+k}")
    if opts.get("gate", "1") == "1":
        a.label("L_gate")
        a(f"ds_read_b32 v{T4}, v{aZero} offset:{L_FO}")
        a("s_waitcnt lgkmcnt(0)")
        a(f"v_readfirstlane_b32 s{t0}, v{T4}")
        a("s_nop 0")
        a(f"s_cmp_lt_u32 s{t0}, 8")
        a("s_cbranch_scc0 L_gate_ok")
        a("s_sleep 1")
        a("s_branch L_gate")
        a.label("L_gate_ok")
    if int(opts.get("presleep", "0")): a(f"s_sleep {opts['presleep']}")
    if opts.get("pipe", "0") == "1":
        po_loads(vG)
        a(f"s_sleep {opts.get('posleep', '6')}")
        a.label("L_oretry")
        po_loads(vGB)
        a(f"s_add_u32 s{sSpin}, s{sSpin}, 65536")
        a("s_waitcnt vmcnt(3)")
        check_mm(otags, T0, T1)
        a(f"s_cmp_gt_u32 s{sSpin}, 0x7f000000")
        a("s_cbranch_scc1 L_ookA")
        a("s_cbranch_vccz L_ookA")
        po_loads(vG)
        a(f"s_add_u32 s{sSpin}, s{sSpin}, 65536")
        a("s_waitcnt vmcnt(3)")
        check_mm([t - vG + vGB for t in otags], T0, T1)
        a("s_cbranch_vccnz L_oretry")
        copyC(vGB)
        a("s_branch L_ook")
        a.label("L_ookA")
        copyC(vG)
    else:
        a.label("L_oretry")
        po_loads(vG)
        a(f"s_add_u32 s{sSpin}, s{sSpin}, 65536")
        a("s_waitcnt vmcnt(0)")
        check_mm(otags, T0, T1)
        a(f"s_cmp_gt_u32 s{sSpin}, 0x7f000000")
        a("s_cbranch_scc1 L_ookA")
        a("s_cbranch_vccz L_ookA")
        if int(opts.get("loopsleep", "0")): a(f"s_sleep {opts['loopsleep']}")
        a("s_branch L_oretry")
        a.label("L_ookA")
        copyC(vG)
    a.label("L_ook")
    a.vm = []
    stamp("pollo")
    a(f"v_mov_b32 v{T0}, v{CM}")
    for n in (4, 2, 1):
        a("s_nop 1")
        a(f"v_max_f32_dpp v{T0}, v{T0}, v{T0} row_ror:{n} {DPP}")
    a(f"""
    v_sub_f32 v{T1}, v{CM}, v{T0}
    v_mul_f32 v{T1}, s{sLog2e}, v{T1}
    v_exp_f32 v{T1}, v{T1}
    s_nop 0
    v_mul_f32 v{T2}, v{T1}, v{CL}
    s_nop 0
    v_mov_b32_dpp v{T3}, v{T1} row_newbcast:0 {DPP}
    v_mov_b32_dpp v{T4}, v{T1} row_newbcast:4 {DPP}
    v_add_f32_dpp v{T2}, v{T2}, v{T2} row_ror:4 {DPP}
    v_mul_f32 v{C0}, v{C0}, v{T3}
    v_mul_f32 v{C1}, v{C1}, v{T3}
    v_add_f32_dpp v{T2}, v{T2}, v{T2} row_ror:2 {DPP}
    v_fmac_f32 v{C0}, v{C2}, v{T4}
    v_fmac_f32 v{C1}, v{C3}, v{T4}
    v_add_f32_dpp v{T2}, v{T2}, v{T2} row_ror:1 {DPP}
    s_nop 0
    v_permlane32_swap_b32 v{C0}, v{C1}
    v_add_f32 v{C0}, v{C0}, v{C1}
    v_rcp_f32 v{T2}, v{T2}
    v_mov_b32 v{T0}, v{C0}
    s_nop 1
    v_permlane16_swap_b32 v{C0}, v{T0}
    v_add_f32 v{C0}, v{C0}, v{T0}
    v_mul_f32 v{C0}, v{C0}, v{T2}
    v_cvt_pk_bf16_f32 v{C0}, v{C0}, v{C0}
    v_and_b32 v{C0}, 0xffff, v{C0}
    """)
    for i in range(4): a(f"ds_bpermute_b32 v{vXq+i}, v{aBm}, v{C0} offset:{16*i}")
    a(f"ds_bpermute_b32 v{vXq+4}, v{aBe}, v{C0}")
    for i in range(5):
        a(f"s_waitcnt lgkmcnt({4-i})")
        a(f"v_lshlrev_b32 v{vXqh+i}, 16, v{vXq+i}")
        mac8(vAcc if i < 4 else vAcc2, vWO+4*i, vXq+i, vXqh+i)
    red_tile(vAcc, vAcc2, L_SP)
    a("s_waitcnt vmcnt(0) lgkmcnt(0)")
    a("s_barrier")
    a(f"""
    s_cmp_gt_u32 s{sW}, 1
    s_cbranch_scc1 L_pubs_done
    s_mov_b32 exec_hi, 0xff
    s_cmp_eq_u32 s{sW}, 0
    s_cbranch_scc1 L_pubs_s
    s_cmp_eq_u32 s{sMlp}, 0
    s_cbranch_scc1 L_pubs_skip
    s_add_u32 s{t0}, s{sSp}, {WS_Y}
    """)
    pub_sum(4, L_YP, 320, t0, voff=aS)
    a("s_branch L_pubs_skip")
    a.label("L_pubs_s")
    pub_sum(4, L_SP, 320, sK, voff=aS)
    a.label("L_pubs_skip")
    a("s_mov_b64 exec, -1")
    a.label("L_pubs_done")
    if opts.get("b6", "1") == "1": a("s_barrier")
    stamp("pubs")
    nfin = int(opts.get("nfin", "1"))
    a(f"""
    s_cmp_lt_u32 s{sG}, 27
    s_cbranch_scc1 L_fin
    s_cmp_lt_u32 s{sW}, {4-nfin}
    s_cbranch_scc1 L_fin
    v_mov_b32 v{vFF+28}, 0
    v_mov_b32 v{vFF+29}, s{sT}
    v_mov_b32 v{vFF+30}, 0
    v_mov_b32 v{vFF+31}, s{sT}
    """)
    if int(opts.get("fpre", "0")): a(f"s_sleep {opts['fpre']}")
    a.label("L_pollf")
    for i in range(4):
        a(f"buffer_load_dwordx4 {q4(vFF+4*i)}, v{aKV}, {srd(S_WS)}, s{sFS} offen offset:{1024*i} sc1")
    for i in range(3):
        a(f"buffer_load_dwordx4 {q4(vFF+16+4*i)}, v{aKV}, {srd(S_WS)}, s{sFY} offen offset:{1024*i} sc1")
    a("s_mov_b32 exec_lo, 0xffffff")
    a("s_mov_b32 exec_hi, 0")
    a(f"buffer_load_dwordx4 {q4(vFF+28)}, v{aKV}, {srd(S_WS)}, s{sFY} offen offset:3072 sc1")
    a("s_mov_b64 exec, -1")
    a(f"s_add_u32 s{sSpin}, s{sSpin}, 65536")
    a("s_waitcnt vmcnt(0)")
    check_mm([vFF+4*i+k for i in range(8) for k in (1, 3)], T0, T1)
    a(f"s_cmp_gt_u32 s{sSpin}, 0x7f000000")
    a("s_cbranch_scc1 L_pollf_done")
    a("s_cbranch_vccz L_pollf_done")
    if int(opts.get("floop", "0")): a(f"s_sleep {opts['floop']}")
    a("s_branch L_pollf")
    a.label("L_pollf_done")
    for (dst, base) in ((vG, vFF), (vG+2, vFF+16)):
        a(f"v_add_f32 v{dst}, v{base}, v{base+4}")
        a(f"v_add_f32 v{dst+1}, v{base+2}, v{base+6}")
        a(f"v_add_f32 v{T2}, v{base+8}, v{base+12}")
        a(f"v_add_f32 v{T3}, v{base+10}, v{base+14}")
        a(f"v_add_f32 v{dst}, v{dst}, v{T2}")
        a(f"v_add_f32 v{dst+1}, v{dst+1}, v{T3}")
    a("s_nop 0")
    red32(vG, vG+1); red32(vG+2, vG+3)
    a(f"v_mov_b32 v{T2}, v{vG}"); a(f"v_mov_b32 v{T3}, v{vG+2}"); a("s_nop 0")
    red16(vG, T2); red16(vG+2, T3)
    a("s_nop 0")
    a(f"v_add_f32_dpp v{vG}, v{vG}, v{vG} row_ror:8 {DPP}")
    a(f"v_add_f32_dpp v{vG+2}, v{vG+2}, v{vG+2} row_ror:8 {DPP}")
    a(f"""
    v_lshrrev_b32 v{T4}, 5, v{vL}
    v_lshlrev_b32 v{T4}, 4, v{T4}
    v_lshrrev_b32 v{vB2}, v{T4}, v{vB2}
    v_lshlrev_b32 v{vB2}, 16, v{vB2}
    v_lshrrev_b32 v{vXf}, v{T4}, v{vXf}
    v_lshlrev_b32 v{vXf}, 16, v{vXf}
    """)
    rnd(vG); rnd(vG+2)
    a(f"v_add_f32 v{vG+2}, v{vG+2}, v{vB2}")
    rnd(vG+2)
    a(f"""
    v_mul_f32 v{T2}, s{sLog2e}, v{vG+2}
    v_sub_f32 v{T2}, 0, v{T2}
    v_exp_f32 v{T2}, v{T2}
    s_nop 0
    v_add_f32 v{T2}, 1.0, v{T2}
    v_rcp_f32 v{T2}, v{T2}
    s_nop 0
    v_mul_f32 v{vG+2}, v{vG+2}, v{T2}
    """)
    rnd(vG+2)
    a(f"v_mul_f32 v{vG}, v{vG}, v{vG+2}")
    rnd(vG)
    a(f"""
    v_add_f32 v{vG}, v{vG}, v{vXf}
    v_cvt_pk_bf16_f32 v{vG}, v{vG}, v{vG}
    v_lshrrev_b32 v{T4}, 5, v{vL}
    v_lshl_add_u32 v{aX4}, v{T4}, 1, v{aX4}
    s_mov_b32 exec_lo, 0xff
    s_mov_b32 exec_hi, 0xff
    buffer_store_short v{vG}, v{aX4}, {srd(S_OUT)}, s{sC} offen
    s_cmp_eq_u32 s{sC}, 0
    s_cbranch_scc0 L_fin0
    s_cmp_eq_u32 s{sW}, 3
    s_cbranch_scc0 L_fin0
    v_mov_b32 v{T2}, s{sT}
    s_mov_b64 exec, 1
    buffer_store_dword v{T2}, v{aZero}, {srd(S_WS)}, 0 offen sc1
    """)
    a.label("L_fin0")
    a("s_mov_b64 exec, -1")
    a("s_branch L_fin")
    a.label("L_kv")
    a.vm = []
    a(f"""
    s_sub_u32 s{sKW}, s{sW}, {NAUX}
    s_lshl_b32 s{sK}, s{sG}, 20
    s_lshl_b32 s{t2}, s{sJ}, 15
    s_add_u32 s{sK}, s{sK}, s{t2}
    s_lshl_b32 s{t2}, s{sKW}, 12
    s_add_u32 s{sK}, s{sK}, s{t2}
    s_add_u32 s{sK}, s{sK}, {3072*256}
    v_lshlrev_b32 v{aLq}, 5, v{T1}
    v_lshl_add_u32 v{aLq}, v{T0}, 3, v{aLq}
    s_lshl_b32 s{t0}, s{sKW}, 9
    v_add_u32 v{aLq}, s{t0}, v{aLq}
    v_lshlrev_b32 v{aLqr}, 4, v{T1}
    s_mov_b32 s{sScale}, 0x3db504f3
    s_lshl_b32 s{t0}, s{sKW}, 2
    v_mov_b32 v{aPub}, s{t0}
    s_waitcnt lgkmcnt(0)
    s_barrier                                    ; Bs
    """)
    for x in kvseq:
        if x[0] == "k": a.vmem(f"buffer_load_dwordx4 {q4(vK+4*int(x[1]))}, v{aKV}, {srd(S_K)}, s{sK} offen offset:{1024*int(x[1])}{NT}", x)
        elif x[0] == "v": a.vmem(f"buffer_load_dwordx4 {q4(vV+4*int(x[1]))}, v{aKV}, {srd(S_V)}, s{sK} offen offset:{1024*int(x[1])}{NT}", x)
        elif x[0] == "W": a.wait_vm(x[1:])
        elif x == "bar": a("s_barrier")
        elif x[0] == "S":
            kw = int(x[1]); tg = x[2:]
            idx = a.vm.index(tg)
            a(f"s_cmp_eq_u32 s{sKW}, {kw}")
            a(f"s_cbranch_scc0 L_skipS")
            a(f"s_waitcnt vmcnt({len(a.vm)-1-idx})")
            a.label("L_skipS")
    for i in range(4): a(f"v_mov_b32 v{vAcc3+i}, 0")
    zero(vAcc)
    a("s_barrier")
    stamp("b0")
    a("s_barrier")
    kvpost = opts.get("kvpost", "").replace("+", " ").split()
    for x in kvpost:
        a.vmem(f"buffer_load_dwordx4 {q4(vV+4*int(x[1]))}, v{aKV}, {srd(S_V)}, s{sK} offen offset:{1024*int(x[1])}{NT}", x)
    a("s_barrier")
    a.wait_vm("k0", "k1", "k2", "k3")
    if stamps and "av3" in sel:
        a.wait_vm("v3"); stamp("av3")
    a(f"v_mov_b32 v{vE}, 1")
    a.label("L_wq")
    a(f"ds_read_b32 v{T4}, v{aZero} offset:{L_FQ}")
    a(f"ds_read_b128 {q4(vQ)}, v{aLqr} offset:{L_Q}")
    a("s_waitcnt lgkmcnt(0)")
    a(f"v_readfirstlane_b32 s{t0}, v{T4}")
    a("s_nop 0")
    a(f"s_cmp_eq_u32 s{t0}, 0")
    if opts.get("prio", "0") == "1":
        a("s_cbranch_scc0 L_wq_ok")
        a("s_sleep 1")
        a("s_branch L_wq")
        a.label("L_wq_ok")
        a("s_setprio 2")
    else:
        a("s_cbranch_scc1 L_wq")
    stamp("pollq")
    vSc = vAcc3
    for k in range(4):
        for i in range(4):
            a(f"v_dot2c_f32_bf16 v{vSc+i}, v{vK+4*i+k}, v{vQ+k}")
    a("s_nop 2")
    D = "row_mask:0xf"
    a(f"v_add_f32_dpp v{T0}, v{vSc+0}, v{vSc+0} row_ror:8 {D} bank_mask:0x3")
    a(f"v_add_f32_dpp v{T1}, v{vSc+1}, v{vSc+1} row_ror:8 {D} bank_mask:0x3")
    a(f"v_add_f32_dpp v{T0}, v{vSc+2}, v{vSc+2} row_ror:8 {D} bank_mask:0xc")
    a(f"v_add_f32_dpp v{T1}, v{vSc+3}, v{vSc+3} row_ror:8 {D} bank_mask:0xc")
    a("s_nop 0")
    a(f"v_add_f32_dpp v{T2}, v{T0}, v{T0} row_shl:4 {D} bank_mask:0x5")
    a(f"v_add_f32_dpp v{T2}, v{T1}, v{T1} row_shr:4 {D} bank_mask:0xa")
    a("s_nop 1")
    a(f"v_add_f32_dpp v{T2}, v{T2}, v{T2} quad_perm:[2,3,0,1] {DPP}")
    a("s_nop 1")
    a(f"v_add_f32_dpp v{T2}, v{T2}, v{T2} quad_perm:[1,0,3,2] {DPP}")
    rnd(T2)
    a(f"v_mul_f32 v{T2}, s{sScale}, v{T2}")
    rnd(T2)
    a(f"v_mov_b32 v{T0}, v{T2}")
    wave_red("max", T0, T1, rors=(8, 4))
    a(f"""
    ds_write_b32 v{aPub}, v{T0} offset:{L_MX}
    s_mov_b64 exec, 1
    ds_add_u32 v{aZero}, v{vE} offset:{L_FM}
    s_mov_b64 exec, -1
    L_wm:
    ds_read_b32 v{T4}, v{aZero} offset:{L_FM}
    ds_read_b128 {q4(vG)}, v{aZero} offset:{L_MX}
    ds_read_b128 {q4(vG+8)}, v{aZero} offset:{L_MX+16}
    s_waitcnt lgkmcnt(0)
    v_readfirstlane_b32 s{t0}, v{T4}
    s_nop 0
    s_cmp_lt_u32 s{t0}, 8
    s_cbranch_scc1 L_wm
    v_max3_f32 v{T0}, v{vG}, v{vG+1}, v{vG+2}
    v_max3_f32 v{T1}, v{vG+3}, v{vG+8}, v{vG+9}
    v_max3_f32 v{T0}, v{T0}, v{vG+10}, v{vG+11}
    v_max_f32 v{vMj}, v{T0}, v{T1}
    v_sub_f32 v{T2}, v{T2}, v{vMj}
    v_mul_f32 v{T2}, s{sLog2e}, v{T2}
    v_exp_f32 v{T2}, v{T2}
    s_nop 0
    v_cvt_pk_bf16_f32 v{vPl}, v{T2}, v{T2}
    v_mov_b32 v{vLs}, v{T2}
    v_and_b32 v{vPh}, 0xffff0000, v{vPl}
    v_and_b32 v{vPl}, 0xffff, v{vPl}
    """)
    stamp("smax")
    a("s_nop 1")
    for i in range(4):
        a.wait_vm(f"v{i}")
        mac8(vAcc, vV+4*i, vPl, vPh, dpp=f"row_newbcast:{4*i}")
    red8regs(vAcc)
    a(f"ds_write_b64 v{aLq}, {q2(vAcc)} offset:{L_OP}")
    wave_red("add", vLs, T1, rors=(8, 4), first_nop=False)
    a(f"""
    ds_write_b32 v{aPub}, v{vLs} offset:{L_LS}
    s_mov_b64 exec, 1
    ds_add_u32 v{aZero}, v{vE} offset:{L_FO}
    s_mov_b64 exec, -1
    """)
    stamp("b4")
    a.label("L_fin")
    if stamps and echo is not None:
        stamp("end")
        ie = sel.index("end")
        a(f"""
        s_waitcnt lgkmcnt(0)
        s_cmp_eq_u32 s2, 27
        s_cbranch_scc0 L_end
        s_cmp_eq_u32 s{sW}, 3
        s_cbranch_scc0 L_end
        s_sub_u32 s{t0}, s{SP[echo]}, s{SP[0]}
        s_add_u32 s{t0}, s{t0}, s{SP[ie]}
        """)
        a.label("L_echo")
        a(f"""
        s_memrealtime s[16:17]
        s_waitcnt lgkmcnt(0)
        s_sub_u32 s18, s16, s{t0}
        s_cmp_lt_i32 s18, 0
        s_cbranch_scc1 L_echo
        """)
    elif stamps:
        stamp("end")
        a("s_waitcnt lgkmcnt(0)")
        a(f"""
        s_lshl_b32 s{t0}, s2, 4
        s_add_u32 s{t0}, s{t0}, s{sW}
        s_lshl_b32 s{t0}, s{t0}, 7
        s_add_u32 s{t0}, s{t0}, {WS_TS}
        """)
        for k in range(len(SP)):
            a(f"v_mov_b32 v{vG+k}, s{SP[k]}")
        a(f"v_mov_b32 v{vG+len(SP)}, s{sSpin}")
        a("s_mov_b64 exec, 1")
        for k in range(3):
            a(f"buffer_store_dwordx4 {q4(vG+4*k)}, v{aZero}, {srd(S_WS)}, s{t0} offen offset:{16*k}")
    a.label("L_end")
    a("s_endpgm")
    SFL = opts.get("sf", "sc1").replace("+", " ")
    if SFL != "sc1":
        a.l = [(l.replace(" offen sc1", " offen " + SFL) if ("buffer_store" in l and l.endswith("sc1")) else l) for l in a.l]
    FFL = opts.get("ff", "sc1").replace("+", " ")
    if FFL != "sc1":
        a.l = [(l[:-3] + FFL if ("buffer_load_dwordx4" in l and l.endswith("sc1") and (f"s{sFS} offen" in l or f"s{sFY} offen" in l)) else l) for l in a.l]
    body = "\n".join(a.l) + "\n"
    src = HDR_COMMENT + f"""; Override launch geometry by editing the next line (default: block=256,
; grid=ceil(out_elems/256), lds=0). Harness parses it; keep it on one line.
; @launch grid=(256,1,1) block=({NW*64},1,1) lds={LDS}
.amdgcn_target "amdgcn-amd-amdhsa--gfx950"
.text
.globl {KN}
.p2align 8
.type {KN},@function
{KN}:
{body}
.section .rodata,"a"
.p2align 6
.amdhsa_kernel {KN}
  .amdhsa_next_free_vgpr {NV}
  .amdhsa_next_free_sgpr 102
  .amdhsa_accum_offset {NV}
  .amdhsa_group_segment_fixed_size 0
  .amdhsa_kernarg_size 104
  .amdhsa_user_sgpr_count 2
  .amdhsa_user_sgpr_kernarg_segment_ptr 1
  .amdhsa_system_sgpr_workgroup_id_x 1
.end_amdhsa_kernel
"""
    return src

if __name__ == "__main__":
    import argparse
    p = argparse.ArgumentParser()
    p.add_argument("-o", default="k8.s")
    p.add_argument("--stamps", action="store_true")
    p.add_argument("--no-nt", action="store_true")
    p.add_argument("--echo", type=int, default=None)
    p.add_argument("--opt", action="append", default=[])
    args = p.parse_args()
    opts = dict(o.split("=") for o in args.opt)
    open(args.o, "w").write(gen(nt=not args.no_nt, stamps=args.stamps, echo=args.echo, opts=opts))
```

```python
import sys
KN = "recurrent_scan__sliding_block_cached__dense_activation_gelu__decode_kernel"
HDR_COMMENT = open("recurrent_scan__sliding_block_cached__dense_activation_gelu__decode.s.ref").read().split("; Override launch")[0]

class A:
    def __init__(self):
        self.l = []; self.vm = []
    def __call__(self, s):
        for line in s.strip("\n").split("\n"):
            line = line.strip()
            if line: self.l.append("  " + line)
    def label(self, n): self.l.append(n + ":")
    def vmem(self, s, tag):
        self(s); self.vm.append(tag)
    def wait_vm(self, *tags):
        idxs = [i for i, t in enumerate(self.vm) if t in tags]
        if not idxs: return
        idx = max(idxs)
        n = len(self.vm) - 1 - idx
        self(f"s_waitcnt vmcnt({min(n,63)})")
        self.vm = self.vm[idx + 1:]

WS_EPOCH = 0
WS_Q  = 0x1000
WS_H  = WS_Q + 32*8*1024
WS_O  = WS_H + 32*8*512
WS_ST = WS_O + 32*8*1024
WS_S  = WS_ST + 32*8*128
WS_Y  = WS_S + 40*32*128
WS_TS = WS_Y + 40*32*128
NW = 12
TSW = 16
WS_END = WS_TS + 256*TSW*128
TAGC = 0x9E3779B9
OOB = 0x7f000000
DEF_STAMPS = "start,pq1,b0,pollq,smax,pubo,pollo,pubs,end"

def gen(nt=True, stamps=False, echo=None, opts=None):
    opts = opts or {}
    a = A()
    NT = " nt" if nt else ""
    S_X, S_K, S_V, S_WQ, S_WO, S_W1, S_B1, S_W2, S_B2, S_OUT, S_WS = [44 + 4*i for i in range(11)]
    srd = lambda b: f"s[{b}:{b+3}]"
    sG, sJ, sW, sT = 3, 4, 5, 6
    t0, t1, t2, t3 = 7, 8, 9, 10
    sSpin = 11; sM = 12; sR = 14; sFY = 15
    sA0 = 16; sGC = 16
    sB0 = 17; sB1s = 18; sK = 21; sFS = 24; sXo = 25
    sQg = 26; sHg = 27; sOg = 28; sSt = 29; sPub = 30; sOp = 32; sStp = 33
    sSp = 34; sMlp = 35; sScale, sLog2e = 36, 37; sC = 38; sOobM = 39
    SHIFT = int(opts.get("shift", "1"))
    SP = [88,90,92,94,96,98,100,40,42]
    sel = opts.get("stamps", DEF_STAMPS).split(",")
    def stamp(name):
        if stamps and name in sel:
            r = SP[sel.index(name)]; a(f"s_memrealtime s[{r}:{r+1}]")
    vL = 1
    (aKV, aT, aWOm, aWOe, aXa, aX4, aG, aSt1, aLq, aL8, aLqr, aLSm, aLSe, aS, aBm, aBe, aZero, aPub, aB1, aLp) = range(2, 22)
    T0, T1, T2, T3, T4 = 24, 25, 26, 27, 28
    vE = 29; vOne = 30; vX4 = 31; vX16 = 32
    vXa = 36; vXb = 37; vXah = 38; vXbh = 39
    vAcc = 40; vAcc2 = 48
    vXq = 56; vXqh = 66
    vB1 = 22; vXf = 23
    vTile = 76
    xs = list(range(156, 166))
    vP1 = 76; vS0 = 108; vG = 124
    vW = 76
    vGa = 116
    vB2 = 136; vHs = 137
    vFF = 76
    vQ = 48; vSc = 52; vMj = 56; vPl = 58; vPh = 59; vK = 72; vV = 88
    NV = 168
    q4 = lambda b: f"v[{b}:{b+3}]"
    q2 = lambda b: f"v[{b}:{b+1}]"
    L_OP = 0; L_Q = 4096; L_P = 4352; L_SP = 4864; L_F = 5632; LDS = 5888
    F_Q, F_M, F_P, F_O, F_S, F_PO, F_MX, F_PS = [L_F + 4*i for i in range(8)]
    DPP = "row_mask:0xf bank_mask:0xf"
    nlab = [0]
    def zero(base, n=8):
        for k in range(n): a(f"v_mov_b32 v{base+k}, 0")
    def rnd(v):
        a(f"v_cvt_pk_bf16_f32 v{v}, v{v}, v{v}"); a(f"v_and_b32 v{v}, 0xffff0000, v{v}")
    def spin(flag, target, sleep=1):
        nlab[0] += 1; L = f"L_sp{nlab[0]}"
        a.label(L)
        a(f"ds_read_b32 v{T4}, v{aZero} offset:{flag}")
        a("s_waitcnt lgkmcnt(0)")
        a(f"v_readfirstlane_b32 s{t0}, v{T4}")
        a("s_nop 0")
        a(f"s_cmp_ge_u32 s{t0}, {target}")
        a(f"s_cbranch_scc1 {L}_ok")
        if sleep: a(f"s_sleep {sleep}")
        a(f"s_branch {L}")
        a.label(L + "_ok")
    def signal(flag):
        a("s_mov_b64 exec, 1")
        a(f"ds_add_u32 v{aZero}, v{vOne} offset:{flag}")
        a("s_mov_b64 exec, -1")
    def wave_red(op, v, t, rors=(8,4,2,1), s16=True, s32=True, first_nop=True):
        for n_i, n in enumerate(rors):
            if n_i > 0 or first_nop: a("s_nop 1")
            a(f"v_{op}_f32_dpp v{v}, v{v}, v{v} row_ror:{n} {DPP}")
        if s16:
            a(f"v_mov_b32 v{t}, v{v}"); a("s_nop 1")
            a(f"v_permlane16_swap_b32 v{v}, v{t}"); a(f"v_{op}_f32 v{v}, v{v}, v{t}")
        if s32:
            a(f"v_mov_b32 v{t}, v{v}"); a("s_nop 1")
            a(f"v_permlane32_swap_b32 v{v}, v{t}"); a(f"v_{op}_f32 v{v}, v{v}, v{t}")
    def red32(x, y):
        a(f"v_permlane32_swap_b32 v{x}, v{y}"); a(f"v_add_f32 v{x}, v{x}, v{y}")
    def red16(x, y, d=None):
        a(f"v_permlane16_swap_b32 v{x}, v{y}"); a(f"v_add_f32 v{x if d is None else d}, v{x}, v{y}")
    def red8regs(*accs):
        a("s_nop 2")
        for acc in accs:
            red32(acc+0, acc+4); red32(acc+2, acc+6); red32(acc+1, acc+5); red32(acc+3, acc+7)
        a("s_nop 0")
        for acc in accs:
            red16(acc+0, acc+2); red16(acc+1, acc+3)
    def mac8(acc, w, lo, hi, dpp=""):
        for k in range(4):
            if dpp:
                a(f"v_dot2c_f32_bf16_dpp v{acc+2*k}, v{lo}, v{w+k} {dpp} {DPP}")
                a(f"v_dot2c_f32_bf16_dpp v{acc+2*k+1}, v{hi}, v{w+k} {dpp} {DPP}")
            else:
                a(f"v_dot2c_f32_bf16 v{acc+2*k}, v{w+k}, v{lo}")
                a(f"v_dot2c_f32_bf16 v{acc+2*k+1}, v{w+k}, v{hi}")
    def check(tags):
        a(f"v_cmp_ne_u32 vcc, s{sT}, v{tags[0]}")
        for tg in tags[1:]:
            a(f"v_cmp_ne_u32 s[{sM}:{sM+1}], s{sT}, v{tg}")
            a(f"s_or_b64 vcc, vcc, s[{sM}:{sM+1}]")
    def check_mm(tags, ta, tb):
        for op, t in (("min", ta), ("max", tb)):
            a(f"v_{op}3_u32 v{t}, v{tags[0]}, v{tags[1]}, v{tags[2]}")
            i = 3
            while i < len(tags):
                if i + 1 < len(tags):
                    a(f"v_{op}3_u32 v{t}, v{t}, v{tags[i]}, v{tags[i+1]}"); i += 2
                else:
                    a(f"v_{op}_u32 v{t}, v{t}, v{tags[i]}"); i += 1
        check([ta, tb])
    def red_tile(accM, accE):
        red8regs(accM, accE)
        a("s_nop 1")
        for r in (accM, accM+1, accE, accE+1):
            a(f"v_add_f32_dpp v{r}, v{r}, v{r} row_ror:8 {DPP}")
        a("s_nop 0")
        for r in (accE, accE+1):
            a(f"v_add_f32_dpp v{r}, v{r}, v{r} row_ror:4 {DPP}")
        a("s_nop 1")
        for r in (accE, accE+1):
            a(f"v_add_f32_dpp v{r}, v{r}, v{r} quad_perm:[2,3,0,1] {DPP}")
    def tile_addr():
        a(f"""
        v_mul_u32_u24 v{aWOm}, 1280, v{T2}
        v_lshl_add_u32 v{aWOm}, v{T3}, 4, v{aWOm}
        v_lshrrev_b32 v{T4}, 1, v{vL}
        v_mul_u32_u24 v{aWOe}, 1280, v{T4}
        v_and_b32 v{aBe}, 1, v{vL}
        v_lshl_add_u32 v{aWOe}, v{aBe}, 4, v{aWOe}
        v_add_u32 v{aWOe}, 128, v{aWOe}
        v_lshlrev_b32 v{aBm}, 1, v{T2}
        """)
    kvseq = opts.get("kvseq", "k0 k1 k2 k3 bar v0 v1 v2 v3 Wk3").replace("+", " ").split()
    kvpost = opts.get("kvpost", "").replace("+", " ").split()

    a("s_cmp_ge_u32 s2, 256")
    a("s_cbranch_scc1 L_end")
    stamp("start")
    sizes = {S_X:1280, S_WQ:5242880, S_WS:WS_END, S_K:33554432, S_V:33554432, S_WO:5242880, S_W1:2211840, S_B1:3456, S_W2:2211840, S_B2:1280, S_OUT:1280}
    argi = {S_X:0, S_K:1, S_V:2, S_WQ:3, S_WO:4, S_W1:6, S_B1:7, S_W2:8, S_B2:9, S_OUT:10, S_WS:12}
    def kload(*bs):
        for b in bs: a(f"s_load_dwordx2 s[{b}:{b+1}], s[0:1], {8*argi[b]}")
    def kconst(*bs):
        for b in bs:
            a(f"s_mov_b32 s{b+2}, {sizes[b]}"); a(f"s_mov_b32 s{b+3}, 0x20000")
    kload(S_X, S_WS)
    a(f"""
    v_lshrrev_b32 v{T0}, 6, v0
    v_and_b32 v{vL}, 63, v0
    s_and_b32 s{sG}, s2, 31
    v_readfirstlane_b32 s{sW}, v{T0}
    s_lshr_b32 s{sJ}, s2, 5
    v_lshlrev_b32 v{aKV}, 4, v{vL}
    v_lshrrev_b32 v{T0}, 4, v{vL}
    v_and_b32 v{T1}, 15, v{vL}
    v_mov_b32 v{aZero}, 0
    s_cmp_ge_u32 s{sW}, 2
    s_cbranch_scc1 L_notfront
    s_mul_i32 s{t0}, s{sJ}, 80
    s_cmp_eq_u32 s{sW}, 0
    s_cbranch_scc0 L_role_h0
    """)
    kload(S_WQ)
    a(f"""
    s_setprio 3
    s_lshl_b32 s{sXo}, s{t0}, 1
    v_lshlrev_b32 v{aX4}, 2, v{vL}
    v_lshl_add_u32 v{aXa}, v{T1}, 2, v{T0}
    v_lshlrev_b32 v{aT}, 13, v{T0}
    v_lshlrev_b32 v{aXa}, 1, v{aXa}
    v_lshl_add_u32 v{aT}, v{T1}, 4, v{aT}
    s_lshl_b32 s{sA0}, s{t0}, 13
    s_lshl_b32 s{t2}, s{sG}, 8
    s_add_u32 s{sA0}, s{sA0}, s{t2}
    """)
    kconst(S_X, S_WS, S_WQ)
    a("s_waitcnt lgkmcnt(0)")
    def xloads():
        a.vmem(f"buffer_load_dwordx4 {q4(vX16)}, v{aKV}, {srd(S_X)}, 0 offen", "x")
        a.vmem(f"buffer_load_dword v{vX4}, v{aX4}, {srd(S_X)}, 0 offen offset:1024", "x")
        a.vmem(f"buffer_load_ushort v{vXa}, v{aXa}, {srd(S_X)}, s{sXo} offen", "x")
        a.vmem(f"buffer_load_ushort v{vXb}, v{aXa}, {srd(S_X)}, s{sXo} offen offset:128", "x")
        a.vmem(f"buffer_load_dword v{vE}, v{aZero}, {srd(S_WS)}, 0 offen sc1", "x")
    xloads()
    for i in range(20):
        a.vmem(f"buffer_load_dwordx4 {q4(vTile+4*i)}, v{aT}, {srd(S_WQ)}, s{sA0} offen{NT}", f"t{i}")
        if i < 19: a(f"s_add_u32 s{sA0}, s{sA0}, 32768")
    a(f"""
    v_lshlrev_b32 v{aPub}, 6, v{T1}
    v_lshl_add_u32 v{aPub}, v{T0}, 4, v{aPub}
    s_lshl_b32 s{sPub}, s{sG}, 13
    s_lshl_b32 s{t2}, s{sJ}, 10
    s_add_u32 s{sPub}, s{sPub}, s{t2}
    s_add_u32 s{sPub}, s{sPub}, {WS_Q}
    """)
    a("s_branch L_ln")
    vm_front = list(a.vm)
    a.label("L_role_h0")
    a.vm = []
    kload(S_W1, S_B1, S_W2)
    a(f"""
    s_setprio 3
    s_lshl_b32 s{sXo}, s{t0}, 1
    v_lshlrev_b32 v{aX4}, 2, v{vL}
    v_lshl_add_u32 v{aXa}, v{T1}, 2, v{T0}
    v_mul_u32_u24 v{aT}, 3456, v{T0}
    v_lshlrev_b32 v{aXa}, 1, v{aXa}
    v_lshl_add_u32 v{aT}, v{T1}, 3, v{aT}
    s_cmp_lt_u32 s{sG}, 27
    s_cselect_b32 s{sMlp}, 1, 0
    s_cselect_b32 s{sOobM}, 0, {OOB}
    s_mul_i32 s{sA0}, s{t0}, 3456
    s_lshl_b32 s{t2}, s{sG}, 7
    s_add_u32 s{sA0}, s{sA0}, s{t2}
    s_add_u32 s{sA0}, s{sA0}, s{sOobM}
    """)
    kconst(S_X, S_WS, S_W1)
    a("s_waitcnt lgkmcnt(0)")
    xloads()
    for i in range(20):
        a.vmem(f"buffer_load_dwordx2 {q2(vTile+2*i)}, v{aT}, {srd(S_W1)}, s{sA0} offen{NT}", f"t{i}")
        if i < 19: a(f"s_add_u32 s{sA0}, s{sA0}, {4*3456}")
    assert a.vm == vm_front
    kconst(S_B1, S_W2)
    a(f"""
    v_lshl_add_u32 v{aPub}, v{T1}, 2, v{T0}
    v_lshlrev_b32 v{aPub}, 3, v{aPub}
    s_lshl_b32 s{sPub}, s{sG}, 12
    s_lshl_b32 s{t2}, s{sJ}, 9
    s_add_u32 s{sPub}, s{sPub}, s{t2}
    s_add_u32 s{sPub}, s{sPub}, {WS_H}
    """)
    a.label("L_ln")
    a(f"v_mov_b32 v{vOne}, 1")
    a(f"s_mov_b32 s{sSpin}, 0")
    a("s_barrier")
    zero(vAcc)
    a(f"v_mov_b32 v{T4}, 0x3f803f80")
    a(f"v_mov_b32 v{T0}, 0")
    a.wait_vm("x")
    stamp("x")
    a(f"v_readfirstlane_b32 s{sT}, v{vE}")
    xr = [vX16, vX16+1, vX16+2, vX16+3, vX4]
    for r in xr: a(f"v_dot2c_f32_bf16 v{T0}, v{r}, v{T4}")
    for k, r in enumerate(xr):
        a(f"v_lshlrev_b32 v{xs[2*k]}, 16, v{r}")
        a(f"v_and_b32 v{xs[2*k+1]}, 0xffff0000, v{r}")
    a(f"s_add_u32 s{sT}, s{sT}, {TAGC}")
    wave_red("add", T0, T1, first_nop=False)
    a(f"v_mul_f32 v{T0}, 0x3acccccd, v{T0}")
    for k in range(10): a(f"v_sub_f32 v{xs[k]}, v{xs[k]}, v{T0}")
    a(f"v_mul_f32 v{T2}, v{xs[0]}, v{xs[0]}"); a(f"v_mul_f32 v{T3}, v{xs[1]}, v{xs[1]}")
    for k in range(2, 10, 2):
        a(f"v_fmac_f32 v{T2}, v{xs[k]}, v{xs[k]}"); a(f"v_fmac_f32 v{T3}, v{xs[k+1]}, v{xs[k+1]}")
    a(f"v_add_f32 v{T2}, v{T2}, v{T3}")
    rnd(T0)
    a(f"v_add_f32_dpp v{T2}, v{T2}, v{T2} row_ror:8 {DPP}")
    a(f"v_lshlrev_b32 v{vXa}, 16, v{vXa}"); a(f"v_lshlrev_b32 v{vXb}, 16, v{vXb}")
    a(f"v_add_f32_dpp v{T2}, v{T2}, v{T2} row_ror:4 {DPP}")
    a(f"v_sub_f32 v{vXa}, v{vXa}, v{T0}"); a(f"v_sub_f32 v{vXb}, v{vXb}, v{T0}")
    a(f"v_add_f32_dpp v{T2}, v{T2}, v{T2} row_ror:2 {DPP}")
    a(f"v_cvt_pk_bf16_f32 v{vXa}, v{vXa}, v{vXa}"); a(f"v_cvt_pk_bf16_f32 v{vXb}, v{vXb}, v{vXb}")
    a(f"v_add_f32_dpp v{T2}, v{T2}, v{T2} row_ror:1 {DPP}")
    a(f"v_and_b32 v{vXa}, 0xffff0000, v{vXa}")
    a(f"v_mov_b32 v{T1}, v{T2}")
    a(f"v_and_b32 v{vXb}, 0xffff0000, v{vXb}")
    a("s_nop 0")
    a(f"v_permlane16_swap_b32 v{T2}, v{T1}"); a(f"v_add_f32 v{T2}, v{T2}, v{T1}")
    a(f"v_mov_b32 v{T1}, v{T2}"); a("s_nop 1")
    a(f"v_permlane32_swap_b32 v{T2}, v{T1}"); a(f"v_add_f32 v{T2}, v{T2}, v{T1}")
    a(f"v_mul_f32 v{T2}, 0x3acccccd, v{T2}")
    rnd(T2)
    a(f"v_add_f32 v{T2}, 0x3727c5ac, v{T2}")
    rnd(T2)
    a(f"v_sqrt_f32 v{T2}, v{T2}"); a("s_nop 0")
    rnd(T2)
    a(f"v_rcp_f32 v{T2}, v{T2}"); a("s_nop 0")
    for r in (vXa, vXb): a(f"v_mul_f32 v{r}, v{r}, v{T2}")
    for r in (vXa, vXb): a(f"v_cvt_pk_bf16_f32 v{r}, v{r}, v{r}")
    a(f"v_and_b32 v{vXah}, 0xffff0000, v{vXa}"); a(f"v_and_b32 v{vXbh}, 0xffff0000, v{vXb}")
    a(f"v_and_b32 v{vXa}, 0xffff, v{vXa}"); a(f"v_and_b32 v{vXb}, 0xffff, v{vXb}")
    a(f"v_mov_b32 v{T1}, s{sT}")
    a(f"v_mov_b32 v{T3}, s{sT}")
    stamp("ln")
    vm_ln = list(a.vm)
    a(f"s_cmp_eq_u32 s{sW}, 0")
    a("s_cbranch_scc0 L_role_h1")
    nbar = kvseq.count("bar")
    for i in range(20):
        a.wait_vm(f"t{i}")
        if i == 19: stamp("tl")
        lo, hi = (vXa, vXah) if i < 16 else (vXb, vXbh)
        for k in range(4):
            a(f"v_dot2c_f32_bf16_dpp v{vAcc+2*k}, v{lo}, v{vTile+4*i+k} row_newbcast:{i%16} {DPP}")
            a(f"v_dot2c_f32_bf16_dpp v{vAcc+2*k+1}, v{hi}, v{vTile+4*i+k} row_newbcast:{i%16} {DPP}")
    a("s_nop 2")
    red32(vAcc+0, vAcc+4); red32(vAcc+2, vAcc+6); red32(vAcc+1, vAcc+5); red32(vAcc+3, vAcc+7)
    a("s_nop 0")
    red16(vAcc+0, vAcc+2, d=T0); red16(vAcc+1, vAcc+3, d=T2)
    a(f"buffer_store_dwordx4 v[{T0}:{T3}], v{aPub}, {srd(S_WS)}, s{sPub} offen sc1")
    stamp("pq1")
    for _ in range(nbar): a("s_barrier")
    a(f"""
    v_lshlrev_b32 v{aL8}, 3, v{vL}
    v_lshlrev_b32 v{aLq}, 2, v{vL}
    v_lshrrev_b32 v{T2}, 3, v{vL}
    v_and_b32 v{T3}, 7, v{vL}
    v_lshlrev_b32 v{aS}, 12, v{T2}
    v_lshl_add_u32 v{aS}, v{T3}, 4, v{aS}
    s_lshl_b32 s{t0}, s{sG}, 13
    s_add_u32 s{sQg}, s{t0}, {WS_Q}
    s_add_u32 s{sPub}, s{sQg}, 4096
    s_lshl_b32 s{t1}, s{sJ}, 10
    s_add_u32 s{t1}, s{t1}, s{t0}
    s_add_u32 s{sOp}, s{t1}, {WS_O}
    s_add_u32 s{sGC}, s{sG}, {SHIFT}
    s_and_b32 s{sGC}, s{sGC}, 31
    s_mul_i32 s{t1}, s{sJ}, {5*4096}
    s_lshl_b32 s{t0}, s{sGC}, 7
    s_add_u32 s{sSp}, s{t1}, s{t0}
    s_add_u32 s{sSp}, s{sSp}, {WS_S}
    s_barrier                                 ; B0
    """)
    stamp("b0")
    def p1_loads():
        for p in range(8):
            so = sQg if p < 4 else sPub
            a(f"buffer_load_dwordx4 {q4(vP1+4*p)}, v{aKV}, {srd(S_WS)}, s{so} offen offset:{1024*(p%4)} sc1")
    p1_loads()
    a("s_barrier")
    a("s_barrier")
    ptags = [vP1+4*p+k for p in range(8) for k in (1, 3)]
    def qsum():
        for off in (0, 2):
            d = vS0 + (0 if off == 0 else 4)
            a(f"v_add_f32 v{d}, v{vP1+off}, v{vP1+4+off}")
            a(f"v_add_f32 v{d+1}, v{vP1+8+off}, v{vP1+12+off}")
            a(f"v_add_f32 v{d+2}, v{vP1+16+off}, v{vP1+20+off}")
            a(f"v_add_f32 v{d+3}, v{vP1+24+off}, v{vP1+28+off}")
        for d in (vS0, vS0+4):
            a(f"v_add_f32 v{d}, v{d}, v{d+1}")
            a(f"v_add_f32 v{d+2}, v{d+2}, v{d+3}")
        for d in (vS0, vS0+4):
            a(f"v_add_f32 v{d}, v{d}, v{d+2}")
        a(f"v_cvt_pk_bf16_f32 v{T2}, v{vS0}, v{vS0+4}")
    a("s_waitcnt vmcnt(0)")
    stamp("p1ret")
    check_mm(ptags, T0, T1)
    qsum()
    a("s_cbranch_vccz L_qok")
    a.label("L_qretry")
    a(f"s_add_u32 s{sSpin}, s{sSpin}, 256")
    a(f"s_cmp_gt_u32 s{sSpin}, {1<<22}")
    a("s_cbranch_scc1 L_qok")
    p1_loads()
    a("s_waitcnt vmcnt(0)")
    check_mm(ptags, T0, T1)
    qsum()
    a("s_cbranch_vccnz L_qretry")
    a.label("L_qok")
    a(f"ds_write_b32 v{aLq}, v{T2} offset:{L_Q}")
    a(f"ds_write_b32 v{aZero}, v{vOne} offset:{F_Q}")
    def wait_sum_pub(flag, target, nparts, lbase, stride, soff, voff, lab, light=None):
        a(f"v_mov_b32 v{T1}, s{sT}")
        a(f"v_mov_b32 v{T3}, s{sT}")
        if light: spin(light[0], light[1], sleep=2)
        a.label(lab)
        a(f"ds_read_b32 v{T4}, v{aZero} offset:{flag}")
        for k in range(nparts):
            a(f"ds_read_b64 {q2(vS0+2*k)}, v{aL8} offset:{lbase+stride*k}")
        a(f"s_waitcnt lgkmcnt({nparts})")
        a(f"v_readfirstlane_b32 s{t0}, v{T4}")
        a("s_nop 0")
        a(f"s_cmp_ge_u32 s{t0}, {target}")
        a(f"s_cbranch_scc1 {lab}_ok")
        a("s_waitcnt lgkmcnt(0)")
        a(f"s_branch {lab}")
        a.label(lab + "_ok")
        step = 1; first = True
        while step < nparts:
            for k in range(0, nparts, 2*step):
                if first: a(f"s_waitcnt lgkmcnt({nparts - (k+2)})")
                last = (2*step >= nparts)
                d0, d1 = (T0, T2) if last else (vS0+2*k, vS0+2*k+1)
                a(f"v_add_f32 v{d0}, v{vS0+2*k}, v{vS0+2*(k+step)}")
                a(f"v_add_f32 v{d1}, v{vS0+2*k+1}, v{vS0+2*(k+step)+1}")
            first = False; step *= 2
        a(f"buffer_store_dwordx4 v[{T0}:{T3}], v{voff}, {srd(S_WS)}, s{soff} offen sc1")
    wait_sum_pub(F_O, 8, 8, L_OP, 512, sOp, aKV, "L_wo8", light=(F_M, 8))
    signal(F_PO)
    stamp("pubo")
    a("s_mov_b32 exec_hi, 0xff")
    wait_sum_pub(F_S, 2, 2, L_SP, 320, sSp, aS, "L_ws2", light=(F_S, 1))
    a("s_mov_b64 exec, -1")
    signal(F_PS)
    stamp("pubs")
    a("s_branch L_fin")
    a.label("L_role_h1")
    a.vm = list(vm_ln)
    for i in range(20):
        a.wait_vm(f"t{i}")
        lo, hi = (vXa, vXah) if i < 16 else (vXb, vXbh)
        for k in range(2):
            a(f"v_dot2c_f32_bf16_dpp v{vAcc+2*k}, v{lo}, v{vTile+2*i+k} row_newbcast:{i%16} {DPP}")
            a(f"v_dot2c_f32_bf16_dpp v{vAcc+2*k+1}, v{hi}, v{vTile+2*i+k} row_newbcast:{i%16} {DPP}")
    a("s_nop 2")
    red32(vAcc+0, vAcc+2); red32(vAcc+1, vAcc+3)
    a("s_nop 1")
    red16(vAcc+0, vAcc+1, d=T0)
    a(f"s_cmp_eq_u32 s{sMlp}, 0")
    a("s_cbranch_scc1 L_h_nopub")
    a(f"buffer_store_dwordx2 v[{T0}:{T1}], v{aPub}, {srd(S_WS)}, s{sPub} offen sc1")
    a.label("L_h_nopub")
    a("s_setprio 0")
    for _ in range(nbar): a("s_barrier")
    a(f"""
    v_lshrrev_b32 v{T0}, 4, v{vL}
    v_and_b32 v{T1}, 15, v{vL}
    v_lshrrev_b32 v{T2}, 3, v{vL}
    v_and_b32 v{T3}, 7, v{vL}
    v_mul_u32_u24 v{aWOm}, 1280, v{T2}
    v_lshl_add_u32 v{aWOm}, v{T3}, 4, v{aWOm}
    v_lshrrev_b32 v{T4}, 1, v{vL}
    v_mul_u32_u24 v{aWOe}, 1280, v{T4}
    v_and_b32 v{aBe}, 1, v{vL}
    v_lshl_add_u32 v{aWOe}, v{aBe}, 4, v{aWOe}
    v_add_u32 v{aWOe}, 128, v{aWOe}
    v_lshrrev_b32 v{aG}, 5, v{vL}
    v_lshlrev_b32 v{aG}, 9, v{aG}
    v_and_b32 v{aB1}, 31, v{vL}
    v_lshl_add_u32 v{aG}, v{aB1}, 4, v{aG}
    v_lshlrev_b32 v{aB1}, 2, v{aB1}
    v_lshrrev_b32 v{aBm}, 1, v{T2}
    v_lshlrev_b32 v{aBm}, 2, v{aBm}
    v_and_b32 v{aSt1}, 1, v{T2}
    v_lshlrev_b32 v{aSt1}, 4, v{aSt1}                 ; 16*(r8&1) shift
    v_lshrrev_b32 v{aLp}, 1, v{T4}
    v_lshlrev_b32 v{aLp}, 2, v{aLp}
    v_and_b32 v{aLqr}, 1, v{T4}
    v_lshlrev_b32 v{aLqr}, 4, v{aLqr}                 ; 16*(d&1)
    s_mul_i32 s{t1}, s{sJ}, {5*4096*0+160}
    s_lshl_b32 s{t0}, s{sG}, 6
    s_mul_i32 s{sB0}, s{t0}, 1280
    s_add_u32 s{sB0}, s{sB0}, s{t1}
    s_add_u32 s{sB0}, s{sB0}, s{sOobM}
    s_lshl_b32 s{t0}, s{sG}, 12
    s_add_u32 s{sHg}, s{t0}, {WS_H}
    s_lshl_b32 s{t0}, s{sG}, 13
    s_add_u32 s{t0}, s{t0}, {WS_Q}
    s_cmp_eq_u32 s{sMlp}, 0
    s_cselect_b32 s{sHg}, s{t0}, s{sHg}
    s_lshl_b32 s{t0}, s{sG}, 10
    s_add_u32 s{sStp}, s{t0}, {WS_ST}
    s_lshl_b32 s{t1}, s{sJ}, 7
    s_add_u32 s{sStp}, s{sStp}, s{t1}
    s_mul_i32 s{t1}, s{sJ}, {5*4096}
    s_lshl_b32 s{t0}, s{sG}, 7
    s_add_u32 s{sSp}, s{t1}, s{t0}
    s_add_u32 s{sSp}, s{sSp}, {WS_Y}
    s_barrier                                 ; B0
    s_barrier                                 ; B0b
    s_barrier                                 ; B0c
    """)
    a.vm = []
    a(f"s_lshl_b32 s{t0}, s{sG}, 7")
    a.vmem(f"buffer_load_dword v{vB1}, v{aB1}, {srd(S_B1)}, s{t0} offen", "b1")
    def ph_loads(track):
        f = a.vmem if track else (lambda s_, t_: a(s_))
        for i in range(4):
            f(f"buffer_load_dwordx4 {q4(vGa+4*i)}, v{aG}, {srd(S_WS)}, s{sHg} offen offset:{1024*i} sc1", "ph")
    ph_loads(True)
    def tile_loads(srdb, sbase, nmain, nextra, tag):
        for i in range(nmain):
            a.vmem(f"buffer_load_dwordx4 {q4(vW+4*i)}, v{aWOm}, {srd(srdb)}, s{sbase} offen{NT}", tag)
            a(f"s_add_u32 s{sbase}, s{sbase}, 10240")
        a(f"s_sub_u32 s{sbase}, s{sbase}, {10240*nmain}")
        for i in range(nextra):
            a.vmem(f"buffer_load_dwordx4 {q4(vW+4*(nmain+i))}, v{aWOe}, {srd(srdb)}, s{sbase} offen{NT}", tag)
            if i + 1 < nextra: a(f"s_add_u32 s{sbase}, s{sbase}, {32*1280}")
    W2L = opts.get("w2late", "0") == "1"
    if not W2L: tile_loads(S_W2, sB0, 8, 2, "w2")
    spin(F_P, 8, sleep=1)
    a("s_setprio 3")
    a(f"""
    v_lshlrev_b32 v{aB1}, 3, v{vL}
    ds_read_b64 {q2(vAcc)}, v{aB1} offset:{L_P}
    ds_read_b32 v{T0}, v{aZero} offset:{F_MX}
    v_mov_b32 v{T1}, s{sT}
    v_mov_b32 v{T3}, s{sT}
    s_waitcnt lgkmcnt(0)
    v_add_f32 v{T2}, v{vAcc}, v{vAcc+1}
    """)
    wave_red("add", T2, T4)
    a(f"""
    s_mov_b64 exec, 0xff
    buffer_store_dwordx4 v[{T0}:{T3}], v{aKV}, {srd(S_WS)}, s{sStp} offen sc1
    s_mov_b64 exec, -1
    """)
    signal(F_PO)
    stamp("pubst")
    a("s_setprio 0")
    a(f"s_cmp_eq_u32 s{sMlp}, 0")
    a("s_cbranch_scc1 L_fin")
    if W2L: tile_loads(S_W2, sB0, 8, 2, "w2")
    a.wait_vm("ph")
    htags = [vGa+4*i+k for i in range(4) for k in (1, 3)]
    check_mm(htags, T0, T1)
    a("s_cbranch_vccz L_hok")
    a.label("L_hretry")
    a(f"s_add_u32 s{sSpin}, s{sSpin}, 16")
    a(f"s_and_b32 s{t0}, s{sSpin}, 0xfff0")
    a(f"s_cmp_gt_u32 s{t0}, 0xff00")
    a("s_cbranch_scc1 L_hok")
    ph_loads(False)
    a("s_waitcnt vmcnt(0)")
    check_mm(htags, T0, T1)
    a("s_cbranch_vccnz L_hretry")
    a.label("L_hok")
    a(f"""
    v_add_f32 v{vGa}, v{vGa}, v{vGa+4}
    v_add_f32 v{vGa+2}, v{vGa+2}, v{vGa+6}
    v_add_f32 v{vGa+8}, v{vGa+8}, v{vGa+12}
    v_add_f32 v{vGa+10}, v{vGa+10}, v{vGa+14}
    v_add_f32 v{vGa}, v{vGa}, v{vGa+8}
    v_add_f32 v{vGa+2}, v{vGa+2}, v{vGa+10}
    v_mov_b32 v{T0}, v{vGa}
    v_mov_b32 v{T1}, v{vGa+2}
    s_nop 1
    v_permlane32_swap_b32 v{vGa}, v{T0}
    v_permlane32_swap_b32 v{vGa+2}, v{T1}
    v_add_f32 v{vGa}, v{vGa}, v{T0}
    v_add_f32 v{vGa+2}, v{vGa+2}, v{T1}
    v_cvt_pk_bf16_f32 v{T0}, v{vGa}, v{vGa+2}
    v_lshlrev_b32 v{vGa}, 16, v{T0}
    v_and_b32 v{vGa+2}, 0xffff0000, v{T0}
    v_lshlrev_b32 v{T0}, 16, v{vB1}
    v_and_b32 v{T1}, 0xffff0000, v{vB1}
    v_add_f32 v{vGa}, v{vGa}, v{T0}
    v_add_f32 v{vGa+2}, v{vGa+2}, v{T1}
    v_cvt_pk_bf16_f32 v{T0}, v{vGa}, v{vGa+2}
    v_lshlrev_b32 v{vGa}, 16, v{T0}
    v_and_b32 v{vGa+2}, 0xffff0000, v{T0}
    s_mov_b32 s{t0}, 0x3d372713
    s_mov_b32 s{t1}, 0xc0135761
    """)
    for r, T in ((vGa, T0), (vGa+2, T1)):
        a(f"""
        v_mul_f32 v{T}, v{r}, v{r}
        v_mul_f32 v{T}, s{t0}, v{T}
        v_fma_f32 v{T}, v{T}, v{r}, v{r}
        v_mul_f32 v{T}, s{t1}, v{T}
        v_exp_f32 v{T}, v{T}
        s_nop 0
        v_add_f32 v{T}, 1.0, v{T}
        v_rcp_f32 v{T}, v{T}
        s_nop 0
        v_mul_f32 v{r}, v{r}, v{T}
        """)
    a(f"v_cvt_pk_bf16_f32 v{vHs}, v{vGa}, v{vGa+2}")
    for i in range(8): a(f"ds_bpermute_b32 v{vXq+i}, v{aBm}, v{vHs} offset:{16*i}")
    for i in range(2): a(f"ds_bpermute_b32 v{vXq+8+i}, v{aLp}, v{vHs} offset:{64*i}")
    zero(vAcc); zero(vAcc2)
    a("s_waitcnt lgkmcnt(0)")
    for i in range(10):
        sh = aSt1 if i < 8 else aLqr
        a(f"v_lshrrev_b32 v{vXq+i}, v{sh}, v{vXq+i}")
        a(f"v_lshlrev_b32 v{vXqh+i}, 16, v{vXq+i}")
        a(f"v_and_b32 v{vXq+i}, 0xffff, v{vXq+i}")
    a.wait_vm("w2")
    for i in range(10): mac8(vAcc if i < 8 else vAcc2, vW+4*i, vXq+i, vXqh+i)
    red_tile(vAcc, vAcc2)
    a(f"""
    v_lshrrev_b32 v{T0}, 4, v{vL}
    v_and_b32 v{T3}, 7, v{vL}
    v_lshl_add_u32 v{T1}, v{T3}, 2, v{T0}
    v_lshrrev_b32 v{T2}, 3, v{T1}
    v_and_b32 v{T1}, 7, v{T1}
    v_lshlrev_b32 v{T1}, 4, v{T1}
    v_lshl_add_u32 v{aS}, v{T2}, 12, v{T1}
    v_and_b32 v{T3}, 1, v{vL}
    v_lshl_add_u32 v{T1}, v{T3}, 2, v{T0}             ; 4b0 + rho
    v_lshlrev_b32 v{aL8}, 4, v{T1}
    v_add_u32 v{aL8}, {4*4096}, v{aL8}
    v_mov_b32 v{vAcc+3}, s{sT}
    v_mov_b32 v{vAcc+2}, v{vAcc+1}
    v_mov_b32 v{vAcc+1}, s{sT}
    v_mov_b32 v{vAcc2+3}, s{sT}
    v_mov_b32 v{vAcc2+2}, v{vAcc2+1}
    v_mov_b32 v{vAcc2+1}, s{sT}
    """)
    a(f"""
    s_mov_b32 exec_lo, 0x00ff00ff
    s_mov_b32 exec_hi, 0x00ff00ff
    buffer_store_dwordx4 {q4(vAcc)}, v{aS}, {srd(S_WS)}, s{sSp} offen sc1
    s_mov_b32 exec_lo, 0x00030003
    s_mov_b32 exec_hi, 0x00030003
    buffer_store_dwordx4 {q4(vAcc2)}, v{aL8}, {srd(S_WS)}, s{sSp} offen sc1
    s_mov_b64 exec, -1
    s_branch L_fin
    """)
    a.label("L_notfront")
    a(f"v_mov_b32 v{vOne}, 1")
    a(f"s_mov_b32 s{sSpin}, 0")
    a(f"s_mov_b32 s{sLog2e}, 0x3fb8aa3b")
    a(f"s_cmp_ge_u32 s{sW}, 4")
    a("s_cbranch_scc1 L_kv")
    a.label("L_t")
    a.vm = []
    kload(S_WO, S_B2, S_OUT)
    kconst(S_X, S_WS, S_WO, S_B2, S_OUT)
    a(f"""
    v_lshrrev_b32 v{T2}, 3, v{vL}
    v_and_b32 v{T3}, 7, v{vL}
    s_sub_u32 s{sR}, s{sW}, 2
    v_mov_b32 v{T4}, 0
    v_lshlrev_b32 v{aLq}, 2, v{vL}
    ds_write_b32 v{aLq}, v{T4} offset:{L_F}
    v_mov_b32 v{T4}, 0xff800000
    ds_write_b32 v{aZero}, v{T4} offset:{F_MX}
    v_mul_u32_u24 v{aWOm}, 1280, v{T2}
    v_lshl_add_u32 v{aWOm}, v{T3}, 4, v{aWOm}
    v_lshrrev_b32 v{T4}, 1, v{vL}
    v_mul_u32_u24 v{aWOe}, 1280, v{T4}
    v_and_b32 v{aBe}, 1, v{vL}
    v_lshl_add_u32 v{aWOe}, v{aBe}, 4, v{aWOe}
    v_add_u32 v{aWOe}, 128, v{aWOe}
    v_lshrrev_b32 v{aG}, 5, v{vL}
    v_lshlrev_b32 v{aG}, 10, v{aG}
    v_and_b32 v{aB1}, 31, v{vL}
    v_lshl_add_u32 v{aG}, v{aB1}, 4, v{aG}
    v_lshlrev_b32 v{aSt1}, 7, v{T3}
    v_lshrrev_b32 v{aBm}, 1, v{T2}
    v_lshlrev_b32 v{aBm}, 2, v{aBm}                   ; (r8>>1)*4
    v_and_b32 v{aPub}, 1, v{T2}
    v_lshlrev_b32 v{aPub}, 4, v{aPub}                 ; 16*(r8&1)
    v_lshrrev_b32 v{aLp}, 1, v{T4}
    v_lshlrev_b32 v{aLp}, 2, v{aLp}                   ; (l>>2)*4
    v_and_b32 v{aLqr}, 1, v{T4}
    v_lshlrev_b32 v{aLqr}, 4, v{aLqr}                 ; 16*((l>>1)&1)
    v_lshlrev_b32 v{aLSm}, 5, v{T3}
    v_lshl_add_u32 v{aLSm}, v{T0}, 3, v{aLSm}
    s_mul_i32 s{t0}, s{sR}, 320
    v_add_u32 v{aLSm}, s{t0}, v{aLSm}
    v_lshlrev_b32 v{aLSe}, 5, v{aBe}
    v_lshl_add_u32 v{aLSe}, v{T0}, 3, v{aLSe}
    v_add_u32 v{aLSe}, s{t0}, v{aLSe}
    v_add_u32 v{aLSe}, 256, v{aLSe}
    v_and_b32 v{aX4}, 28, v{aLq}
    s_add_u32 s{sGC}, s{sG}, {SHIFT}
    s_and_b32 s{sGC}, s{sGC}, 31
    s_lshl_b32 s{t0}, s{sGC}, 7
    s_lshl_b32 s{t1}, s{sR}, 6
    s_add_u32 s{t0}, s{t0}, s{t1}
    s_mul_i32 s{sB0}, s{t0}, 1280
    s_mul_i32 s{t2}, s{sJ}, 160
    s_add_u32 s{sB0}, s{sB0}, s{t2}
    s_lshl_b32 s{t1}, s{sR}, 9
    s_lshl_b32 s{t3}, s{sGC}, 13
    s_add_u32 s{t1}, s{t1}, s{t3}
    s_add_u32 s{sOg}, s{t1}, {WS_O}
    s_add_u32 s{sOp}, s{sOg}, 4096
    s_lshl_b32 s{t0}, s{sGC}, 10
    s_add_u32 s{sSt}, s{t0}, {WS_ST}
    s_sub_u32 s{t0}, s{sG}, 27
    s_lshl_b32 s{t0}, s{t0}, 3
    s_add_u32 s{t0}, s{t0}, s{sJ}
    s_lshl_b32 s{sC}, s{t0}, 5
    s_lshl_b32 s{t0}, s{t0}, 12
    s_add_u32 s{sFY}, s{t0}, {WS_Y}
    s_add_u32 s{sFS}, s{t0}, {WS_S}
    s_waitcnt lgkmcnt(0)
    s_barrier                                    ; Bs
    """)
    for _ in range(nbar): a("s_barrier")
    a("s_barrier"); a("s_barrier"); a("s_barrier")
    a.vmem(f"buffer_load_dword v{vE}, v{aZero}, {srd(S_WS)}, 0 offen sc1", "E")
    TL = opts.get("tlate", "0")
    if TL != "0":
        if TL == "1":
            a(f"s_cmp_eq_u32 s{sR}, 0")
            a("s_cbranch_scc1 L_tl_go")
        spin(F_PO, 2, sleep=1)
        a.label("L_tl_go")
    tile_loads(S_WO, sB0, 8, 2, "wo")
    a.vmem(f"buffer_load_dword v{vXf}, v{aX4}, {srd(S_X)}, s{sC} offen", "xf")
    a.vmem(f"buffer_load_dword v{vB2}, v{aX4}, {srd(S_B2)}, s{sC} offen", "xf")
    zero(vAcc); zero(vAcc2)
    a("s_waitcnt vmcnt(0)")
    stamp("awo")
    a(f"v_readfirstlane_b32 s{sT}, v{vE}")
    a("s_nop 0")
    a(f"s_add_u32 s{sT}, s{sT}, {TAGC}")
    spin(F_PO, 2, sleep=1)
    if int(opts.get("presleep", "0")): a(f"s_sleep {opts['presleep']}")
    otags = [vGa+4*i+k for i in range(4) for k in (1, 3)] + [vGa+17, vGa+19]
    a.label("L_oretry")
    for i in range(4):
        a(f"buffer_load_dwordx4 {q4(vGa+4*i)}, v{aG}, {srd(S_WS)}, s{sOg} offen offset:{2048*(i%2)} sc1" if i < 2 else f"buffer_load_dwordx4 {q4(vGa+4*i)}, v{aG}, {srd(S_WS)}, s{sOp} offen offset:{2048*(i%2)} sc1")
    a(f"buffer_load_dwordx4 {q4(vGa+16)}, v{aSt1}, {srd(S_WS)}, s{sSt} offen sc1")
    a(f"s_add_u32 s{sSpin}, s{sSpin}, 65536")
    a("s_waitcnt vmcnt(0)")
    check_mm(otags, T0, T1)
    a(f"s_cmp_gt_u32 s{sSpin}, 0x7f000000")
    a("s_cbranch_scc1 L_ook")
    a("s_cbranch_vccnz L_oretry")
    a.label("L_ook")
    a.vm = []
    stamp("pollo")
    a("s_setprio 3")
    CM, CL = vGa+16, vGa+18
    a(f"v_mov_b32 v{T0}, v{CM}")
    for n in (4, 2, 1):
        a("s_nop 1")
        a(f"v_max_f32_dpp v{T0}, v{T0}, v{T0} row_ror:{n} {DPP}")
    a(f"""
    v_sub_f32 v{T1}, v{CM}, v{T0}
    v_mul_f32 v{T1}, s{sLog2e}, v{T1}
    v_exp_f32 v{T1}, v{T1}
    s_nop 0
    v_mul_f32 v{T2}, v{T1}, v{CL}
    """)
    for i in range(4):
        a(f"v_mov_b32_dpp v{vXq+i}, v{T1} row_newbcast:{2*i} row_mask:0x3 bank_mask:0xf")
        a(f"v_mov_b32_dpp v{vXq+i}, v{T1} row_newbcast:{2*i+1} row_mask:0xc bank_mask:0xf")
        if i < 3:
            a(f"v_add_f32_dpp v{T2}, v{T2}, v{T2} row_ror:{(4,2,1)[i]} {DPP}")
    a(f"""
    v_mul_f32 v{T3}, v{vGa}, v{vXq}
    v_mul_f32 v{T4}, v{vGa+2}, v{vXq}
    v_fmac_f32 v{T3}, v{vGa+4}, v{vXq+1}
    v_fmac_f32 v{T4}, v{vGa+6}, v{vXq+1}
    v_fmac_f32 v{T3}, v{vGa+8}, v{vXq+2}
    v_fmac_f32 v{T4}, v{vGa+10}, v{vXq+2}
    v_fmac_f32 v{T3}, v{vGa+12}, v{vXq+3}
    v_fmac_f32 v{T4}, v{vGa+14}, v{vXq+3}
    v_rcp_f32 v{T2}, v{T2}
    v_mov_b32 v{T0}, v{T3}
    v_mov_b32 v{T1}, v{T4}
    s_nop 1
    v_permlane32_swap_b32 v{T3}, v{T0}
    v_permlane32_swap_b32 v{T4}, v{T1}
    v_add_f32 v{T3}, v{T3}, v{T0}
    v_add_f32 v{T4}, v{T4}, v{T1}
    v_mul_f32 v{T3}, v{T3}, v{T2}
    v_mul_f32 v{T4}, v{T4}, v{T2}
    v_cvt_pk_bf16_f32 v{vHs}, v{T3}, v{T4}
    """)
    for i in range(8): a(f"ds_bpermute_b32 v{vXq+i}, v{aBm}, v{vHs} offset:{16*i}")
    for i in range(2): a(f"ds_bpermute_b32 v{vXq+8+i}, v{aLp}, v{vHs} offset:{64*i}")
    for i in range(10):
        sh = aPub if i < 8 else aLqr
        a(f"s_waitcnt lgkmcnt({9-i})")
        a(f"v_lshrrev_b32 v{vXq+i}, v{sh}, v{vXq+i}")
        a(f"v_lshlrev_b32 v{vXqh+i}, 16, v{vXq+i}")
        a(f"v_and_b32 v{vXq+i}, 0xffff, v{vXq+i}")
        mac8(vAcc if i < 8 else vAcc2, vW+4*i, vXq+i, vXqh+i)
    red_tile(vAcc, vAcc2)
    a(f"ds_write_b64 v{aLSm}, {q2(vAcc)} offset:{L_SP}")
    a(f"ds_write_b64 v{aLSe}, {q2(vAcc2)} offset:{L_SP}")
    signal(F_S)
    stamp("tdone")
    a(f"""
    s_cmp_lt_u32 s{sG}, 27
    s_cbranch_scc1 L_fin
    s_cmp_eq_u32 s{sR}, 1
    s_cbranch_scc0 L_fin
    v_mov_b32 v{vFF+28}, 0
    v_mov_b32 v{vFF+29}, s{sT}
    v_mov_b32 v{vFF+30}, 0
    v_mov_b32 v{vFF+31}, s{sT}
    """)
    spin(F_PS, 1, sleep=1)
    a.label("L_pollf")
    for i in range(4):
        a(f"buffer_load_dwordx4 {q4(vFF+4*i)}, v{aKV}, {srd(S_WS)}, s{sFS} offen offset:{1024*i} sc1")
    for i in range(3):
        a(f"buffer_load_dwordx4 {q4(vFF+16+4*i)}, v{aKV}, {srd(S_WS)}, s{sFY} offen offset:{1024*i} sc1")
    a("s_mov_b32 exec_lo, 0xffffff")
    a("s_mov_b32 exec_hi, 0")
    a(f"buffer_load_dwordx4 {q4(vFF+28)}, v{aKV}, {srd(S_WS)}, s{sFY} offen offset:3072 sc1")
    a("s_mov_b64 exec, -1")
    a(f"s_add_u32 s{sSpin}, s{sSpin}, 65536")
    a("s_waitcnt vmcnt(0)")
    check_mm([vFF+4*i+k for i in range(8) for k in (1, 3)], T0, T1)
    a(f"s_cmp_gt_u32 s{sSpin}, 0x7f000000")
    a("s_cbranch_scc1 L_pollf_done")
    a("s_cbranch_vccnz L_pollf")
    a.label("L_pollf_done")
    vZ = vGa
    for (dst, base) in ((vZ, vFF), (vZ+2, vFF+16)):
        a(f"v_add_f32 v{dst}, v{base}, v{base+4}")
        a(f"v_add_f32 v{dst+1}, v{base+2}, v{base+6}")
        a(f"v_add_f32 v{T2}, v{base+8}, v{base+12}")
        a(f"v_add_f32 v{T3}, v{base+10}, v{base+14}")
        a(f"v_add_f32 v{dst}, v{dst}, v{T2}")
        a(f"v_add_f32 v{dst+1}, v{dst+1}, v{T3}")
    a("s_nop 0")
    red32(vZ, vZ+1); red32(vZ+2, vZ+3)
    a(f"v_mov_b32 v{T2}, v{vZ}"); a(f"v_mov_b32 v{T3}, v{vZ+2}"); a("s_nop 0")
    red16(vZ, T2); red16(vZ+2, T3)
    a("s_nop 0")
    a(f"v_add_f32_dpp v{vZ}, v{vZ}, v{vZ} row_ror:8 {DPP}")
    a(f"v_add_f32_dpp v{vZ+2}, v{vZ+2}, v{vZ+2} row_ror:8 {DPP}")
    a(f"""
    v_lshrrev_b32 v{T4}, 5, v{vL}
    v_lshlrev_b32 v{T4}, 4, v{T4}
    v_lshrrev_b32 v{vB2}, v{T4}, v{vB2}
    v_lshlrev_b32 v{vB2}, 16, v{vB2}
    v_lshrrev_b32 v{vXf}, v{T4}, v{vXf}
    v_lshlrev_b32 v{vXf}, 16, v{vXf}
    """)
    rnd(vZ); rnd(vZ+2)
    a(f"v_add_f32 v{vZ+2}, v{vZ+2}, v{vB2}")
    rnd(vZ+2)
    a(f"""
    v_mul_f32 v{T2}, s{sLog2e}, v{vZ+2}
    v_sub_f32 v{T2}, 0, v{T2}
    v_exp_f32 v{T2}, v{T2}
    s_nop 0
    v_add_f32 v{T2}, 1.0, v{T2}
    v_rcp_f32 v{T2}, v{T2}
    s_nop 0
    v_mul_f32 v{vZ+2}, v{vZ+2}, v{T2}
    """)
    rnd(vZ+2)
    a(f"v_mul_f32 v{vZ}, v{vZ}, v{vZ+2}")
    rnd(vZ)
    a(f"""
    v_add_f32 v{vZ}, v{vZ}, v{vXf}
    v_cvt_pk_bf16_f32 v{vZ}, v{vZ}, v{vZ}
    v_lshrrev_b32 v{T4}, 5, v{vL}
    v_lshl_add_u32 v{aX4}, v{T4}, 1, v{aX4}
    s_mov_b32 exec_lo, 0xff
    s_mov_b32 exec_hi, 0xff
    buffer_store_short v{vZ}, v{aX4}, {srd(S_OUT)}, s{sC} offen
    s_cmp_eq_u32 s{sC}, 0
    s_cbranch_scc0 L_fin0
    v_mov_b32 v{T2}, s{sT}
    s_mov_b64 exec, 1
    buffer_store_dword v{T2}, v{aZero}, {srd(S_WS)}, 0 offen sc1
    """)
    a.label("L_fin0")
    a("s_mov_b64 exec, -1")
    a("s_branch L_fin")
    a.label("L_kv")
    a.vm = []
    kload(S_K, S_V)
    kconst(S_K, S_V, S_WS)
    a(f"""
    s_sub_u32 s{sR}, s{sW}, 4
    s_lshl_b32 s{sK}, s{sG}, 20
    s_lshl_b32 s{t2}, s{sJ}, 15
    s_add_u32 s{sK}, s{sK}, s{t2}
    s_lshl_b32 s{t2}, s{sR}, 12
    s_add_u32 s{sK}, s{sK}, s{t2}
    s_add_u32 s{sK}, s{sK}, {3072*256}
    v_lshlrev_b32 v{aLq}, 5, v{T1}
    v_lshl_add_u32 v{aLq}, v{T0}, 3, v{aLq}
    s_lshl_b32 s{t0}, s{sR}, 9
    v_add_u32 v{aLq}, s{t0}, v{aLq}
    v_lshlrev_b32 v{aLqr}, 4, v{T1}
    v_lshrrev_b32 v{aLp}, 2, v{vL}
    v_lshlrev_b32 v{aLp}, 2, v{aLp}
    s_lshl_b32 s{t0}, s{sR}, 6
    v_add_u32 v{aLp}, s{t0}, v{aLp}               ; (kw*16 + (l>>2))*4
    s_mov_b32 s{sScale}, 0x3db504f3
    s_mov_b32 s{sM}, 0x00010001
    s_mov_b32 s{sM+1}, 0x00010001
    s_waitcnt lgkmcnt(0)
    s_barrier                                    ; Bs
    """)
    def ldkv(x):
        if x[0] == "k": a.vmem(f"buffer_load_dwordx4 {q4(vK+4*int(x[1]))}, v{aKV}, {srd(S_K)}, s{sK} offen offset:{1024*int(x[1])}{NT}", x)
        elif x[0] == "v": a.vmem(f"buffer_load_dwordx4 {q4(vV+4*int(x[1]))}, v{aKV}, {srd(S_V)}, s{sK} offen offset:{1024*int(x[1])}{NT}", x)
        elif x[0] == "W": a.wait_vm(x[1:])
        elif x == "bar": a("s_barrier")
    for x in kvseq: ldkv(x)
    for i in range(4): a(f"v_mov_b32 v{vSc+i}, 0")
    zero(vAcc)
    a("s_barrier")
    a("s_barrier")
    for x in kvpost: ldkv(x)
    a("s_barrier")
    a.wait_vm("k0", "k1", "k2", "k3")
    a.label("L_wq")
    a(f"ds_read_b32 v{T4}, v{aZero} offset:{F_Q}")
    a(f"ds_read_b128 {q4(vQ)}, v{aLqr} offset:{L_Q}")
    a("s_waitcnt lgkmcnt(0)")
    a(f"v_readfirstlane_b32 s{t0}, v{T4}")
    a("s_nop 0")
    a(f"s_cmp_eq_u32 s{t0}, 0")
    a("s_cbranch_scc0 L_wq_ok")
    a("s_sleep 1")
    a("s_branch L_wq")
    a.label("L_wq_ok")
    stamp("pollq")
    a("s_setprio 2")
    for k in range(4):
        for i in range(4):
            a(f"v_dot2c_f32_bf16 v{vSc+i}, v{vK+4*i+k}, v{vQ+k}")
    a("s_nop 2")
    D = "row_mask:0xf"
    a(f"v_add_f32_dpp v{T0}, v{vSc+0}, v{vSc+0} row_ror:8 {D} bank_mask:0x3")
    a(f"v_add_f32_dpp v{T1}, v{vSc+1}, v{vSc+1} row_ror:8 {D} bank_mask:0x3")
    a(f"v_add_f32_dpp v{T0}, v{vSc+2}, v{vSc+2} row_ror:8 {D} bank_mask:0xc")
    a(f"v_add_f32_dpp v{T1}, v{vSc+3}, v{vSc+3} row_ror:8 {D} bank_mask:0xc")
    a("s_nop 0")
    a(f"v_add_f32_dpp v{T2}, v{T0}, v{T0} row_shl:4 {D} bank_mask:0x5")
    a(f"v_add_f32_dpp v{T2}, v{T1}, v{T1} row_shr:4 {D} bank_mask:0xa")
    a("s_nop 1")
    a(f"v_add_f32_dpp v{T2}, v{T2}, v{T2} quad_perm:[2,3,0,1] {DPP}")
    a("s_nop 1")
    a(f"v_add_f32_dpp v{T2}, v{T2}, v{T2} quad_perm:[1,0,3,2] {DPP}")
    rnd(T2)
    a(f"v_mul_f32 v{T2}, s{sScale}, v{T2}")
    rnd(T2)
    a("s_nop 1")
    a(f"v_max_f32_dpp v{T0}, v{T2}, v{T2} row_ror:8 {DPP}")
    a("s_nop 1")
    a(f"v_max_f32_dpp v{T0}, v{T0}, v{T0} row_ror:4 {DPP}")
    a(f"s_mov_b64 exec, s[{sM}:{sM+1}]")
    a(f"ds_max_f32 v{aZero}, v{T0} offset:{F_MX}")
    a("s_mov_b64 exec, 1")
    a(f"ds_add_u32 v{aZero}, v{vOne} offset:{F_M}")
    a("s_mov_b64 exec, -1")
    a.label("L_wm")
    a(f"""
    ds_read_b32 v{T4}, v{aZero} offset:{F_M}
    ds_read_b32 v{vMj}, v{aZero} offset:{F_MX}
    s_waitcnt lgkmcnt(0)
    v_readfirstlane_b32 s{t0}, v{T4}
    v_sub_f32 v{T0}, v{T2}, v{vMj}
    s_cmp_lt_u32 s{t0}, 8
    s_cbranch_scc1 L_wm
    v_mul_f32 v{T0}, s{sLog2e}, v{T0}
    v_exp_f32 v{T0}, v{T0}
    s_nop 0
    v_cvt_pk_bf16_f32 v{vPl}, v{T0}, v{T0}
    ds_write_b32 v{aLp}, v{T0} offset:{L_P}
    v_and_b32 v{vPh}, 0xffff0000, v{vPl}
    v_and_b32 v{vPl}, 0xffff, v{vPl}
    """)
    signal(F_P)
    stamp("smax")
    for i in range(4):
        a.wait_vm(f"v{i}")
        mac8(vAcc, vV+4*i, vPl, vPh, dpp=f"row_newbcast:{4*i}")
    red8regs(vAcc)
    a(f"ds_write_b64 v{aLq}, {q2(vAcc)} offset:{L_OP}")
    signal(F_O)
    stamp("b4")
    a.label("L_fin")
    if stamps:
        stamp("end")
        a("s_waitcnt lgkmcnt(0)")
        a(f"""
        s_lshl_b32 s{t0}, s2, 4
        s_add_u32 s{t0}, s{t0}, s{sW}
        s_lshl_b32 s{t0}, s{t0}, 7
        s_add_u32 s{t0}, s{t0}, {WS_TS}
        """)
        for k in range(len(SP)):
            a(f"v_mov_b32 v{140+k}, s{SP[k]}")
        a(f"v_mov_b32 v{140+len(SP)}, s{sSpin}")
        a("s_mov_b64 exec, 1")
        for k in range(3):
            a(f"buffer_store_dwordx4 {q4(140+4*k)}, v{aZero}, {srd(S_WS)}, s{t0} offen offset:{16*k}")
    a.label("L_end")
    a("s_endpgm")
    body = "\n".join(a.l) + "\n"
    src = HDR_COMMENT + f"""; Override launch geometry by editing the next line (default: block=256,
; grid=ceil(out_elems/256), lds=0). Harness parses it; keep it on one line.
; @launch grid=(256,1,1) block=({NW*64},1,1) lds={LDS}
.amdgcn_target "amdgcn-amd-amdhsa--gfx950"
.text
.globl {KN}
.p2align 8
.type {KN},@function
{KN}:
{body}
.section .rodata,"a"
.p2align 6
.amdhsa_kernel {KN}
  .amdhsa_next_free_vgpr {NV}
  .amdhsa_next_free_sgpr 102
  .amdhsa_accum_offset {NV}
  .amdhsa_group_segment_fixed_size 0
  .amdhsa_kernarg_size 104
  .amdhsa_user_sgpr_count 2
  .amdhsa_user_sgpr_kernarg_segment_ptr 1
  .amdhsa_system_sgpr_workgroup_id_x 1
.end_amdhsa_kernel
"""
    return src

if __name__ == "__main__":
    import argparse
    p = argparse.ArgumentParser()
    p.add_argument("-o", default="k11.s")
    p.add_argument("--stamps", action="store_true")
    p.add_argument("--no-nt", action="store_true")
    p.add_argument("--opt", action="append", default=[])
    args = p.parse_args()
    opts = dict(o.split("=") for o in args.opt)
    open(args.o, "w").write(gen(nt=not args.no_nt, stamps=args.stamps, opts=opts))
```

```python
import sys
KN = "recurrent_scan__sliding_block_cached__dense_activation_gelu__decode_kernel"
HDR_COMMENT = open("recurrent_scan__sliding_block_cached__dense_activation_gelu__decode.s.ref").read().split("; Override launch")[0]

class A:
    def __init__(self):
        self.l = []; self.vm = []
    def __call__(self, s):
        for line in s.strip("\n").split("\n"):
            line = line.strip()
            if line: self.l.append("  " + line)
    def label(self, n): self.l.append(n + ":")
    def vmem(self, s, tag):
        self(s); self.vm.append(tag)
    def wait_vm(self, *tags):
        idxs = [i for i, t in enumerate(self.vm) if t in tags]
        if not idxs: return
        idx = max(idxs)
        n = len(self.vm) - 1 - idx
        self(f"s_waitcnt vmcnt({min(n,63)})")
        self.vm = self.vm[idx + 1:]

WS_EPOCH = 0
WS_Q  = 0x1000
WS_H  = WS_Q + 32*8*1024
WS_O  = WS_H + 32*8*512
WS_ST = WS_O + 32*8*1024
WS_S  = WS_ST + 32*8*128
WS_Y  = WS_S + 40*32*128
WS_TS = WS_Y + 40*32*128
NW = 12
TSW = 16
WS_END = WS_TS + 256*TSW*128
TAGC = 0x9E3779B9
OOB = 0x7f000000
DEF_STAMPS = "start,pq1,b0,pollq,smax,pubo,pollo,pubs,end"

def gen(nt=True, stamps=False, echo=None, opts=None):
    opts = opts or {}
    a = A()
    NT = " nt" if nt else ""
    S_X, S_K, S_V, S_WQ, S_WO, S_W1, S_B1, S_W2, S_B2, S_OUT, S_WS = [44 + 4*i for i in range(11)]
    srd = lambda b: f"s[{b}:{b+3}]"
    sG, sJ, sW, sT = 3, 4, 5, 6
    t0, t1, t2, t3 = 7, 8, 9, 10
    sSpin = 11; sM = 12; sR = 14; sFY = 15
    sA0 = 16; sGC = 16
    sB0 = 17; sB1s = 18; sK = 21; sFS = 24; sXo = 25
    sQg = 26; sHg = 27; sOg = 28; sSt = 29; sPub = 30; sOp = 32; sStp = 33
    sSp = 34; sMlp = 35; sScale, sLog2e = 36, 37; sC = 38; sOobM = 39
    SHIFT = int(opts.get("shift", "5"))
    SP = [88,90,92,94,96,98,100,40,42]
    sel = opts.get("stamps", DEF_STAMPS).split(",")
    def stamp(name):
        if stamps and name in sel:
            r = SP[sel.index(name)]; a(f"s_memrealtime s[{r}:{r+1}]")
    vL = 1
    (aKV, aT, aWOm, aWOe, aXa, aX4, aG, aSt1, aLq, aL8, aLqr, aLSm, aLSe, aS, aBm, aBe, aZero, aPub, aB1, aLp) = range(2, 22)
    T0, T1, T2, T3, T4 = 24, 25, 26, 27, 28
    vE = 29; vOne = 30; vX4 = 31; vX16 = 32
    vXa = 36; vXb = 37; vXah = 38; vXbh = 39
    vAcc = 40; vAcc2 = 48
    vXq = 56; vXqh = 66
    vB1 = 22; vXf = 23
    vTile = 76
    xs = list(range(156, 166))
    vP1 = 76; vS0 = 108; vG = 124
    vW = 76
    vGa = 116
    vB2 = 136; vHs = 137; vMsk = 140; vBa = 66; vBb = 70
    vFF = 76
    vQ = 48; vSc = 52; vMj = 56; vPl = 58; vPh = 59; vK = 72; vV = 88
    NV = 168
    q4 = lambda b: f"v[{b}:{b+3}]"
    q2 = lambda b: f"v[{b}:{b+1}]"
    L_OP = 0; L_Q = 4096; L_P = 4352; L_SP = 4864; L_F = 6144; LDS = 6400
    F_Q, F_M, F_P, F_O, F_S, F_PO, F_MX, F_PS = [L_F + 4*i for i in range(8)]
    DPP = "row_mask:0xf bank_mask:0xf"
    nlab = [0]
    def zero(base, n=8):
        for k in range(n): a(f"v_mov_b32 v{base+k}, 0")
    def rnd(v):
        a(f"v_cvt_pk_bf16_f32 v{v}, v{v}, v{v}"); a(f"v_and_b32 v{v}, 0xffff0000, v{v}")
    def spin(flag, target, sleep=1):
        nlab[0] += 1; L = f"L_sp{nlab[0]}"
        a.label(L)
        a(f"ds_read_b32 v{T4}, v{aZero} offset:{flag}")
        a("s_waitcnt lgkmcnt(0)")
        a(f"v_readfirstlane_b32 s{t0}, v{T4}")
        a("s_nop 0")
        a(f"s_cmp_ge_u32 s{t0}, {target}")
        a(f"s_cbranch_scc1 {L}_ok")
        if sleep: a(f"s_sleep {sleep}")
        a(f"s_branch {L}")
        a.label(L + "_ok")
    def signal(flag):
        a("s_mov_b64 exec, 1")
        a(f"ds_add_u32 v{aZero}, v{vOne} offset:{flag}")
        a("s_mov_b64 exec, -1")
    def wave_red(op, v, t, rors=(8,4,2,1), s16=True, s32=True, first_nop=True):
        for n_i, n in enumerate(rors):
            if n_i > 0 or first_nop: a("s_nop 1")
            a(f"v_{op}_f32_dpp v{v}, v{v}, v{v} row_ror:{n} {DPP}")
        if s16:
            a(f"v_mov_b32 v{t}, v{v}"); a("s_nop 1")
            a(f"v_permlane16_swap_b32 v{v}, v{t}"); a(f"v_{op}_f32 v{v}, v{v}, v{t}")
        if s32:
            a(f"v_mov_b32 v{t}, v{v}"); a("s_nop 1")
            a(f"v_permlane32_swap_b32 v{v}, v{t}"); a(f"v_{op}_f32 v{v}, v{v}, v{t}")
    def red32(x, y):
        a(f"v_permlane32_swap_b32 v{x}, v{y}"); a(f"v_add_f32 v{x}, v{x}, v{y}")
    def red16(x, y, d=None):
        a(f"v_permlane16_swap_b32 v{x}, v{y}"); a(f"v_add_f32 v{x if d is None else d}, v{x}, v{y}")
    def red8regs(*accs):
        a("s_nop 2")
        for acc in accs:
            red32(acc+0, acc+4); red32(acc+2, acc+6); red32(acc+1, acc+5); red32(acc+3, acc+7)
        a("s_nop 0")
        for acc in accs:
            red16(acc+0, acc+2); red16(acc+1, acc+3)
    def mac8(acc, w, lo, hi, dpp=""):
        for k in range(4):
            if dpp:
                a(f"v_dot2c_f32_bf16_dpp v{acc+2*k}, v{lo}, v{w+k} {dpp} {DPP}")
                a(f"v_dot2c_f32_bf16_dpp v{acc+2*k+1}, v{hi}, v{w+k} {dpp} {DPP}")
            else:
                a(f"v_dot2c_f32_bf16 v{acc+2*k}, v{w+k}, v{lo}")
                a(f"v_dot2c_f32_bf16 v{acc+2*k+1}, v{w+k}, v{hi}")
    def check(tags):
        a(f"v_cmp_ne_u32 vcc, s{sT}, v{tags[0]}")
        for tg in tags[1:]:
            a(f"v_cmp_ne_u32 s[{sM}:{sM+1}], s{sT}, v{tg}")
            a(f"s_or_b64 vcc, vcc, s[{sM}:{sM+1}]")
    def check_mm(tags, ta, tb):
        for op, t in (("min", ta), ("max", tb)):
            a(f"v_{op}3_u32 v{t}, v{tags[0]}, v{tags[1]}, v{tags[2]}")
            i = 3
            while i < len(tags):
                if i + 1 < len(tags):
                    a(f"v_{op}3_u32 v{t}, v{t}, v{tags[i]}, v{tags[i+1]}"); i += 2
                else:
                    a(f"v_{op}_u32 v{t}, v{t}, v{tags[i]}"); i += 1
        check([ta, tb])
    def red_tile(accM, accE):
        red8regs(accM, accE)
        a("s_nop 1")
        for r in (accM, accM+1, accE, accE+1):
            a(f"v_add_f32_dpp v{r}, v{r}, v{r} row_ror:8 {DPP}")
        a("s_nop 0")
        for r in (accE, accE+1):
            a(f"v_add_f32_dpp v{r}, v{r}, v{r} row_ror:4 {DPP}")
        a("s_nop 1")
        for r in (accE, accE+1):
            a(f"v_add_f32_dpp v{r}, v{r}, v{r} quad_perm:[2,3,0,1] {DPP}")
    def tile_addr():
        a(f"""
        v_mul_u32_u24 v{aWOm}, 1280, v{T2}
        v_lshl_add_u32 v{aWOm}, v{T3}, 4, v{aWOm}
        v_lshrrev_b32 v{T4}, 1, v{vL}
        v_mul_u32_u24 v{aWOe}, 1280, v{T4}
        v_and_b32 v{aBe}, 1, v{vL}
        v_lshl_add_u32 v{aWOe}, v{aBe}, 4, v{aWOe}
        v_add_u32 v{aWOe}, 128, v{aWOe}
        v_lshlrev_b32 v{aBm}, 1, v{T2}
        """)
    kvseq = opts.get("kvseq", "k0 k1 k2 k3 bar v0 v1 v2 v3 Wk3").replace("+", " ").split()
    kvpost = opts.get("kvpost", "").replace("+", " ").split()

    a("s_cmp_ge_u32 s2, 256")
    a("s_cbranch_scc1 L_end")
    stamp("start")
    sizes = {S_X:1280, S_WQ:5242880, S_WS:WS_END, S_K:33554432, S_V:33554432, S_WO:5242880, S_W1:2211840, S_B1:3456, S_W2:2211840, S_B2:1280, S_OUT:1280}
    argi = {S_X:0, S_K:1, S_V:2, S_WQ:3, S_WO:4, S_W1:6, S_B1:7, S_W2:8, S_B2:9, S_OUT:10, S_WS:12}
    def kload(*bs):
        for b in bs: a(f"s_load_dwordx2 s[{b}:{b+1}], s[0:1], {8*argi[b]}")
    def kconst(*bs):
        for b in bs:
            a(f"s_mov_b32 s{b+2}, {sizes[b]}"); a(f"s_mov_b32 s{b+3}, 0x20000")
    kload(S_X, S_WS)
    a(f"""
    v_lshrrev_b32 v{T0}, 6, v0
    v_and_b32 v{vL}, 63, v0
    s_and_b32 s{sG}, s2, 31
    v_readfirstlane_b32 s{sW}, v{T0}
    s_lshr_b32 s{sJ}, s2, 5
    v_lshlrev_b32 v{aKV}, 4, v{vL}
    v_lshrrev_b32 v{T0}, 4, v{vL}
    v_and_b32 v{T1}, 15, v{vL}
    v_mov_b32 v{aZero}, 0
    s_cmp_ge_u32 s{sW}, 2
    s_cbranch_scc1 L_notfront
    s_mul_i32 s{t0}, s{sJ}, 80
    s_cmp_eq_u32 s{sW}, 0
    s_cbranch_scc0 L_role_h0
    """)
    kload(S_WQ)
    a(f"""
    s_setprio 3
    s_lshl_b32 s{sXo}, s{t0}, 1
    v_lshlrev_b32 v{aX4}, 2, v{vL}
    v_lshl_add_u32 v{aXa}, v{T1}, 2, v{T0}
    v_lshlrev_b32 v{aT}, 13, v{T0}
    v_lshlrev_b32 v{aXa}, 1, v{aXa}
    v_lshl_add_u32 v{aT}, v{T1}, 4, v{aT}
    s_lshl_b32 s{sA0}, s{t0}, 13
    s_lshl_b32 s{t2}, s{sG}, 8
    s_add_u32 s{sA0}, s{sA0}, s{t2}
    """)
    kconst(S_X, S_WS, S_WQ)
    a("s_waitcnt lgkmcnt(0)")
    def xloads():
        a.vmem(f"buffer_load_dwordx4 {q4(vX16)}, v{aKV}, {srd(S_X)}, 0 offen", "x")
        a.vmem(f"buffer_load_dword v{vX4}, v{aX4}, {srd(S_X)}, 0 offen offset:1024", "x")
        a.vmem(f"buffer_load_ushort v{vXa}, v{aXa}, {srd(S_X)}, s{sXo} offen", "x")
        a.vmem(f"buffer_load_ushort v{vXb}, v{aXa}, {srd(S_X)}, s{sXo} offen offset:128", "x")
        a.vmem(f"buffer_load_dword v{vE}, v{aZero}, {srd(S_WS)}, 0 offen sc1", "x")
    xloads()
    for i in range(20):
        a.vmem(f"buffer_load_dwordx4 {q4(vTile+4*i)}, v{aT}, {srd(S_WQ)}, s{sA0} offen{NT}", f"t{i}")
        if i < 19: a(f"s_add_u32 s{sA0}, s{sA0}, 32768")
    a(f"""
    v_lshlrev_b32 v{aPub}, 6, v{T1}
    v_lshl_add_u32 v{aPub}, v{T0}, 4, v{aPub}
    s_lshl_b32 s{sPub}, s{sG}, 13
    s_lshl_b32 s{t2}, s{sJ}, 10
    s_add_u32 s{sPub}, s{sPub}, s{t2}
    s_add_u32 s{sPub}, s{sPub}, {WS_Q}
    """)
    a("s_branch L_ln")
    vm_front = list(a.vm)
    a.label("L_role_h0")
    a.vm = []
    kload(S_W1, S_B1, S_W2)
    a(f"""
    s_setprio 3
    s_lshl_b32 s{sXo}, s{t0}, 1
    v_lshlrev_b32 v{aX4}, 2, v{vL}
    v_lshl_add_u32 v{aXa}, v{T1}, 2, v{T0}
    v_mul_u32_u24 v{aT}, 3456, v{T0}
    v_lshlrev_b32 v{aXa}, 1, v{aXa}
    v_lshl_add_u32 v{aT}, v{T1}, 3, v{aT}
    s_cmp_lt_u32 s{sG}, 27
    s_cselect_b32 s{sMlp}, 1, 0
    s_cselect_b32 s{sOobM}, 0, {OOB}
    s_mul_i32 s{sA0}, s{t0}, 3456
    s_lshl_b32 s{t2}, s{sG}, 7
    s_add_u32 s{sA0}, s{sA0}, s{t2}
    s_add_u32 s{sA0}, s{sA0}, s{sOobM}
    """)
    kconst(S_X, S_WS, S_W1)
    a("s_waitcnt lgkmcnt(0)")
    xloads()
    for i in range(20):
        a.vmem(f"buffer_load_dwordx2 {q2(vTile+2*i)}, v{aT}, {srd(S_W1)}, s{sA0} offen{NT}", f"t{i}")
        if i < 19: a(f"s_add_u32 s{sA0}, s{sA0}, {4*3456}")
    assert a.vm == vm_front
    kconst(S_B1, S_W2)
    a(f"""
    v_lshl_add_u32 v{aPub}, v{T1}, 2, v{T0}
    v_lshlrev_b32 v{aPub}, 3, v{aPub}
    s_lshl_b32 s{sPub}, s{sG}, 12
    s_lshl_b32 s{t2}, s{sJ}, 9
    s_add_u32 s{sPub}, s{sPub}, s{t2}
    s_add_u32 s{sPub}, s{sPub}, {WS_H}
    """)
    a.label("L_ln")
    a(f"v_mov_b32 v{vOne}, 1")
    a(f"s_mov_b32 s{sSpin}, 0")
    a("s_barrier")
    zero(vAcc)
    a(f"v_mov_b32 v{T4}, 0x3f803f80")
    a(f"v_mov_b32 v{T0}, 0")
    a.wait_vm("x")
    stamp("x")
    a(f"v_readfirstlane_b32 s{sT}, v{vE}")
    xr = [vX16, vX16+1, vX16+2, vX16+3, vX4]
    for r in xr: a(f"v_dot2c_f32_bf16 v{T0}, v{r}, v{T4}")
    for k, r in enumerate(xr):
        a(f"v_lshlrev_b32 v{xs[2*k]}, 16, v{r}")
        a(f"v_and_b32 v{xs[2*k+1]}, 0xffff0000, v{r}")
    a(f"s_add_u32 s{sT}, s{sT}, {TAGC}")
    wave_red("add", T0, T1, first_nop=False)
    a(f"v_mul_f32 v{T0}, 0x3acccccd, v{T0}")
    for k in range(10): a(f"v_sub_f32 v{xs[k]}, v{xs[k]}, v{T0}")
    a(f"v_mul_f32 v{T2}, v{xs[0]}, v{xs[0]}"); a(f"v_mul_f32 v{T3}, v{xs[1]}, v{xs[1]}")
    for k in range(2, 10, 2):
        a(f"v_fmac_f32 v{T2}, v{xs[k]}, v{xs[k]}"); a(f"v_fmac_f32 v{T3}, v{xs[k+1]}, v{xs[k+1]}")
    a(f"v_add_f32 v{T2}, v{T2}, v{T3}")
    rnd(T0)
    a(f"v_add_f32_dpp v{T2}, v{T2}, v{T2} row_ror:8 {DPP}")
    a(f"v_lshlrev_b32 v{vXa}, 16, v{vXa}"); a(f"v_lshlrev_b32 v{vXb}, 16, v{vXb}")
    a(f"v_add_f32_dpp v{T2}, v{T2}, v{T2} row_ror:4 {DPP}")
    a(f"v_sub_f32 v{vXa}, v{vXa}, v{T0}"); a(f"v_sub_f32 v{vXb}, v{vXb}, v{T0}")
    a(f"v_add_f32_dpp v{T2}, v{T2}, v{T2} row_ror:2 {DPP}")
    a(f"v_cvt_pk_bf16_f32 v{vXa}, v{vXa}, v{vXa}"); a(f"v_cvt_pk_bf16_f32 v{vXb}, v{vXb}, v{vXb}")
    a(f"v_add_f32_dpp v{T2}, v{T2}, v{T2} row_ror:1 {DPP}")
    a(f"v_and_b32 v{vXa}, 0xffff0000, v{vXa}")
    a(f"v_mov_b32 v{T1}, v{T2}")
    a(f"v_and_b32 v{vXb}, 0xffff0000, v{vXb}")
    a("s_nop 0")
    a(f"v_permlane16_swap_b32 v{T2}, v{T1}"); a(f"v_add_f32 v{T2}, v{T2}, v{T1}")
    a(f"v_mov_b32 v{T1}, v{T2}"); a("s_nop 1")
    a(f"v_permlane32_swap_b32 v{T2}, v{T1}"); a(f"v_add_f32 v{T2}, v{T2}, v{T1}")
    a(f"v_mul_f32 v{T2}, 0x3acccccd, v{T2}")
    rnd(T2)
    a(f"v_add_f32 v{T2}, 0x3727c5ac, v{T2}")
    rnd(T2)
    a(f"v_sqrt_f32 v{T2}, v{T2}"); a("s_nop 0")
    rnd(T2)
    a(f"v_rcp_f32 v{T2}, v{T2}"); a("s_nop 0")
    for r in (vXa, vXb): a(f"v_mul_f32 v{r}, v{r}, v{T2}")
    for r in (vXa, vXb): a(f"v_cvt_pk_bf16_f32 v{r}, v{r}, v{r}")
    a(f"v_and_b32 v{vXah}, 0xffff0000, v{vXa}"); a(f"v_and_b32 v{vXbh}, 0xffff0000, v{vXb}")
    a(f"v_and_b32 v{vXa}, 0xffff, v{vXa}"); a(f"v_and_b32 v{vXb}, 0xffff, v{vXb}")
    a(f"v_mov_b32 v{T1}, s{sT}")
    a(f"v_mov_b32 v{T3}, s{sT}")
    stamp("ln")
    vm_ln = list(a.vm)
    a(f"s_cmp_eq_u32 s{sW}, 0")
    a("s_cbranch_scc0 L_role_h1")
    nbar = kvseq.count("bar")
    for i in range(20):
        a.wait_vm(f"t{i}")
        if i == 19: stamp("tl")
        lo, hi = (vXa, vXah) if i < 16 else (vXb, vXbh)
        for k in range(4):
            a(f"v_dot2c_f32_bf16_dpp v{vAcc+2*k}, v{lo}, v{vTile+4*i+k} row_newbcast:{i%16} {DPP}")
            a(f"v_dot2c_f32_bf16_dpp v{vAcc+2*k+1}, v{hi}, v{vTile+4*i+k} row_newbcast:{i%16} {DPP}")
    a("s_nop 2")
    red32(vAcc+0, vAcc+4); red32(vAcc+2, vAcc+6); red32(vAcc+1, vAcc+5); red32(vAcc+3, vAcc+7)
    a("s_nop 0")
    red16(vAcc+0, vAcc+2, d=T0); red16(vAcc+1, vAcc+3, d=T2)
    a(f"buffer_store_dwordx4 v[{T0}:{T3}], v{aPub}, {srd(S_WS)}, s{sPub} offen sc1")
    stamp("pq1")
    for _ in range(nbar): a("s_barrier")
    a(f"""
    v_lshlrev_b32 v{aL8}, 3, v{vL}
    v_lshlrev_b32 v{aLq}, 2, v{vL}
    v_lshrrev_b32 v{T2}, 3, v{vL}
    v_and_b32 v{T3}, 7, v{vL}
    v_lshlrev_b32 v{aS}, 12, v{T2}
    v_lshl_add_u32 v{aS}, v{T3}, 4, v{aS}
    s_lshl_b32 s{t0}, s{sG}, 13
    s_add_u32 s{sQg}, s{t0}, {WS_Q}
    s_add_u32 s{sPub}, s{sQg}, 4096
    s_lshl_b32 s{t1}, s{sJ}, 10
    s_add_u32 s{t1}, s{t1}, s{t0}
    s_add_u32 s{sOp}, s{t1}, {WS_O}
    s_add_u32 s{sGC}, s{sG}, {SHIFT}
    s_and_b32 s{sGC}, s{sGC}, 31
    s_mul_i32 s{t1}, s{sJ}, {5*4096}
    s_lshl_b32 s{t0}, s{sGC}, 7
    s_add_u32 s{sSp}, s{t1}, s{t0}
    s_add_u32 s{sSp}, s{sSp}, {WS_S}
    s_barrier                                 ; B0
    """)
    stamp("b0")
    def p1_loads():
        for p in range(8):
            so = sQg if p < 4 else sPub
            a(f"buffer_load_dwordx4 {q4(vP1+4*p)}, v{aKV}, {srd(S_WS)}, s{so} offen offset:{1024*(p%4)} sc1")
    p1_loads()
    a("s_barrier")
    a("s_barrier")
    ptags = [vP1+4*p+k for p in range(8) for k in (1, 3)]
    def qsum():
        for off in (0, 2):
            d = vS0 + (0 if off == 0 else 4)
            a(f"v_add_f32 v{d}, v{vP1+off}, v{vP1+4+off}")
            a(f"v_add_f32 v{d+1}, v{vP1+8+off}, v{vP1+12+off}")
            a(f"v_add_f32 v{d+2}, v{vP1+16+off}, v{vP1+20+off}")
            a(f"v_add_f32 v{d+3}, v{vP1+24+off}, v{vP1+28+off}")
        for d in (vS0, vS0+4):
            a(f"v_add_f32 v{d}, v{d}, v{d+1}")
            a(f"v_add_f32 v{d+2}, v{d+2}, v{d+3}")
        for d in (vS0, vS0+4):
            a(f"v_add_f32 v{d}, v{d}, v{d+2}")
        a(f"v_cvt_pk_bf16_f32 v{T2}, v{vS0}, v{vS0+4}")
    a("s_waitcnt vmcnt(0)")
    stamp("p1ret")
    check_mm(ptags, T0, T1)
    qsum()
    a("s_cbranch_vccz L_qok")
    a.label("L_qretry")
    a(f"s_add_u32 s{sSpin}, s{sSpin}, 256")
    a(f"s_cmp_gt_u32 s{sSpin}, {1<<22}")
    a("s_cbranch_scc1 L_qok")
    p1_loads()
    a("s_waitcnt vmcnt(0)")
    check_mm(ptags, T0, T1)
    qsum()
    a("s_cbranch_vccnz L_qretry")
    a.label("L_qok")
    a(f"ds_write_b32 v{aLq}, v{T2} offset:{L_Q}")
    a(f"ds_write_b32 v{aZero}, v{vOne} offset:{F_Q}")
    def wait_sum_pub(flag, target, nparts, lbase, stride, soff, voff, lab, light=None):
        a(f"v_mov_b32 v{T1}, s{sT}")
        a(f"v_mov_b32 v{T3}, s{sT}")
        if light: spin(light[0], light[1], sleep=int(opts.get("lsl", "1")))
        a.label(lab)
        a(f"ds_read_b32 v{T4}, v{aZero} offset:{flag}")
        for k in range(nparts):
            a(f"ds_read_b64 {q2(vS0+2*k)}, v{aL8} offset:{lbase+stride*k}")
        a(f"s_waitcnt lgkmcnt({nparts})")
        a(f"v_readfirstlane_b32 s{t0}, v{T4}")
        a("s_nop 0")
        a(f"s_cmp_ge_u32 s{t0}, {target}")
        a(f"s_cbranch_scc1 {lab}_ok")
        a("s_waitcnt lgkmcnt(0)")
        a(f"s_branch {lab}")
        a.label(lab + "_ok")
        step = 1; first = True
        while step < nparts:
            for k in range(0, nparts, 2*step):
                if first: a(f"s_waitcnt lgkmcnt({nparts - (k+2)})")
                last = (2*step >= nparts)
                d0, d1 = (T0, T2) if last else (vS0+2*k, vS0+2*k+1)
                a(f"v_add_f32 v{d0}, v{vS0+2*k}, v{vS0+2*(k+step)}")
                a(f"v_add_f32 v{d1}, v{vS0+2*k+1}, v{vS0+2*(k+step)+1}")
            first = False; step *= 2
        a(f"buffer_store_dwordx4 v[{T0}:{T3}], v{voff}, {srd(S_WS)}, s{soff} offen sc1")
    wait_sum_pub(F_O, 8, 8, L_OP, 512, sOp, aKV, "L_wo8", light=(F_M, 8))
    signal(F_PO)
    stamp("pubo")
    a("s_mov_b32 exec_hi, 0xff")
    wait_sum_pub(F_S, 2, 4, L_SP, 320, sSp, aS, "L_ws2", light=(F_S, 1))
    a("s_mov_b64 exec, -1")
    signal(F_PS)
    stamp("pubs")
    a("s_branch L_fin")
    a.label("L_role_h1")
    a.vm = list(vm_ln)
    for i in range(20):
        a.wait_vm(f"t{i}")
        lo, hi = (vXa, vXah) if i < 16 else (vXb, vXbh)
        for k in range(2):
            a(f"v_dot2c_f32_bf16_dpp v{vAcc+2*k}, v{lo}, v{vTile+2*i+k} row_newbcast:{i%16} {DPP}")
            a(f"v_dot2c_f32_bf16_dpp v{vAcc+2*k+1}, v{hi}, v{vTile+2*i+k} row_newbcast:{i%16} {DPP}")
    a("s_nop 2")
    red32(vAcc+0, vAcc+2); red32(vAcc+1, vAcc+3)
    a("s_nop 1")
    red16(vAcc+0, vAcc+1, d=T0)
    a(f"s_cmp_eq_u32 s{sMlp}, 0")
    a("s_cbranch_scc1 L_h_nopub")
    a(f"buffer_store_dwordx2 v[{T0}:{T1}], v{aPub}, {srd(S_WS)}, s{sPub} offen sc1")
    a.label("L_h_nopub")
    a("s_setprio 0")
    for _ in range(nbar): a("s_barrier")
    a(f"""
    v_lshrrev_b32 v{T0}, 4, v{vL}
    v_and_b32 v{T1}, 15, v{vL}
    v_lshrrev_b32 v{T2}, 3, v{vL}
    v_and_b32 v{T3}, 7, v{vL}
    v_mul_u32_u24 v{aWOm}, 1280, v{T2}
    v_lshl_add_u32 v{aWOm}, v{T3}, 4, v{aWOm}
    v_lshrrev_b32 v{T4}, 1, v{vL}
    v_mul_u32_u24 v{aWOe}, 1280, v{T4}
    v_and_b32 v{aBe}, 1, v{vL}
    v_lshl_add_u32 v{aWOe}, v{aBe}, 4, v{aWOe}
    v_add_u32 v{aWOe}, 128, v{aWOe}
    v_lshrrev_b32 v{aG}, 5, v{vL}
    v_lshlrev_b32 v{aG}, 9, v{aG}
    v_and_b32 v{aB1}, 31, v{vL}
    v_lshl_add_u32 v{aG}, v{aB1}, 4, v{aG}
    v_lshlrev_b32 v{aB1}, 2, v{aB1}
    v_lshrrev_b32 v{aBm}, 1, v{T2}
    v_lshlrev_b32 v{aBm}, 2, v{aBm}
    v_and_b32 v{aSt1}, 1, v{T2}
    v_lshlrev_b32 v{aSt1}, 4, v{aSt1}                 ; 16*(r8&1) shift
    v_lshrrev_b32 v{aLp}, 1, v{T4}
    v_lshlrev_b32 v{aLp}, 2, v{aLp}
    v_and_b32 v{aLqr}, 1, v{T4}
    v_lshlrev_b32 v{aLqr}, 4, v{aLqr}                 ; 16*(d&1)
    s_mul_i32 s{t1}, s{sJ}, {5*4096*0+160}
    s_lshl_b32 s{t0}, s{sG}, 6
    s_mul_i32 s{sB0}, s{t0}, 1280
    s_add_u32 s{sB0}, s{sB0}, s{t1}
    s_add_u32 s{sB0}, s{sB0}, s{sOobM}
    s_lshl_b32 s{t0}, s{sG}, 12
    s_add_u32 s{sHg}, s{t0}, {WS_H}
    s_lshl_b32 s{t0}, s{sG}, 13
    s_add_u32 s{t0}, s{t0}, {WS_Q}
    s_cmp_eq_u32 s{sMlp}, 0
    s_cselect_b32 s{sHg}, s{t0}, s{sHg}
    s_lshl_b32 s{t0}, s{sG}, 10
    s_add_u32 s{sStp}, s{t0}, {WS_ST}
    s_lshl_b32 s{t1}, s{sJ}, 7
    s_add_u32 s{sStp}, s{sStp}, s{t1}
    s_mul_i32 s{t1}, s{sJ}, {5*4096}
    s_lshl_b32 s{t0}, s{sG}, 7
    s_add_u32 s{sSp}, s{t1}, s{t0}
    s_add_u32 s{sSp}, s{sSp}, {WS_Y}
    s_barrier                                 ; B0
    s_barrier                                 ; B0b
    s_barrier                                 ; B0c
    """)
    a.vm = []
    a(f"s_lshl_b32 s{t0}, s{sG}, 7")
    a.vmem(f"buffer_load_dword v{vB1}, v{aB1}, {srd(S_B1)}, s{t0} offen", "b1")
    def ph_loads(track):
        f = a.vmem if track else (lambda s_, t_: a(s_))
        for i in range(4):
            f(f"buffer_load_dwordx4 {q4(vGa+4*i)}, v{aG}, {srd(S_WS)}, s{sHg} offen offset:{1024*i} sc1", "ph")
    PHL = opts.get("phlate", "0") == "1"
    if not PHL: ph_loads(True)
    def tile_loads(srdb, sbase, nmain, nextra, tag):
        for i in range(nmain):
            a.vmem(f"buffer_load_dwordx4 {q4(vW+4*i)}, v{aWOm}, {srd(srdb)}, s{sbase} offen{NT}", tag)
            a(f"s_add_u32 s{sbase}, s{sbase}, 10240")
        a(f"s_sub_u32 s{sbase}, s{sbase}, {10240*nmain}")
        for i in range(nextra):
            a.vmem(f"buffer_load_dwordx4 {q4(vW+4*(nmain+i))}, v{aWOe}, {srd(srdb)}, s{sbase} offen{NT}", tag)
            if i + 1 < nextra: a(f"s_add_u32 s{sbase}, s{sbase}, {32*1280}")
    W2L = opts.get("w2late", "1") == "1"
    if not W2L: tile_loads(S_W2, sB0, 8, 2, "w2")
    spin(F_P, 8, sleep=1)
    a("s_setprio 3")
    a(f"""
    v_lshlrev_b32 v{aB1}, 3, v{vL}
    ds_read_b64 {q2(vAcc)}, v{aB1} offset:{L_P}
    ds_read_b32 v{T0}, v{aZero} offset:{F_MX}
    v_mov_b32 v{T1}, s{sT}
    v_mov_b32 v{T3}, s{sT}
    s_waitcnt lgkmcnt(0)
    v_add_f32 v{T2}, v{vAcc}, v{vAcc+1}
    """)
    wave_red("add", T2, T4)
    a(f"""
    s_mov_b64 exec, 0xff
    buffer_store_dwordx4 v[{T0}:{T3}], v{aKV}, {srd(S_WS)}, s{sStp} offen sc1
    s_mov_b64 exec, -1
    """)
    signal(F_PO)
    stamp("pubst")
    a("s_setprio 0")
    a(f"s_cmp_eq_u32 s{sMlp}, 0")
    a("s_cbranch_scc1 L_fin")
    if PHL: ph_loads(True)
    if W2L: tile_loads(S_W2, sB0, 8, 2, "w2")
    a.wait_vm("ph")
    htags = [vGa+4*i+k for i in range(4) for k in (1, 3)]
    check_mm(htags, T0, T1)
    a("s_cbranch_vccz L_hok")
    a.label("L_hretry")
    a(f"s_add_u32 s{sSpin}, s{sSpin}, 16")
    a(f"s_and_b32 s{t0}, s{sSpin}, 0xfff0")
    a(f"s_cmp_gt_u32 s{t0}, 0xff00")
    a("s_cbranch_scc1 L_hok")
    ph_loads(False)
    a("s_waitcnt vmcnt(0)")
    check_mm(htags, T0, T1)
    a("s_cbranch_vccnz L_hretry")
    a.label("L_hok")
    a(f"""
    v_add_f32 v{vGa}, v{vGa}, v{vGa+4}
    v_add_f32 v{vGa+2}, v{vGa+2}, v{vGa+6}
    v_add_f32 v{vGa+8}, v{vGa+8}, v{vGa+12}
    v_add_f32 v{vGa+10}, v{vGa+10}, v{vGa+14}
    v_add_f32 v{vGa}, v{vGa}, v{vGa+8}
    v_add_f32 v{vGa+2}, v{vGa+2}, v{vGa+10}
    v_mov_b32 v{T0}, v{vGa}
    v_mov_b32 v{T1}, v{vGa+2}
    s_nop 1
    v_permlane32_swap_b32 v{vGa}, v{T0}
    v_permlane32_swap_b32 v{vGa+2}, v{T1}
    v_add_f32 v{vGa}, v{vGa}, v{T0}
    v_add_f32 v{vGa+2}, v{vGa+2}, v{T1}
    v_cvt_pk_bf16_f32 v{T0}, v{vGa}, v{vGa+2}
    v_lshlrev_b32 v{vGa}, 16, v{T0}
    v_and_b32 v{vGa+2}, 0xffff0000, v{T0}
    v_lshlrev_b32 v{T0}, 16, v{vB1}
    v_and_b32 v{T1}, 0xffff0000, v{vB1}
    v_add_f32 v{vGa}, v{vGa}, v{T0}
    v_add_f32 v{vGa+2}, v{vGa+2}, v{T1}
    v_cvt_pk_bf16_f32 v{T0}, v{vGa}, v{vGa+2}
    v_lshlrev_b32 v{vGa}, 16, v{T0}
    v_and_b32 v{vGa+2}, 0xffff0000, v{T0}
    s_mov_b32 s{t0}, 0x3d372713
    s_mov_b32 s{t1}, 0xc0135761
    """)
    for r, T in ((vGa, T0), (vGa+2, T1)):
        a(f"""
        v_mul_f32 v{T}, v{r}, v{r}
        v_mul_f32 v{T}, s{t0}, v{T}
        v_fma_f32 v{T}, v{T}, v{r}, v{r}
        v_mul_f32 v{T}, s{t1}, v{T}
        v_exp_f32 v{T}, v{T}
        s_nop 0
        v_add_f32 v{T}, 1.0, v{T}
        v_rcp_f32 v{T}, v{T}
        s_nop 0
        v_mul_f32 v{r}, v{r}, v{T}
        """)
    a(f"v_cvt_pk_bf16_f32 v{vHs}, v{vGa}, v{vGa+2}")
    for i in range(8): a(f"ds_bpermute_b32 v{vXq+i}, v{aBm}, v{vHs} offset:{16*i}")
    for i in range(2): a(f"ds_bpermute_b32 v{vXq+8+i}, v{aLp}, v{vHs} offset:{64*i}")
    zero(vAcc); zero(vAcc2)
    a("s_waitcnt lgkmcnt(0)")
    for i in range(10):
        sh = aSt1 if i < 8 else aLqr
        a(f"v_lshrrev_b32 v{vXq+i}, v{sh}, v{vXq+i}")
        a(f"v_lshlrev_b32 v{vXqh+i}, 16, v{vXq+i}")
        a(f"v_and_b32 v{vXq+i}, 0xffff, v{vXq+i}")
    a.wait_vm("w2")
    for i in range(10): mac8(vAcc if i < 8 else vAcc2, vW+4*i, vXq+i, vXqh+i)
    red_tile(vAcc, vAcc2)
    a(f"""
    v_lshrrev_b32 v{T0}, 4, v{vL}
    v_and_b32 v{T3}, 7, v{vL}
    v_lshl_add_u32 v{T1}, v{T3}, 2, v{T0}
    v_lshrrev_b32 v{T2}, 3, v{T1}
    v_and_b32 v{T1}, 7, v{T1}
    v_lshlrev_b32 v{T1}, 4, v{T1}
    v_lshl_add_u32 v{aS}, v{T2}, 12, v{T1}
    v_and_b32 v{T3}, 1, v{vL}
    v_lshl_add_u32 v{T1}, v{T3}, 2, v{T0}             ; 4b0 + rho
    v_lshlrev_b32 v{aL8}, 4, v{T1}
    v_add_u32 v{aL8}, {4*4096}, v{aL8}
    v_mov_b32 v{vAcc+3}, s{sT}
    v_mov_b32 v{vAcc+2}, v{vAcc+1}
    v_mov_b32 v{vAcc+1}, s{sT}
    v_mov_b32 v{vAcc2+3}, s{sT}
    v_mov_b32 v{vAcc2+2}, v{vAcc2+1}
    v_mov_b32 v{vAcc2+1}, s{sT}
    """)
    a(f"""
    s_mov_b32 exec_lo, 0x00ff00ff
    s_mov_b32 exec_hi, 0x00ff00ff
    buffer_store_dwordx4 {q4(vAcc)}, v{aS}, {srd(S_WS)}, s{sSp} offen sc1
    s_mov_b32 exec_lo, 0x00030003
    s_mov_b32 exec_hi, 0x00030003
    buffer_store_dwordx4 {q4(vAcc2)}, v{aL8}, {srd(S_WS)}, s{sSp} offen sc1
    s_mov_b64 exec, -1
    s_branch L_fin
    """)
    a.label("L_notfront")
    a(f"v_mov_b32 v{vOne}, 1")
    a(f"s_mov_b32 s{sSpin}, 0")
    a(f"s_mov_b32 s{sLog2e}, 0x3fb8aa3b")
    a(f"s_cmp_ge_u32 s{sW}, 4")
    a("s_cbranch_scc1 L_kv")
    a.label("L_t")
    a.vm = []
    kload(S_WO, S_B2, S_OUT)
    kconst(S_X, S_WS, S_WO, S_B2, S_OUT)
    a(f"""
    v_lshrrev_b32 v{T2}, 3, v{vL}
    v_and_b32 v{T3}, 7, v{vL}
    s_sub_u32 s{sR}, s{sW}, 2
    v_mov_b32 v{T4}, 0
    v_lshlrev_b32 v{aLq}, 2, v{vL}
    ds_write_b32 v{aLq}, v{T4} offset:{L_F}
    v_mov_b32 v{T4}, 0xff800000
    ds_write_b32 v{aZero}, v{T4} offset:{F_MX}
    v_mul_u32_u24 v{aWOm}, 1280, v{T2}
    v_lshl_add_u32 v{aWOm}, v{T3}, 4, v{aWOm}
    v_lshrrev_b32 v{T4}, 1, v{vL}
    v_mul_u32_u24 v{aWOe}, 1280, v{T4}
    v_and_b32 v{aBe}, 1, v{vL}
    v_lshl_add_u32 v{aWOe}, v{aBe}, 4, v{aWOe}
    v_add_u32 v{aWOe}, 128, v{aWOe}
    v_lshrrev_b32 v{aG}, 5, v{vL}
    v_lshlrev_b32 v{aG}, 10, v{aG}
    v_and_b32 v{aB1}, 31, v{vL}
    v_lshl_add_u32 v{aG}, v{aB1}, 4, v{aG}
    v_lshlrev_b32 v{aSt1}, 7, v{T3}
    v_lshrrev_b32 v{aBm}, 1, v{T2}
    v_lshlrev_b32 v{aBm}, 2, v{aBm}                   ; (r8>>1)*4
    v_and_b32 v{aPub}, 1, v{T2}
    v_lshlrev_b32 v{aPub}, 4, v{aPub}                 ; 16*(r8&1)
    v_lshrrev_b32 v{aLp}, 1, v{T4}
    v_lshlrev_b32 v{aLp}, 2, v{aLp}                   ; (l>>2)*4
    v_and_b32 v{aLqr}, 1, v{T4}
    v_lshlrev_b32 v{aLqr}, 4, v{aLqr}                 ; 16*((l>>1)&1)
    s_mul_i32 s{t0}, s{sR}, 640
    v_and_b32 v{aLSm}, 1, v{T0}
    v_lshlrev_b32 v{aLSm}, 5, v{aLSm}
    v_add_lshl_u32 v{aLSm}, v{aLSm}, v{T3}, 2
    v_lshrrev_b32 v{aLSe}, 1, v{T0}
    v_mul_u32_u24 v{aLSe}, 320, v{aLSe}
    v_add3_u32 v{aLSm}, v{aLSm}, v{aLSe}, s{t0}
    v_add_u32 v{aLSm}, {L_SP}, v{aLSm}
    v_lshlrev_b32 v{aLSe}, 5, v{aBe}
    v_lshl_add_u32 v{aLSe}, v{T0}, 3, v{aLSe}
    v_add_u32 v{aLSe}, s{t0}, v{aLSe}
    v_add_u32 v{aLSe}, 256, v{aLSe}
    v_mov_b32 v{vAcc}, 0
    v_mov_b32 v{vAcc+1}, 0
    ds_write_b64 v{aLSe}, {q2(vAcc)} offset:{L_SP+320}
    v_and_b32 v{vMsk}, 1, v{T3}
    v_mov_b32 v{vMsk+1}, 0xffff
    v_mov_b32 v{vMsk+2}, 0xffff0000
    v_cmp_eq_u32 vcc, 0, v{vMsk}
    v_lshrrev_b32 v{vAcc+2}, 1, v{T3}
    s_nop 0
    v_cndmask_b32 v{vAcc+3}, v{vMsk+2}, v{vMsk+1}, vcc
    v_cmp_eq_u32 vcc, 0, v{vAcc+2}
    v_cmp_eq_u32 s[{sM}:{sM+1}], 1, v{vAcc+2}
    s_nop 0
    v_cndmask_b32 v{vMsk}, 0, v{vAcc+3}, vcc
    v_cndmask_b32 v{vMsk+1}, 0, v{vAcc+3}, s[{sM}:{sM+1}]
    v_cmp_eq_u32 vcc, 2, v{vAcc+2}
    v_cmp_eq_u32 s[{sM}:{sM+1}], 3, v{vAcc+2}
    s_nop 0
    v_cndmask_b32 v{vMsk+2}, 0, v{vAcc+3}, vcc
    v_cndmask_b32 v{vMsk+3}, 0, v{vAcc+3}, s[{sM}:{sM+1}]
    v_and_b32 v{aX4}, 28, v{aLq}
    v_mov_b32 v{aS}, 0x0c0c0100
    v_mov_b32 v{aL8}, 0x0c0c0302
    v_cmp_eq_u32 vcc, 0, v{aPub}
    v_cmp_eq_u32 s[{sM}:{sM+1}], 0, v{aLqr}
    s_nop 1
    v_cndmask_b32 v{aLqr}, v{aL8}, v{aS}, s[{sM}:{sM+1}]
    v_mov_b32 v{aS}, 0x01000c0c
    v_mov_b32 v{aL8}, 0x03020c0c
    v_cndmask_b32 v{aXa}, v{aL8}, v{aS}, s[{sM}:{sM+1}]
    v_mov_b32 v{aS}, 0x01000100
    v_mov_b32 v{aL8}, 0x03020302
    v_cndmask_b32 v{aT}, v{aL8}, v{aS}, vcc
    s_add_u32 s{sGC}, s{sG}, {SHIFT}
    s_and_b32 s{sGC}, s{sGC}, 31
    s_lshl_b32 s{t0}, s{sGC}, 7
    s_lshl_b32 s{t1}, s{sR}, 6
    s_add_u32 s{t0}, s{t0}, s{t1}
    s_mul_i32 s{sB0}, s{t0}, 1280
    s_mul_i32 s{t2}, s{sJ}, 160
    s_add_u32 s{sB0}, s{sB0}, s{t2}
    s_lshl_b32 s{t1}, s{sR}, 9
    s_lshl_b32 s{t3}, s{sGC}, 13
    s_add_u32 s{t1}, s{t1}, s{t3}
    s_add_u32 s{sOg}, s{t1}, {WS_O}
    s_add_u32 s{sOp}, s{sOg}, 4096
    s_lshl_b32 s{t0}, s{sGC}, 10
    s_add_u32 s{sSt}, s{t0}, {WS_ST}
    s_sub_u32 s{t0}, s{sG}, 27
    s_lshl_b32 s{t0}, s{t0}, 3
    s_add_u32 s{t0}, s{t0}, s{sJ}
    s_lshl_b32 s{sC}, s{t0}, 5
    s_lshl_b32 s{t0}, s{t0}, 12
    s_add_u32 s{sFY}, s{t0}, {WS_Y}
    s_add_u32 s{sFS}, s{t0}, {WS_S}
    s_waitcnt lgkmcnt(0)
    s_barrier                                    ; Bs
    """)
    for _ in range(nbar): a("s_barrier")
    a("s_barrier"); a("s_barrier"); a("s_barrier")
    a.vmem(f"buffer_load_dword v{vE}, v{aZero}, {srd(S_WS)}, 0 offen sc1", "E")
    TL = opts.get("tlate", "0")
    if TL != "0":
        if TL == "1":
            a(f"s_cmp_eq_u32 s{sR}, 0")
            a("s_cbranch_scc1 L_tl_go")
        tg = opts.get("tgate", "PO")
        spin({"PO": F_PO, "Q": F_Q, "M": F_M, "P": F_P, "O": F_O}[tg], {"PO": 2, "Q": 1, "M": 8, "P": 8, "O": 8}[tg], sleep=1)
        a.label("L_tl_go")
    tile_loads(S_WO, sB0, 8, 2, "wo")
    a.vmem(f"buffer_load_dword v{vXf}, v{aX4}, {srd(S_X)}, s{sC} offen", "xf")
    a.vmem(f"buffer_load_dword v{vB2}, v{aX4}, {srd(S_B2)}, s{sC} offen", "xf")
    zero(vAcc); zero(vAcc2)
    a("s_waitcnt vmcnt(0)")
    stamp("awo")
    a(f"v_readfirstlane_b32 s{sT}, v{vE}")
    a("s_nop 0")
    a(f"s_add_u32 s{sT}, s{sT}, {TAGC}")
    spin(F_PO, 2, sleep=1)
    if int(opts.get("presleep", "0")): a(f"s_sleep {opts['presleep']}")
    otags = [vGa+4*i+k for i in range(4) for k in (1, 3)] + [vGa+17, vGa+19]
    a.label("L_oretry")
    for i in range(4):
        a(f"buffer_load_dwordx4 {q4(vGa+4*i)}, v{aG}, {srd(S_WS)}, s{sOg} offen offset:{2048*(i%2)} sc1" if i < 2 else f"buffer_load_dwordx4 {q4(vGa+4*i)}, v{aG}, {srd(S_WS)}, s{sOp} offen offset:{2048*(i%2)} sc1")
    a(f"buffer_load_dwordx4 {q4(vGa+16)}, v{aSt1}, {srd(S_WS)}, s{sSt} offen sc1")
    a(f"s_add_u32 s{sSpin}, s{sSpin}, 65536")
    a("s_waitcnt vmcnt(0)")
    check_mm(otags, T0, T1)
    a(f"s_cmp_gt_u32 s{sSpin}, 0x7f000000")
    a("s_cbranch_scc1 L_ook")
    a("s_cbranch_vccnz L_oretry")
    a.label("L_ook")
    a.vm = []
    stamp("pollo")
    a("s_setprio 3")
    CM, CL = vGa+16, vGa+18
    a(f"v_mov_b32 v{T0}, v{CM}")
    for n in (4, 2, 1):
        a("s_nop 1")
        a(f"v_max_f32_dpp v{T0}, v{T0}, v{T0} row_ror:{n} {DPP}")
    a(f"""
    v_sub_f32 v{T1}, v{CM}, v{T0}
    v_mul_f32 v{T1}, s{sLog2e}, v{T1}
    v_exp_f32 v{T1}, v{T1}
    s_nop 0
    v_mul_f32 v{T2}, v{T1}, v{CL}
    """)
    for i in range(4):
        a(f"v_mov_b32_dpp v{vXq+i}, v{T1} row_newbcast:{2*i} row_mask:0x3 bank_mask:0xf")
        a(f"v_mov_b32_dpp v{vXq+i}, v{T1} row_newbcast:{2*i+1} row_mask:0xc bank_mask:0xf")
        if i < 3:
            a(f"v_add_f32_dpp v{T2}, v{T2}, v{T2} row_ror:{(4,2,1)[i]} {DPP}")
    a(f"""
    v_mul_f32 v{T3}, v{vGa}, v{vXq}
    v_mul_f32 v{T4}, v{vGa+2}, v{vXq}
    v_fmac_f32 v{T3}, v{vGa+4}, v{vXq+1}
    v_fmac_f32 v{T4}, v{vGa+6}, v{vXq+1}
    v_fmac_f32 v{T3}, v{vGa+8}, v{vXq+2}
    v_fmac_f32 v{T4}, v{vGa+10}, v{vXq+2}
    v_fmac_f32 v{T3}, v{vGa+12}, v{vXq+3}
    v_fmac_f32 v{T4}, v{vGa+14}, v{vXq+3}
    v_rcp_f32 v{T2}, v{T2}
    v_mov_b32 v{T0}, v{T3}
    v_mov_b32 v{T1}, v{T4}
    s_nop 1
    v_permlane32_swap_b32 v{T3}, v{T0}
    v_permlane32_swap_b32 v{T4}, v{T1}
    v_add_f32 v{T3}, v{T3}, v{T0}
    v_add_f32 v{T4}, v{T4}, v{T1}
    v_mul_f32 v{T3}, v{T3}, v{T2}
    v_mul_f32 v{T4}, v{T4}, v{T2}
    v_cvt_pk_bf16_f32 v{vHs}, v{T3}, v{T4}
    """)
    for i in range(8): a(f"ds_bpermute_b32 v{vXq+i}, v{aBm}, v{vHs} offset:{16*i}")
    for i in range(2): a(f"ds_bpermute_b32 v{vXq+8+i}, v{aLp}, v{vHs} offset:{64*i}")
    for i in range(8):
        B = vBa if i % 2 == 0 else vBb
        a(f"s_waitcnt lgkmcnt({9-i})")
        a(f"v_perm_b32 v{vXq+i}, v{vXq+i}, v{vXq+i}, v{aT}")
        for k in range(4): a(f"v_and_b32 v{B+k}, v{vXq+i}, v{vMsk+k}")
        a("s_nop 1")
        a(f"v_mfma_f32_16x16x32_bf16 {q4(vAcc)}, {q4(vW+4*i)}, {q4(B)}, {q4(vAcc)}")
    for i in range(8, 10):
        a(f"s_waitcnt lgkmcnt({9-i})")
        a(f"v_perm_b32 v{vXqh+i}, v{vXq+i}, v{vXq+i}, v{aXa}")
        a(f"v_perm_b32 v{vXq+i}, v{vXq+i}, v{vXq+i}, v{aLqr}")
        mac8(vAcc2, vW+4*i, vXq+i, vXqh+i)
    red8regs(vAcc2)
    a(f"""
    s_mov_b32 exec_lo, 0x00ff00ff
    s_mov_b32 exec_hi, 0xff00ff00
    ds_write2_b32 v{aLSm}, v{vAcc}, v{vAcc+1} offset0:{(L_SP)//4*0} offset1:8
    ds_write2_b32 v{aLSm}, v{vAcc+2}, v{vAcc+3} offset0:16 offset1:24
    s_mov_b64 exec, -1
    """)
    a("s_nop 0")
    for r in (vAcc2, vAcc2+1):
        a(f"v_add_f32_dpp v{r}, v{r}, v{r} row_ror:8 {DPP}")
    a("s_nop 0")
    for r in (vAcc2, vAcc2+1):
        a(f"v_add_f32_dpp v{r}, v{r}, v{r} row_ror:4 {DPP}")
    a("s_nop 0")
    for r in (vAcc2, vAcc2+1):
        a(f"v_add_f32_dpp v{r}, v{r}, v{r} quad_perm:[2,3,0,1] {DPP}")
    a(f"ds_write_b64 v{aLSe}, {q2(vAcc2)} offset:{L_SP}")
    signal(F_S)
    stamp("tdone")
    a(f"""
    s_cmp_lt_u32 s{sG}, 27
    s_cbranch_scc1 L_fin
    s_cmp_eq_u32 s{sR}, 1
    s_cbranch_scc0 L_fin
    v_mov_b32 v{vFF+28}, 0
    v_mov_b32 v{vFF+29}, s{sT}
    v_mov_b32 v{vFF+30}, 0
    v_mov_b32 v{vFF+31}, s{sT}
    """)
    vZ = vGa
    spin(F_PS, 1, sleep=1)
    a.label("L_polly")
    for i in range(3):
        a(f"buffer_load_dwordx4 {q4(vFF+16+4*i)}, v{aKV}, {srd(S_WS)}, s{sFY} offen offset:{1024*i} sc1")
    a("s_mov_b32 exec_lo, 0xffffff")
    a("s_mov_b32 exec_hi, 0")
    a(f"buffer_load_dwordx4 {q4(vFF+28)}, v{aKV}, {srd(S_WS)}, s{sFY} offen offset:3072 sc1")
    a("s_mov_b64 exec, -1")
    a(f"s_add_u32 s{sSpin}, s{sSpin}, 65536")
    a("s_waitcnt vmcnt(0)")
    check_mm([vFF+16+4*i+k for i in range(4) for k in (1, 3)], T0, T1)
    a(f"s_cmp_gt_u32 s{sSpin}, 0x7f000000")
    a("s_cbranch_scc1 L_polly_done")
    a("s_cbranch_vccnz L_polly")
    a.label("L_polly_done")
    base = vFF + 16
    a(f"v_add_f32 v{vZ+2}, v{base}, v{base+4}")
    a(f"v_add_f32 v{vZ+3}, v{base+2}, v{base+6}")
    a(f"v_add_f32 v{T2}, v{base+8}, v{base+12}")
    a(f"v_add_f32 v{T3}, v{base+10}, v{base+14}")
    a(f"v_add_f32 v{vZ+2}, v{vZ+2}, v{T2}")
    a(f"v_add_f32 v{vZ+3}, v{vZ+3}, v{T3}")
    a("s_nop 1")
    red32(vZ+2, vZ+3)
    a(f"v_mov_b32 v{T3}, v{vZ+2}"); a("s_nop 1")
    red16(vZ+2, T3)
    a("s_nop 1")
    a(f"v_add_f32_dpp v{vZ+2}, v{vZ+2}, v{vZ+2} row_ror:8 {DPP}")
    a(f"""
    v_lshrrev_b32 v{T4}, 5, v{vL}
    v_lshlrev_b32 v{T4}, 4, v{T4}
    v_lshrrev_b32 v{vB2}, v{T4}, v{vB2}
    v_lshlrev_b32 v{vB2}, 16, v{vB2}
    v_lshrrev_b32 v{vXf}, v{T4}, v{vXf}
    v_lshlrev_b32 v{vXf}, 16, v{vXf}
    """)
    rnd(vZ+2)
    a(f"v_add_f32 v{vZ+2}, v{vZ+2}, v{vB2}")
    rnd(vZ+2)
    a(f"""
    v_mul_f32 v{T2}, s{sLog2e}, v{vZ+2}
    v_sub_f32 v{T2}, 0, v{T2}
    v_exp_f32 v{T2}, v{T2}
    s_nop 0
    v_add_f32 v{T2}, 1.0, v{T2}
    v_rcp_f32 v{T2}, v{T2}
    s_nop 0
    v_mul_f32 v{vZ+2}, v{vZ+2}, v{T2}
    """)
    rnd(vZ+2)
    a(f"""
    v_lshrrev_b32 v{T4}, 5, v{vL}
    v_lshl_add_u32 v{aX4}, v{T4}, 1, v{aX4}
    """)
    a.label("L_pollf")
    for i in range(4):
        a(f"buffer_load_dwordx4 {q4(vFF+4*i)}, v{aKV}, {srd(S_WS)}, s{sFS} offen offset:{1024*i} sc1")
    a(f"s_add_u32 s{sSpin}, s{sSpin}, 65536")
    a("s_waitcnt vmcnt(0)")
    check_mm([vFF+4*i+k for i in range(4) for k in (1, 3)], T0, T1)
    base = vFF
    a(f"v_add_f32 v{vZ}, v{base}, v{base+4}")
    a(f"v_add_f32 v{vZ+1}, v{base+2}, v{base+6}")
    a(f"v_add_f32 v{T2}, v{base+8}, v{base+12}")
    a(f"v_add_f32 v{T3}, v{base+10}, v{base+14}")
    a(f"v_add_f32 v{vZ}, v{vZ}, v{T2}")
    a(f"v_add_f32 v{vZ+1}, v{vZ+1}, v{T3}")
    a(f"s_cmp_gt_u32 s{sSpin}, 0x7f000000")
    a("s_cbranch_scc1 L_pollf_done")
    a("s_cbranch_vccnz L_pollf")
    a.label("L_pollf_done")
    red32(vZ, vZ+1)
    a(f"v_mov_b32 v{T2}, v{vZ}"); a("s_nop 1")
    red16(vZ, T2)
    a("s_nop 1")
    a(f"v_add_f32_dpp v{vZ}, v{vZ}, v{vZ} row_ror:8 {DPP}")
    rnd(vZ)
    a(f"v_mul_f32 v{vZ}, v{vZ}, v{vZ+2}")
    rnd(vZ)
    a(f"""
    v_add_f32 v{vZ}, v{vZ}, v{vXf}
    v_cvt_pk_bf16_f32 v{vZ}, v{vZ}, v{vZ}
    s_mov_b32 exec_lo, 0xff
    s_mov_b32 exec_hi, 0xff
    buffer_store_short v{vZ}, v{aX4}, {srd(S_OUT)}, s{sC} offen
    s_cmp_eq_u32 s{sC}, 0
    s_cbranch_scc0 L_fin0
    v_mov_b32 v{T2}, s{sT}
    s_mov_b64 exec, 1
    buffer_store_dword v{T2}, v{aZero}, {srd(S_WS)}, 0 offen sc1
    """)
    a.label("L_fin0")
    a("s_mov_b64 exec, -1")
    a("s_branch L_fin")
    a.label("L_kv")
    a.vm = []
    kload(S_K, S_V)
    kconst(S_K, S_V, S_WS)
    a(f"""
    s_sub_u32 s{sR}, s{sW}, 4
    s_lshl_b32 s{sK}, s{sG}, 20
    s_lshl_b32 s{t2}, s{sJ}, 15
    s_add_u32 s{sK}, s{sK}, s{t2}
    s_lshl_b32 s{t2}, s{sR}, 12
    s_add_u32 s{sK}, s{sK}, s{t2}
    s_add_u32 s{sK}, s{sK}, {3072*256}
    v_lshlrev_b32 v{aLq}, 5, v{T1}
    v_lshl_add_u32 v{aLq}, v{T0}, 3, v{aLq}
    s_lshl_b32 s{t0}, s{sR}, 9
    v_add_u32 v{aLq}, s{t0}, v{aLq}
    v_lshlrev_b32 v{aLqr}, 4, v{T1}
    v_lshrrev_b32 v{aLp}, 2, v{vL}
    v_lshlrev_b32 v{aLp}, 2, v{aLp}
    s_lshl_b32 s{t0}, s{sR}, 6
    v_add_u32 v{aLp}, s{t0}, v{aLp}               ; (kw*16 + (l>>2))*4
    s_mov_b32 s{sScale}, 0x3db504f3
    s_mov_b32 s{sM}, 0x00010001
    s_mov_b32 s{sM+1}, 0x00010001
    s_waitcnt lgkmcnt(0)
    s_barrier                                    ; Bs
    """)
    def ldkv(x):
        if x[0] == "k": a.vmem(f"buffer_load_dwordx4 {q4(vK+4*int(x[1]))}, v{aKV}, {srd(S_K)}, s{sK} offen offset:{1024*int(x[1])}{NT}", x)
        elif x[0] == "v": a.vmem(f"buffer_load_dwordx4 {q4(vV+4*int(x[1]))}, v{aKV}, {srd(S_V)}, s{sK} offen offset:{1024*int(x[1])}{NT}", x)
        elif x[0] == "W": a.wait_vm(x[1:])
        elif x == "bar": a("s_barrier")
    for x in kvseq: ldkv(x)
    for i in range(4): a(f"v_mov_b32 v{vSc+i}, 0")
    zero(vAcc)
    a("s_barrier")
    a("s_barrier")
    for x in kvpost: ldkv(x)
    a("s_barrier")
    a.wait_vm("k0", "k1", "k2", "k3")
    a.label("L_wq")
    a(f"ds_read_b32 v{T4}, v{aZero} offset:{F_Q}")
    a(f"ds_read_b128 {q4(vQ)}, v{aLqr} offset:{L_Q}")
    a("s_waitcnt lgkmcnt(0)")
    a(f"v_readfirstlane_b32 s{t0}, v{T4}")
    a("s_nop 0")
    a(f"s_cmp_eq_u32 s{t0}, 0")
    a("s_cbranch_scc0 L_wq_ok")
    a("s_sleep 1")
    a("s_branch L_wq")
    a.label("L_wq_ok")
    stamp("pollq")
    a("s_setprio 2")
    for k in range(4):
        for i in range(4):
            a(f"v_dot2c_f32_bf16 v{vSc+i}, v{vK+4*i+k}, v{vQ+k}")
    a("s_nop 2")
    D = "row_mask:0xf"
    a(f"v_add_f32_dpp v{T0}, v{vSc+0}, v{vSc+0} row_ror:8 {D} bank_mask:0x3")
    a(f"v_add_f32_dpp v{T1}, v{vSc+1}, v{vSc+1} row_ror:8 {D} bank_mask:0x3")
    a(f"v_add_f32_dpp v{T0}, v{vSc+2}, v{vSc+2} row_ror:8 {D} bank_mask:0xc")
    a(f"v_add_f32_dpp v{T1}, v{vSc+3}, v{vSc+3} row_ror:8 {D} bank_mask:0xc")
    a("s_nop 0")
    a(f"v_add_f32_dpp v{T2}, v{T0}, v{T0} row_shl:4 {D} bank_mask:0x5")
    a(f"v_add_f32_dpp v{T2}, v{T1}, v{T1} row_shr:4 {D} bank_mask:0xa")
    a("s_nop 1")
    a(f"v_add_f32_dpp v{T2}, v{T2}, v{T2} quad_perm:[2,3,0,1] {DPP}")
    a("s_nop 1")
    a(f"v_add_f32_dpp v{T2}, v{T2}, v{T2} quad_perm:[1,0,3,2] {DPP}")
    rnd(T2)
    a(f"v_mul_f32 v{T2}, s{sScale}, v{T2}")
    rnd(T2)
    a("s_nop 1")
    a(f"v_max_f32_dpp v{T0}, v{T2}, v{T2} row_ror:8 {DPP}")
    a("s_nop 1")
    a(f"v_max_f32_dpp v{T0}, v{T0}, v{T0} row_ror:4 {DPP}")
    a(f"s_mov_b64 exec, s[{sM}:{sM+1}]")
    a(f"ds_max_f32 v{aZero}, v{T0} offset:{F_MX}")
    a("s_mov_b64 exec, 1")
    a(f"ds_add_u32 v{aZero}, v{vOne} offset:{F_M}")
    a("s_mov_b64 exec, -1")
    a.label("L_wm")
    a(f"""
    ds_read_b32 v{T4}, v{aZero} offset:{F_M}
    ds_read_b32 v{vMj}, v{aZero} offset:{F_MX}
    s_waitcnt lgkmcnt(0)
    v_readfirstlane_b32 s{t0}, v{T4}
    v_sub_f32 v{T0}, v{T2}, v{vMj}
    s_cmp_lt_u32 s{t0}, 8
    s_cbranch_scc1 L_wm
    v_mul_f32 v{T0}, s{sLog2e}, v{T0}
    v_exp_f32 v{T0}, v{T0}
    s_nop 0
    v_cvt_pk_bf16_f32 v{vPl}, v{T0}, v{T0}
    ds_write_b32 v{aLp}, v{T0} offset:{L_P}
    v_and_b32 v{vPh}, 0xffff0000, v{vPl}
    v_and_b32 v{vPl}, 0xffff, v{vPl}
    """)
    signal(F_P)
    stamp("smax")
    for i in range(4):
        a.wait_vm(f"v{i}")
        mac8(vAcc, vV+4*i, vPl, vPh, dpp=f"row_newbcast:{4*i}")
    red8regs(vAcc)
    a(f"ds_write_b64 v{aLq}, {q2(vAcc)} offset:{L_OP}")
    signal(F_O)
    stamp("b4")
    a.label("L_fin")
    if stamps:
        stamp("end")
        a("s_waitcnt lgkmcnt(0)")
        a(f"""
        s_lshl_b32 s{t0}, s2, 4
        s_add_u32 s{t0}, s{t0}, s{sW}
        s_lshl_b32 s{t0}, s{t0}, 7
        s_add_u32 s{t0}, s{t0}, {WS_TS}
        """)
        for k in range(len(SP)):
            a(f"v_mov_b32 v{140+k}, s{SP[k]}")
        a(f"v_mov_b32 v{140+len(SP)}, s{sSpin}")
        a("s_mov_b64 exec, 1")
        for k in range(3):
            a(f"buffer_store_dwordx4 {q4(140+4*k)}, v{aZero}, {srd(S_WS)}, s{t0} offen offset:{16*k}")
    a.label("L_end")
    a("s_endpgm")
    body = "\n".join(a.l) + "\n"
    src = HDR_COMMENT + f"""; Override launch geometry by editing the next line (default: block=256,
; grid=ceil(out_elems/256), lds=0). Harness parses it; keep it on one line.
; @launch grid=(256,1,1) block=({NW*64},1,1) lds={LDS}
.amdgcn_target "amdgcn-amd-amdhsa--gfx950"
.text
.globl {KN}
.p2align 8
.type {KN},@function
{KN}:
{body}
.section .rodata,"a"
.p2align 6
.amdhsa_kernel {KN}
  .amdhsa_next_free_vgpr {NV}
  .amdhsa_next_free_sgpr 102
  .amdhsa_accum_offset {NV}
  .amdhsa_group_segment_fixed_size 0
  .amdhsa_kernarg_size 104
  .amdhsa_user_sgpr_count 2
  .amdhsa_user_sgpr_kernarg_segment_ptr 1
  .amdhsa_system_sgpr_workgroup_id_x 1
.end_amdhsa_kernel
"""
    return src

if __name__ == "__main__":
    import argparse
    p = argparse.ArgumentParser()
    p.add_argument("-o", default="k13.s")
    p.add_argument("--stamps", action="store_true")
    p.add_argument("--no-nt", action="store_true")
    p.add_argument("--opt", action="append", default=[])
    args = p.parse_args()
    opts = dict(o.split("=") for o in args.opt)
    open(args.o, "w").write(gen(nt=not args.no_nt, stamps=args.stamps, opts=opts))
```

```python
import sys
KN = "recurrent_scan__sliding_block_cached__dense_activation_gelu__decode_kernel"
HDR_COMMENT = open("recurrent_scan__sliding_block_cached__dense_activation_gelu__decode.s.ref").read().split("; Override launch")[0]

class A:
    def __init__(self):
        self.l = []; self.vm = []
    def __call__(self, s):
        for line in s.strip("\n").split("\n"):
            line = line.strip()
            if line: self.l.append("  " + line)
    def label(self, n): self.l.append(n + ":")
    def vmem(self, s, tag):
        self(s); self.vm.append(tag)
    def wait_vm(self, *tags):
        idxs = [i for i, t in enumerate(self.vm) if t in tags]
        if not idxs: return
        idx = max(idxs)
        n = len(self.vm) - 1 - idx
        self(f"s_waitcnt vmcnt({min(n,63)})")
        self.vm = self.vm[idx + 1:]

WS_EPOCH = 0
WS_Q  = 0x1000
WS_H  = WS_Q + 32*8*1024
WS_O  = WS_H + 32*8*512
WS_ST = WS_O + 32*8*1024
WS_S  = WS_ST + 32*8*128
WS_Y  = WS_S + 40*32*128
WS_TS = WS_Y + 40*32*128
NW = 12
TSW = 16
WS_END = WS_TS + 256*TSW*128
TAGC = 0x9E3779B9
OOB = 0x7f000000
DEF_STAMPS = "start,pq1,b0,pollq,smax,pubo,pollo,pubs,end"

def gen(nt=True, stamps=False, echo=None, opts=None):
    opts = opts or {}
    a = A()
    NT = " nt" if nt else ""
    S_X, S_K, S_V, S_WQ, S_WO, S_W1, S_B1, S_W2, S_B2, S_OUT, S_WS = [44 + 4*i for i in range(11)]
    srd = lambda b: f"s[{b}:{b+3}]"
    sG, sJ, sW, sT = 3, 4, 5, 6
    t0, t1, t2, t3 = 7, 8, 9, 10
    sSpin = 11; sM = 12; sR = 14; sFY = 15
    sA0 = 16; sGC = 16
    sB0 = 17; sB1s = 18; sK = 21; sFS = 24; sXo = 25
    sQg = 26; sHg = 27; sOg = 28; sSt = 29; sPub = 30; sOp = 32; sStp = 33
    sSp = 34; sMlp = 35; sScale, sLog2e = 36, 37; sC = 38; sOobM = 39
    SHIFT = int(opts.get("shift", "5"))
    SP = [88,90,92,94,96,98,100,40,42]
    sel = opts.get("stamps", DEF_STAMPS).split(",")
    def stamp(name):
        if stamps and name in sel:
            r = SP[sel.index(name)]; a(f"s_memrealtime s[{r}:{r+1}]")
    vL = 1
    (aKV, aT, aWOm, aWOe, aXa, aX4, aG, aSt1, aLq, aL8, aLqr, aLSm, aLSe, aS, aBm, aBe, aZero, aPub, aB1, aLp) = range(2, 22)
    T0, T1, T2, T3, T4 = 24, 25, 26, 27, 28
    vE = 29; vOne = 30; vX4 = 31; vX16 = 32
    vXa = 36; vXb = 37; vXah = 38; vXbh = 39
    vAcc = 40; vAcc2 = 48
    vXq = 56; vXqh = 66
    vB1 = 22; vXf = 23
    vTile = 76
    xs = list(range(156, 166))
    vP1 = 76; vS0 = 108; vG = 124
    vW = 76
    vGa = 116
    vB2 = 136; vHs = 137; vMsk = 140; vBa = 66; vBb = 70
    vFF = 76
    vQ = 48; vSc = 52; vMj = 56; vPl = 58; vPh = 59; vK = 72; vV = 88
    NV = 168
    q4 = lambda b: f"v[{b}:{b+3}]"
    q2 = lambda b: f"v[{b}:{b+1}]"
    L_OP = 0; L_Q = 4096; L_P = 4352; L_SP = 4864; L_F = 6144; LDS = 6400
    F_Q, F_M, F_P, F_O, F_S, F_PO, F_MX, F_PS = [L_F + 4*i for i in range(8)]
    DPP = "row_mask:0xf bank_mask:0xf"
    nlab = [0]
    def zero(base, n=8):
        for k in range(n): a(f"v_mov_b32 v{base+k}, 0")
    def rnd(v):
        a(f"v_cvt_pk_bf16_f32 v{v}, v{v}, v{v}"); a(f"v_and_b32 v{v}, 0xffff0000, v{v}")
    def spin(flag, target, sleep=1):
        nlab[0] += 1; L = f"L_sp{nlab[0]}"
        a.label(L)
        a(f"ds_read_b32 v{T4}, v{aZero} offset:{flag}")
        a("s_waitcnt lgkmcnt(0)")
        a(f"v_readfirstlane_b32 s{t0}, v{T4}")
        a("s_nop 0")
        a(f"s_cmp_ge_u32 s{t0}, {target}")
        a(f"s_cbranch_scc1 {L}_ok")
        if sleep: a(f"s_sleep {sleep}")
        a(f"s_branch {L}")
        a.label(L + "_ok")
    def signal(flag):
        a("s_mov_b64 exec, 1")
        a(f"ds_add_u32 v{aZero}, v{vOne} offset:{flag}")
        a("s_mov_b64 exec, -1")
    def wave_red(op, v, t, rors=(8,4,2,1), s16=True, s32=True, first_nop=True):
        for n_i, n in enumerate(rors):
            if n_i > 0 or first_nop: a("s_nop 1")
            a(f"v_{op}_f32_dpp v{v}, v{v}, v{v} row_ror:{n} {DPP}")
        if s16:
            a(f"v_mov_b32 v{t}, v{v}"); a("s_nop 1")
            a(f"v_permlane16_swap_b32 v{v}, v{t}"); a(f"v_{op}_f32 v{v}, v{v}, v{t}")
        if s32:
            a(f"v_mov_b32 v{t}, v{v}"); a("s_nop 1")
            a(f"v_permlane32_swap_b32 v{v}, v{t}"); a(f"v_{op}_f32 v{v}, v{v}, v{t}")
    def red32(x, y):
        a(f"v_permlane32_swap_b32 v{x}, v{y}"); a(f"v_add_f32 v{x}, v{x}, v{y}")
    def red16(x, y, d=None):
        a(f"v_permlane16_swap_b32 v{x}, v{y}"); a(f"v_add_f32 v{x if d is None else d}, v{x}, v{y}")
    def red8regs(*accs):
        a("s_nop 2")
        for acc in accs:
            red32(acc+0, acc+4); red32(acc+2, acc+6); red32(acc+1, acc+5); red32(acc+3, acc+7)
        a("s_nop 0")
        for acc in accs:
            red16(acc+0, acc+2); red16(acc+1, acc+3)
    def mac8(acc, w, lo, hi, dpp=""):
        for k in range(4):
            if dpp:
                a(f"v_dot2c_f32_bf16_dpp v{acc+2*k}, v{lo}, v{w+k} {dpp} {DPP}")
                a(f"v_dot2c_f32_bf16_dpp v{acc+2*k+1}, v{hi}, v{w+k} {dpp} {DPP}")
            else:
                a(f"v_dot2c_f32_bf16 v{acc+2*k}, v{w+k}, v{lo}")
                a(f"v_dot2c_f32_bf16 v{acc+2*k+1}, v{w+k}, v{hi}")
    def check(tags):
        a(f"v_cmp_ne_u32 vcc, s{sT}, v{tags[0]}")
        for tg in tags[1:]:
            a(f"v_cmp_ne_u32 s[{sM}:{sM+1}], s{sT}, v{tg}")
            a(f"s_or_b64 vcc, vcc, s[{sM}:{sM+1}]")
    def check_mm(tags, ta, tb):
        for op, t in (("min", ta), ("max", tb)):
            a(f"v_{op}3_u32 v{t}, v{tags[0]}, v{tags[1]}, v{tags[2]}")
            i = 3
            while i < len(tags):
                if i + 1 < len(tags):
                    a(f"v_{op}3_u32 v{t}, v{t}, v{tags[i]}, v{tags[i+1]}"); i += 2
                else:
                    a(f"v_{op}_u32 v{t}, v{t}, v{tags[i]}"); i += 1
        check([ta, tb])
    def red_tile(accM, accE):
        red8regs(accM, accE)
        a("s_nop 1")
        for r in (accM, accM+1, accE, accE+1):
            a(f"v_add_f32_dpp v{r}, v{r}, v{r} row_ror:8 {DPP}")
        a("s_nop 0")
        for r in (accE, accE+1):
            a(f"v_add_f32_dpp v{r}, v{r}, v{r} row_ror:4 {DPP}")
        a("s_nop 1")
        for r in (accE, accE+1):
            a(f"v_add_f32_dpp v{r}, v{r}, v{r} quad_perm:[2,3,0,1] {DPP}")
    def tile_addr():
        a(f"""
        v_mul_u32_u24 v{aWOm}, 1280, v{T2}
        v_lshl_add_u32 v{aWOm}, v{T3}, 4, v{aWOm}
        v_lshrrev_b32 v{T4}, 1, v{vL}
        v_mul_u32_u24 v{aWOe}, 1280, v{T4}
        v_and_b32 v{aBe}, 1, v{vL}
        v_lshl_add_u32 v{aWOe}, v{aBe}, 4, v{aWOe}
        v_add_u32 v{aWOe}, 128, v{aWOe}
        v_lshlrev_b32 v{aBm}, 1, v{T2}
        """)
    kvseq = opts.get("kvseq", "k0 k1 k2 k3 bar v0 v1 v2 v3 Wk3").replace("+", " ").split()
    kvpost = opts.get("kvpost", "").replace("+", " ").split()

    a("s_cmp_ge_u32 s2, 256")
    a("s_cbranch_scc1 L_end")
    stamp("start")
    sizes = {S_X:1280, S_WQ:5242880, S_WS:WS_END, S_K:33554432, S_V:33554432, S_WO:5242880, S_W1:2211840, S_B1:3456, S_W2:2211840, S_B2:1280, S_OUT:1280}
    argi = {S_X:0, S_K:1, S_V:2, S_WQ:3, S_WO:4, S_W1:6, S_B1:7, S_W2:8, S_B2:9, S_OUT:10, S_WS:12}
    def kload(*bs):
        for b in bs: a(f"s_load_dwordx2 s[{b}:{b+1}], s[0:1], {8*argi[b]}")
    def kconst(*bs):
        for b in bs:
            a(f"s_mov_b32 s{b+2}, {sizes[b]}"); a(f"s_mov_b32 s{b+3}, 0x20000")
    kload(S_X, S_WS)
    a(f"""
    v_lshrrev_b32 v{T0}, 6, v0
    v_and_b32 v{vL}, 63, v0
    s_and_b32 s{sG}, s2, 31
    v_readfirstlane_b32 s{sW}, v{T0}
    s_lshr_b32 s{sJ}, s2, 5
    v_lshlrev_b32 v{aKV}, 4, v{vL}
    v_lshrrev_b32 v{T0}, 4, v{vL}
    v_and_b32 v{T1}, 15, v{vL}
    v_mov_b32 v{aZero}, 0
    s_cmp_ge_u32 s{sW}, 2
    s_cbranch_scc1 L_notfront
    s_mul_i32 s{t0}, s{sJ}, 80
    s_cmp_eq_u32 s{sW}, 0
    s_cbranch_scc0 L_role_h0
    """)
    kload(S_WQ)
    a(f"""
    s_setprio 3
    s_lshl_b32 s{sXo}, s{t0}, 1
    v_lshlrev_b32 v{aX4}, 2, v{vL}
    v_lshl_add_u32 v{aXa}, v{T1}, 2, v{T0}
    v_lshlrev_b32 v{aT}, 13, v{T0}
    v_lshlrev_b32 v{aXa}, 1, v{aXa}
    v_lshl_add_u32 v{aT}, v{T1}, 4, v{aT}
    s_lshl_b32 s{sA0}, s{t0}, 13
    s_lshl_b32 s{t2}, s{sG}, 8
    s_add_u32 s{sA0}, s{sA0}, s{t2}
    """)
    kconst(S_X, S_WS, S_WQ)
    a("s_waitcnt lgkmcnt(0)")
    def xloads():
        a.vmem(f"buffer_load_dwordx4 {q4(vX16)}, v{aKV}, {srd(S_X)}, 0 offen", "x")
        a.vmem(f"buffer_load_dword v{vX4}, v{aX4}, {srd(S_X)}, 0 offen offset:1024", "x")
        a.vmem(f"buffer_load_ushort v{vXa}, v{aXa}, {srd(S_X)}, s{sXo} offen", "x")
        a.vmem(f"buffer_load_ushort v{vXb}, v{aXa}, {srd(S_X)}, s{sXo} offen offset:128", "x")
        a.vmem(f"buffer_load_dword v{vE}, v{aZero}, {srd(S_WS)}, 0 offen sc1", "x")
    xloads()
    for i in range(20):
        a.vmem(f"buffer_load_dwordx4 {q4(vTile+4*i)}, v{aT}, {srd(S_WQ)}, s{sA0} offen{NT}", f"t{i}")
        if i < 19: a(f"s_add_u32 s{sA0}, s{sA0}, 32768")
    a(f"""
    v_lshlrev_b32 v{aPub}, 6, v{T1}
    v_lshl_add_u32 v{aPub}, v{T0}, 4, v{aPub}
    s_lshl_b32 s{sPub}, s{sG}, 13
    s_lshl_b32 s{t2}, s{sJ}, 10
    s_add_u32 s{sPub}, s{sPub}, s{t2}
    s_add_u32 s{sPub}, s{sPub}, {WS_Q}
    """)
    a("s_branch L_ln")
    vm_front = list(a.vm)
    a.label("L_role_h0")
    a.vm = []
    kload(S_W1, S_B1, S_W2)
    a(f"""
    s_setprio 3
    s_lshl_b32 s{sXo}, s{t0}, 1
    v_lshlrev_b32 v{aX4}, 2, v{vL}
    v_lshl_add_u32 v{aXa}, v{T1}, 2, v{T0}
    v_mul_u32_u24 v{aT}, 3456, v{T0}
    v_lshlrev_b32 v{aXa}, 1, v{aXa}
    v_lshl_add_u32 v{aT}, v{T1}, 3, v{aT}
    s_cmp_lt_u32 s{sG}, 27
    s_cselect_b32 s{sMlp}, 1, 0
    s_cselect_b32 s{sOobM}, 0, {OOB}
    s_mul_i32 s{sA0}, s{t0}, 3456
    s_lshl_b32 s{t2}, s{sG}, 7
    s_add_u32 s{sA0}, s{sA0}, s{t2}
    s_add_u32 s{sA0}, s{sA0}, s{sOobM}
    """)
    kconst(S_X, S_WS, S_W1)
    a("s_waitcnt lgkmcnt(0)")
    xloads()
    for i in range(20):
        a.vmem(f"buffer_load_dwordx2 {q2(vTile+2*i)}, v{aT}, {srd(S_W1)}, s{sA0} offen{NT}", f"t{i}")
        if i < 19: a(f"s_add_u32 s{sA0}, s{sA0}, {4*3456}")
    assert a.vm == vm_front
    kconst(S_B1, S_W2)
    a(f"""
    v_lshl_add_u32 v{aPub}, v{T1}, 2, v{T0}
    v_lshlrev_b32 v{aPub}, 3, v{aPub}
    s_lshl_b32 s{sPub}, s{sG}, 12
    s_lshl_b32 s{t2}, s{sJ}, 9
    s_add_u32 s{sPub}, s{sPub}, s{t2}
    s_add_u32 s{sPub}, s{sPub}, {WS_H}
    """)
    a.label("L_ln")
    a(f"v_mov_b32 v{vOne}, 1")
    a(f"s_mov_b32 s{sSpin}, 0")
    a("s_barrier")
    zero(vAcc)
    a(f"v_mov_b32 v{T4}, 0x3f803f80")
    a(f"v_mov_b32 v{T0}, 0")
    a.wait_vm("x")
    stamp("x")
    a(f"v_readfirstlane_b32 s{sT}, v{vE}")
    xr = [vX16, vX16+1, vX16+2, vX16+3, vX4]
    for r in xr: a(f"v_dot2c_f32_bf16 v{T0}, v{r}, v{T4}")
    for k, r in enumerate(xr):
        a(f"v_lshlrev_b32 v{xs[2*k]}, 16, v{r}")
        a(f"v_and_b32 v{xs[2*k+1]}, 0xffff0000, v{r}")
    a(f"s_add_u32 s{sT}, s{sT}, {TAGC}")
    wave_red("add", T0, T1, first_nop=False)
    a(f"v_mul_f32 v{T0}, 0x3acccccd, v{T0}")
    for k in range(10): a(f"v_sub_f32 v{xs[k]}, v{xs[k]}, v{T0}")
    a(f"v_mul_f32 v{T2}, v{xs[0]}, v{xs[0]}"); a(f"v_mul_f32 v{T3}, v{xs[1]}, v{xs[1]}")
    for k in range(2, 10, 2):
        a(f"v_fmac_f32 v{T2}, v{xs[k]}, v{xs[k]}"); a(f"v_fmac_f32 v{T3}, v{xs[k+1]}, v{xs[k+1]}")
    a(f"v_add_f32 v{T2}, v{T2}, v{T3}")
    rnd(T0)
    a(f"v_add_f32_dpp v{T2}, v{T2}, v{T2} row_ror:8 {DPP}")
    a(f"v_lshlrev_b32 v{vXa}, 16, v{vXa}"); a(f"v_lshlrev_b32 v{vXb}, 16, v{vXb}")
    a(f"v_add_f32_dpp v{T2}, v{T2}, v{T2} row_ror:4 {DPP}")
    a(f"v_sub_f32 v{vXa}, v{vXa}, v{T0}"); a(f"v_sub_f32 v{vXb}, v{vXb}, v{T0}")
    a(f"v_add_f32_dpp v{T2}, v{T2}, v{T2} row_ror:2 {DPP}")
    a(f"v_cvt_pk_bf16_f32 v{vXa}, v{vXa}, v{vXa}"); a(f"v_cvt_pk_bf16_f32 v{vXb}, v{vXb}, v{vXb}")
    a(f"v_add_f32_dpp v{T2}, v{T2}, v{T2} row_ror:1 {DPP}")
    a(f"v_and_b32 v{vXa}, 0xffff0000, v{vXa}")
    a(f"v_mov_b32 v{T1}, v{T2}")
    a(f"v_and_b32 v{vXb}, 0xffff0000, v{vXb}")
    a("s_nop 0")
    a(f"v_permlane16_swap_b32 v{T2}, v{T1}"); a(f"v_add_f32 v{T2}, v{T2}, v{T1}")
    a(f"v_mov_b32 v{T1}, v{T2}"); a("s_nop 1")
    a(f"v_permlane32_swap_b32 v{T2}, v{T1}"); a(f"v_add_f32 v{T2}, v{T2}, v{T1}")
    a(f"v_mul_f32 v{T2}, 0x3acccccd, v{T2}")
    rnd(T2)
    a(f"v_add_f32 v{T2}, 0x3727c5ac, v{T2}")
    rnd(T2)
    a(f"v_sqrt_f32 v{T2}, v{T2}"); a("s_nop 0")
    rnd(T2)
    a(f"v_rcp_f32 v{T2}, v{T2}"); a("s_nop 0")
    for r in (vXa, vXb): a(f"v_mul_f32 v{r}, v{r}, v{T2}")
    for r in (vXa, vXb): a(f"v_cvt_pk_bf16_f32 v{r}, v{r}, v{r}")
    a(f"v_and_b32 v{vXah}, 0xffff0000, v{vXa}"); a(f"v_and_b32 v{vXbh}, 0xffff0000, v{vXb}")
    a(f"v_and_b32 v{vXa}, 0xffff, v{vXa}"); a(f"v_and_b32 v{vXb}, 0xffff, v{vXb}")
    a(f"v_mov_b32 v{T1}, s{sT}")
    a(f"v_mov_b32 v{T3}, s{sT}")
    stamp("ln")
    vm_ln = list(a.vm)
    a(f"s_cmp_eq_u32 s{sW}, 0")
    a("s_cbranch_scc0 L_role_h1")
    nbar = kvseq.count("bar")
    for i in range(20):
        a.wait_vm(f"t{i}")
        if i == 19: stamp("tl")
        lo, hi = (vXa, vXah) if i < 16 else (vXb, vXbh)
        for k in range(4):
            a(f"v_dot2c_f32_bf16_dpp v{vAcc+2*k}, v{lo}, v{vTile+4*i+k} row_newbcast:{i%16} {DPP}")
            a(f"v_dot2c_f32_bf16_dpp v{vAcc+2*k+1}, v{hi}, v{vTile+4*i+k} row_newbcast:{i%16} {DPP}")
    a("s_nop 2")
    red32(vAcc+0, vAcc+4); red32(vAcc+2, vAcc+6); red32(vAcc+1, vAcc+5); red32(vAcc+3, vAcc+7)
    a("s_nop 0")
    red16(vAcc+0, vAcc+2, d=T0); red16(vAcc+1, vAcc+3, d=T2)
    if int(opts.get("qdelay", "0")): a(f"s_sleep {opts['qdelay']}")
    a(f"buffer_store_dwordx4 v[{T0}:{T3}], v{aPub}, {srd(S_WS)}, s{sPub} offen sc1")
    stamp("pq1")
    for _ in range(nbar): a("s_barrier")
    a(f"""
    v_lshlrev_b32 v{aL8}, 3, v{vL}
    v_lshlrev_b32 v{aLq}, 2, v{vL}
    v_lshrrev_b32 v{T2}, 3, v{vL}
    v_and_b32 v{T3}, 7, v{vL}
    v_lshlrev_b32 v{aS}, 12, v{T2}
    v_lshl_add_u32 v{aS}, v{T3}, 4, v{aS}
    s_lshl_b32 s{t0}, s{sG}, 13
    s_add_u32 s{sQg}, s{t0}, {WS_Q}
    s_add_u32 s{sPub}, s{sQg}, 4096
    s_lshl_b32 s{t1}, s{sJ}, 10
    s_add_u32 s{t1}, s{t1}, s{t0}
    s_add_u32 s{sOp}, s{t1}, {WS_O}
    s_add_u32 s{sGC}, s{sG}, {SHIFT}
    s_and_b32 s{sGC}, s{sGC}, 31
    s_mul_i32 s{t1}, s{sJ}, {5*4096}
    s_lshl_b32 s{t0}, s{sGC}, 7
    s_add_u32 s{sSp}, s{t1}, s{t0}
    s_add_u32 s{sSp}, s{sSp}, {WS_S}
    s_barrier                                 ; B0
    """)
    stamp("b0")
    def p1_loads():
        for p in range(8):
            so = sQg if p < 4 else sPub
            a(f"buffer_load_dwordx4 {q4(vP1+4*p)}, v{aKV}, {srd(S_WS)}, s{so} offen offset:{1024*(p%4)} sc1")
    p1_loads()
    a("s_barrier")
    a("s_barrier")
    ptags = [vP1+4*p+k for p in range(8) for k in (1, 3)]
    def qsum():
        for off in (0, 2):
            d = vS0 + (0 if off == 0 else 4)
            a(f"v_add_f32 v{d}, v{vP1+off}, v{vP1+4+off}")
            a(f"v_add_f32 v{d+1}, v{vP1+8+off}, v{vP1+12+off}")
            a(f"v_add_f32 v{d+2}, v{vP1+16+off}, v{vP1+20+off}")
            a(f"v_add_f32 v{d+3}, v{vP1+24+off}, v{vP1+28+off}")
        for d in (vS0, vS0+4):
            a(f"v_add_f32 v{d}, v{d}, v{d+1}")
            a(f"v_add_f32 v{d+2}, v{d+2}, v{d+3}")
        for d in (vS0, vS0+4):
            a(f"v_add_f32 v{d}, v{d}, v{d+2}")
        a(f"v_cvt_pk_bf16_f32 v{T2}, v{vS0}, v{vS0+4}")
    a("s_waitcnt vmcnt(0)")
    stamp("p1ret")
    if opts.get("qspec", "0") == "1":
        qsum()
        a(f"ds_write_b32 v{aLq}, v{T2} offset:{L_Q}")
        check_mm(ptags, T0, T1)
        a("s_cbranch_vccz L_qok2")
    else:
        check_mm(ptags, T0, T1)
        qsum()
        a("s_cbranch_vccz L_qok")
    a.label("L_qretry")
    a(f"s_add_u32 s{sSpin}, s{sSpin}, 256")
    a(f"s_cmp_gt_u32 s{sSpin}, {1<<22}")
    a("s_cbranch_scc1 L_qok")
    p1_loads()
    a("s_waitcnt vmcnt(0)")
    check_mm(ptags, T0, T1)
    qsum()
    a("s_cbranch_vccnz L_qretry")
    a.label("L_qok")
    a(f"ds_write_b32 v{aLq}, v{T2} offset:{L_Q}")
    a.label("L_qok2")
    a(f"ds_write_b32 v{aZero}, v{vOne} offset:{F_Q}")
    def wait_sum_pub(flag, target, nparts, lbase, stride, soff, voff, lab, light=None):
        a(f"v_mov_b32 v{T1}, s{sT}")
        a(f"v_mov_b32 v{T3}, s{sT}")
        if light: spin(light[0], light[1], sleep=int(opts.get("lsl", "1")))
        a.label(lab)
        a(f"ds_read_b32 v{T4}, v{aZero} offset:{flag}")
        for k in range(nparts):
            a(f"ds_read_b64 {q2(vS0+2*k)}, v{aL8} offset:{lbase+stride*k}")
        a(f"s_waitcnt lgkmcnt({nparts})")
        a(f"v_readfirstlane_b32 s{t0}, v{T4}")
        a("s_nop 0")
        a(f"s_cmp_ge_u32 s{t0}, {target}")
        a(f"s_cbranch_scc1 {lab}_ok")
        a("s_waitcnt lgkmcnt(0)")
        a(f"s_branch {lab}")
        a.label(lab + "_ok")
        step = 1; first = True
        while step < nparts:
            for k in range(0, nparts, 2*step):
                if first: a(f"s_waitcnt lgkmcnt({nparts - (k+2)})")
                last = (2*step >= nparts)
                d0, d1 = (T0, T2) if last else (vS0+2*k, vS0+2*k+1)
                a(f"v_add_f32 v{d0}, v{vS0+2*k}, v{vS0+2*(k+step)}")
                a(f"v_add_f32 v{d1}, v{vS0+2*k+1}, v{vS0+2*(k+step)+1}")
            first = False; step *= 2
        a(f"buffer_store_dwordx4 v[{T0}:{T3}], v{voff}, {srd(S_WS)}, s{soff} offen sc1")
    wait_sum_pub(F_O, 8, 8, L_OP, 512, sOp, aKV, "L_wo8", light=(F_M, 8))
    signal(F_PO)
    stamp("pubo")
    a("s_mov_b32 exec_hi, 0xff")
    wait_sum_pub(F_S, 2, 4, L_SP, 320, sSp, aS, "L_ws2", light=(F_S, 1))
    a("s_mov_b64 exec, -1")
    signal(F_PS)
    stamp("pubs")
    a("s_branch L_fin")
    a.label("L_role_h1")
    a.vm = list(vm_ln)
    for i in range(20):
        a.wait_vm(f"t{i}")
        lo, hi = (vXa, vXah) if i < 16 else (vXb, vXbh)
        for k in range(2):
            a(f"v_dot2c_f32_bf16_dpp v{vAcc+2*k}, v{lo}, v{vTile+2*i+k} row_newbcast:{i%16} {DPP}")
            a(f"v_dot2c_f32_bf16_dpp v{vAcc+2*k+1}, v{hi}, v{vTile+2*i+k} row_newbcast:{i%16} {DPP}")
    a("s_nop 2")
    red32(vAcc+0, vAcc+2); red32(vAcc+1, vAcc+3)
    a("s_nop 1")
    red16(vAcc+0, vAcc+1, d=T0)
    a(f"s_cmp_eq_u32 s{sMlp}, 0")
    a("s_cbranch_scc1 L_h_nopub")
    a(f"buffer_store_dwordx2 v[{T0}:{T1}], v{aPub}, {srd(S_WS)}, s{sPub} offen sc1")
    a.label("L_h_nopub")
    a("s_setprio 0")
    for _ in range(nbar): a("s_barrier")
    a(f"""
    v_lshrrev_b32 v{T0}, 4, v{vL}
    v_and_b32 v{T1}, 15, v{vL}
    v_lshrrev_b32 v{T2}, 3, v{vL}
    v_and_b32 v{T3}, 7, v{vL}
    v_mul_u32_u24 v{aWOm}, 1280, v{T2}
    v_lshl_add_u32 v{aWOm}, v{T3}, 4, v{aWOm}
    v_lshrrev_b32 v{T4}, 1, v{vL}
    v_mul_u32_u24 v{aWOe}, 1280, v{T4}
    v_and_b32 v{aBe}, 1, v{vL}
    v_lshl_add_u32 v{aWOe}, v{aBe}, 4, v{aWOe}
    v_add_u32 v{aWOe}, 128, v{aWOe}
    v_lshrrev_b32 v{aG}, 5, v{vL}
    v_lshlrev_b32 v{aG}, 9, v{aG}
    v_and_b32 v{aB1}, 31, v{vL}
    v_lshl_add_u32 v{aG}, v{aB1}, 4, v{aG}
    v_lshlrev_b32 v{aB1}, 2, v{aB1}
    v_lshrrev_b32 v{aBm}, 1, v{T2}
    v_lshlrev_b32 v{aBm}, 2, v{aBm}
    v_and_b32 v{aSt1}, 1, v{T2}
    v_lshlrev_b32 v{aSt1}, 4, v{aSt1}                 ; 16*(r8&1) shift
    v_lshrrev_b32 v{aLp}, 1, v{T4}
    v_lshlrev_b32 v{aLp}, 2, v{aLp}
    v_and_b32 v{aLqr}, 1, v{T4}
    v_lshlrev_b32 v{aLqr}, 4, v{aLqr}                 ; 16*(d&1)
    s_mul_i32 s{t1}, s{sJ}, {5*4096*0+160}
    s_lshl_b32 s{t0}, s{sG}, 6
    s_mul_i32 s{sB0}, s{t0}, 1280
    s_add_u32 s{sB0}, s{sB0}, s{t1}
    s_add_u32 s{sB0}, s{sB0}, s{sOobM}
    s_lshl_b32 s{t0}, s{sG}, 12
    s_add_u32 s{sHg}, s{t0}, {WS_H}
    s_lshl_b32 s{t0}, s{sG}, 13
    s_add_u32 s{t0}, s{t0}, {WS_Q}
    s_cmp_eq_u32 s{sMlp}, 0
    s_cselect_b32 s{sHg}, s{t0}, s{sHg}
    s_lshl_b32 s{t0}, s{sG}, 10
    s_add_u32 s{sStp}, s{t0}, {WS_ST}
    s_lshl_b32 s{t1}, s{sJ}, 7
    s_add_u32 s{sStp}, s{sStp}, s{t1}
    s_mul_i32 s{t1}, s{sJ}, {5*4096}
    s_lshl_b32 s{t0}, s{sG}, 7
    s_add_u32 s{sSp}, s{t1}, s{t0}
    s_add_u32 s{sSp}, s{sSp}, {WS_Y}
    s_barrier                                 ; B0
    s_barrier                                 ; B0b
    s_barrier                                 ; B0c
    """)
    a.vm = []
    a(f"s_lshl_b32 s{t0}, s{sG}, 7")
    a.vmem(f"buffer_load_dword v{vB1}, v{aB1}, {srd(S_B1)}, s{t0} offen", "b1")
    def ph_loads(track):
        f = a.vmem if track else (lambda s_, t_: a(s_))
        for i in range(4):
            f(f"buffer_load_dwordx4 {q4(vGa+4*i)}, v{aG}, {srd(S_WS)}, s{sHg} offen offset:{1024*i} sc1", "ph")
    PHL = opts.get("phlate", "0") == "1"
    if not PHL: ph_loads(True)
    def tile_loads(srdb, sbase, nmain, nextra, tag):
        for i in range(nmain):
            a.vmem(f"buffer_load_dwordx4 {q4(vW+4*i)}, v{aWOm}, {srd(srdb)}, s{sbase} offen{NT}", tag)
            a(f"s_add_u32 s{sbase}, s{sbase}, 10240")
        a(f"s_sub_u32 s{sbase}, s{sbase}, {10240*nmain}")
        for i in range(nextra):
            a.vmem(f"buffer_load_dwordx4 {q4(vW+4*(nmain+i))}, v{aWOe}, {srd(srdb)}, s{sbase} offen{NT}", tag)
            if i + 1 < nextra: a(f"s_add_u32 s{sbase}, s{sbase}, {32*1280}")
    W2L = opts.get("w2late", "1") == "1"
    if not W2L: tile_loads(S_W2, sB0, 8, 2, "w2")
    spin(F_P, 8, sleep=1)
    a("s_setprio 3")
    a(f"""
    v_lshlrev_b32 v{aB1}, 3, v{vL}
    ds_read_b64 {q2(vAcc)}, v{aB1} offset:{L_P}
    ds_read_b32 v{T0}, v{aZero} offset:{F_MX}
    v_mov_b32 v{T1}, s{sT}
    v_mov_b32 v{T3}, s{sT}
    s_waitcnt lgkmcnt(0)
    v_add_f32 v{T2}, v{vAcc}, v{vAcc+1}
    """)
    wave_red("add", T2, T4)
    a(f"""
    s_mov_b64 exec, 0xff
    buffer_store_dwordx4 v[{T0}:{T3}], v{aKV}, {srd(S_WS)}, s{sStp} offen sc1
    s_mov_b64 exec, -1
    """)
    signal(F_PO)
    stamp("pubst")
    a("s_setprio 0")
    a(f"s_cmp_eq_u32 s{sMlp}, 0")
    a("s_cbranch_scc1 L_fin")
    if PHL: ph_loads(True)
    if W2L: tile_loads(S_W2, sB0, 8, 2, "w2")
    a.wait_vm("ph")
    htags = [vGa+4*i+k for i in range(4) for k in (1, 3)]
    check_mm(htags, T0, T1)
    a("s_cbranch_vccz L_hok")
    a.label("L_hretry")
    a(f"s_add_u32 s{sSpin}, s{sSpin}, 16")
    a(f"s_and_b32 s{t0}, s{sSpin}, 0xfff0")
    a(f"s_cmp_gt_u32 s{t0}, 0xff00")
    a("s_cbranch_scc1 L_hok")
    ph_loads(False)
    a("s_waitcnt vmcnt(0)")
    check_mm(htags, T0, T1)
    a("s_cbranch_vccnz L_hretry")
    a.label("L_hok")
    a(f"""
    v_add_f32 v{vGa}, v{vGa}, v{vGa+4}
    v_add_f32 v{vGa+2}, v{vGa+2}, v{vGa+6}
    v_add_f32 v{vGa+8}, v{vGa+8}, v{vGa+12}
    v_add_f32 v{vGa+10}, v{vGa+10}, v{vGa+14}
    v_add_f32 v{vGa}, v{vGa}, v{vGa+8}
    v_add_f32 v{vGa+2}, v{vGa+2}, v{vGa+10}
    v_mov_b32 v{T0}, v{vGa}
    v_mov_b32 v{T1}, v{vGa+2}
    s_nop 1
    v_permlane32_swap_b32 v{vGa}, v{T0}
    v_permlane32_swap_b32 v{vGa+2}, v{T1}
    v_add_f32 v{vGa}, v{vGa}, v{T0}
    v_add_f32 v{vGa+2}, v{vGa+2}, v{T1}
    v_cvt_pk_bf16_f32 v{T0}, v{vGa}, v{vGa+2}
    v_lshlrev_b32 v{vGa}, 16, v{T0}
    v_and_b32 v{vGa+2}, 0xffff0000, v{T0}
    v_lshlrev_b32 v{T0}, 16, v{vB1}
    v_and_b32 v{T1}, 0xffff0000, v{vB1}
    v_add_f32 v{vGa}, v{vGa}, v{T0}
    v_add_f32 v{vGa+2}, v{vGa+2}, v{T1}
    v_cvt_pk_bf16_f32 v{T0}, v{vGa}, v{vGa+2}
    v_lshlrev_b32 v{vGa}, 16, v{T0}
    v_and_b32 v{vGa+2}, 0xffff0000, v{T0}
    s_mov_b32 s{t0}, 0x3d372713
    s_mov_b32 s{t1}, 0xc0135761
    """)
    for r, T in ((vGa, T0), (vGa+2, T1)):
        a(f"""
        v_mul_f32 v{T}, v{r}, v{r}
        v_mul_f32 v{T}, s{t0}, v{T}
        v_fma_f32 v{T}, v{T}, v{r}, v{r}
        v_mul_f32 v{T}, s{t1}, v{T}
        v_exp_f32 v{T}, v{T}
        s_nop 0
        v_add_f32 v{T}, 1.0, v{T}
        v_rcp_f32 v{T}, v{T}
        s_nop 0
        v_mul_f32 v{r}, v{r}, v{T}
        """)
    a(f"v_cvt_pk_bf16_f32 v{vHs}, v{vGa}, v{vGa+2}")
    for i in range(8): a(f"ds_bpermute_b32 v{vXq+i}, v{aBm}, v{vHs} offset:{16*i}")
    for i in range(2): a(f"ds_bpermute_b32 v{vXq+8+i}, v{aLp}, v{vHs} offset:{64*i}")
    zero(vAcc); zero(vAcc2)
    a("s_waitcnt lgkmcnt(0)")
    for i in range(10):
        sh = aSt1 if i < 8 else aLqr
        a(f"v_lshrrev_b32 v{vXq+i}, v{sh}, v{vXq+i}")
        a(f"v_lshlrev_b32 v{vXqh+i}, 16, v{vXq+i}")
        a(f"v_and_b32 v{vXq+i}, 0xffff, v{vXq+i}")
    a.wait_vm("w2")
    for i in range(10): mac8(vAcc if i < 8 else vAcc2, vW+4*i, vXq+i, vXqh+i)
    red_tile(vAcc, vAcc2)
    a(f"""
    v_lshrrev_b32 v{T0}, 4, v{vL}
    v_and_b32 v{T3}, 7, v{vL}
    v_lshl_add_u32 v{T1}, v{T3}, 2, v{T0}
    v_lshrrev_b32 v{T2}, 3, v{T1}
    v_and_b32 v{T1}, 7, v{T1}
    v_lshlrev_b32 v{T1}, 4, v{T1}
    v_lshl_add_u32 v{aS}, v{T2}, 12, v{T1}
    v_and_b32 v{T3}, 1, v{vL}
    v_lshl_add_u32 v{T1}, v{T3}, 2, v{T0}             ; 4b0 + rho
    v_lshlrev_b32 v{aL8}, 4, v{T1}
    v_add_u32 v{aL8}, {4*4096}, v{aL8}
    v_mov_b32 v{vAcc+3}, s{sT}
    v_mov_b32 v{vAcc+2}, v{vAcc+1}
    v_mov_b32 v{vAcc+1}, s{sT}
    v_mov_b32 v{vAcc2+3}, s{sT}
    v_mov_b32 v{vAcc2+2}, v{vAcc2+1}
    v_mov_b32 v{vAcc2+1}, s{sT}
    """)
    a(f"""
    s_mov_b32 exec_lo, 0x00ff00ff
    s_mov_b32 exec_hi, 0x00ff00ff
    buffer_store_dwordx4 {q4(vAcc)}, v{aS}, {srd(S_WS)}, s{sSp} offen sc1
    s_mov_b32 exec_lo, 0x00030003
    s_mov_b32 exec_hi, 0x00030003
    buffer_store_dwordx4 {q4(vAcc2)}, v{aL8}, {srd(S_WS)}, s{sSp} offen sc1
    s_mov_b64 exec, -1
    s_branch L_fin
    """)
    a.label("L_notfront")
    a(f"v_mov_b32 v{vOne}, 1")
    a(f"s_mov_b32 s{sSpin}, 0")
    a(f"s_mov_b32 s{sLog2e}, 0x3fb8aa3b")
    a(f"s_cmp_ge_u32 s{sW}, 4")
    a("s_cbranch_scc1 L_kv")
    a.label("L_t")
    a.vm = []
    kload(S_WO, S_B2, S_OUT)
    kconst(S_X, S_WS, S_WO, S_B2, S_OUT)
    a(f"""
    v_lshrrev_b32 v{T2}, 3, v{vL}
    v_and_b32 v{T3}, 7, v{vL}
    s_sub_u32 s{sR}, s{sW}, 2
    v_mov_b32 v{T4}, 0
    v_lshlrev_b32 v{aLq}, 2, v{vL}
    ds_write_b32 v{aLq}, v{T4} offset:{L_F}
    v_mov_b32 v{T4}, 0xff800000
    ds_write_b32 v{aZero}, v{T4} offset:{F_MX}
    v_mul_u32_u24 v{aWOm}, 1280, v{T2}
    v_lshl_add_u32 v{aWOm}, v{T3}, 4, v{aWOm}
    v_lshrrev_b32 v{T4}, 1, v{vL}
    v_mul_u32_u24 v{aWOe}, 1280, v{T4}
    v_and_b32 v{aBe}, 1, v{vL}
    v_lshl_add_u32 v{aWOe}, v{aBe}, 4, v{aWOe}
    v_add_u32 v{aWOe}, 128, v{aWOe}
    v_lshrrev_b32 v{aG}, 5, v{vL}
    v_lshlrev_b32 v{aG}, 10, v{aG}
    v_and_b32 v{aB1}, 31, v{vL}
    v_lshl_add_u32 v{aG}, v{aB1}, 4, v{aG}
    v_lshlrev_b32 v{aSt1}, 7, v{T3}
    v_lshrrev_b32 v{aBm}, 1, v{T2}
    v_lshlrev_b32 v{aBm}, 2, v{aBm}                   ; (r8>>1)*4
    v_and_b32 v{aPub}, 1, v{T2}
    v_lshlrev_b32 v{aPub}, 4, v{aPub}                 ; 16*(r8&1)
    v_lshrrev_b32 v{aLp}, 1, v{T4}
    v_lshlrev_b32 v{aLp}, 2, v{aLp}                   ; (l>>2)*4
    v_and_b32 v{aLqr}, 1, v{T4}
    v_lshlrev_b32 v{aLqr}, 4, v{aLqr}                 ; 16*((l>>1)&1)
    s_mul_i32 s{t0}, s{sR}, 640
    v_and_b32 v{aLSm}, 1, v{T0}
    v_lshlrev_b32 v{aLSm}, 5, v{aLSm}
    v_add_lshl_u32 v{aLSm}, v{aLSm}, v{T3}, 2
    v_lshrrev_b32 v{aLSe}, 1, v{T0}
    v_mul_u32_u24 v{aLSe}, 320, v{aLSe}
    v_add3_u32 v{aLSm}, v{aLSm}, v{aLSe}, s{t0}
    v_add_u32 v{aLSm}, {L_SP}, v{aLSm}
    v_lshlrev_b32 v{aLSe}, 5, v{aBe}
    v_lshl_add_u32 v{aLSe}, v{T0}, 3, v{aLSe}
    v_add_u32 v{aLSe}, s{t0}, v{aLSe}
    v_add_u32 v{aLSe}, 256, v{aLSe}
    v_mov_b32 v{vAcc}, 0
    v_mov_b32 v{vAcc+1}, 0
    ds_write_b64 v{aLSe}, {q2(vAcc)} offset:{L_SP+320}
    v_and_b32 v{vMsk}, 1, v{T3}
    v_mov_b32 v{vMsk+1}, 0xffff
    v_mov_b32 v{vMsk+2}, 0xffff0000
    v_cmp_eq_u32 vcc, 0, v{vMsk}
    v_lshrrev_b32 v{vAcc+2}, 1, v{T3}
    s_nop 0
    v_cndmask_b32 v{vAcc+3}, v{vMsk+2}, v{vMsk+1}, vcc
    v_cmp_eq_u32 vcc, 0, v{vAcc+2}
    v_cmp_eq_u32 s[{sM}:{sM+1}], 1, v{vAcc+2}
    s_nop 0
    v_cndmask_b32 v{vMsk}, 0, v{vAcc+3}, vcc
    v_cndmask_b32 v{vMsk+1}, 0, v{vAcc+3}, s[{sM}:{sM+1}]
    v_cmp_eq_u32 vcc, 2, v{vAcc+2}
    v_cmp_eq_u32 s[{sM}:{sM+1}], 3, v{vAcc+2}
    s_nop 0
    v_cndmask_b32 v{vMsk+2}, 0, v{vAcc+3}, vcc
    v_cndmask_b32 v{vMsk+3}, 0, v{vAcc+3}, s[{sM}:{sM+1}]
    v_and_b32 v{aX4}, 28, v{aLq}
    v_mov_b32 v{aS}, 0x0c0c0100
    v_mov_b32 v{aL8}, 0x0c0c0302
    v_cmp_eq_u32 vcc, 0, v{aPub}
    v_cmp_eq_u32 s[{sM}:{sM+1}], 0, v{aLqr}
    s_nop 1
    v_cndmask_b32 v{aLqr}, v{aL8}, v{aS}, s[{sM}:{sM+1}]
    v_mov_b32 v{aS}, 0x01000c0c
    v_mov_b32 v{aL8}, 0x03020c0c
    v_cndmask_b32 v{aXa}, v{aL8}, v{aS}, s[{sM}:{sM+1}]
    v_mov_b32 v{aS}, 0x01000100
    v_mov_b32 v{aL8}, 0x03020302
    v_cndmask_b32 v{aT}, v{aL8}, v{aS}, vcc
    s_add_u32 s{sGC}, s{sG}, {SHIFT}
    s_and_b32 s{sGC}, s{sGC}, 31
    s_lshl_b32 s{t0}, s{sGC}, 7
    s_lshl_b32 s{t1}, s{sR}, 6
    s_add_u32 s{t0}, s{t0}, s{t1}
    s_mul_i32 s{sB0}, s{t0}, 1280
    s_mul_i32 s{t2}, s{sJ}, 160
    s_add_u32 s{sB0}, s{sB0}, s{t2}
    s_lshl_b32 s{t1}, s{sR}, 9
    s_lshl_b32 s{t3}, s{sGC}, 13
    s_add_u32 s{t1}, s{t1}, s{t3}
    s_add_u32 s{sOg}, s{t1}, {WS_O}
    s_add_u32 s{sOp}, s{sOg}, 4096
    s_lshl_b32 s{t0}, s{sGC}, 10
    s_add_u32 s{sSt}, s{t0}, {WS_ST}
    s_sub_u32 s{t0}, s{sG}, 27
    s_lshl_b32 s{t0}, s{t0}, 3
    s_add_u32 s{t0}, s{t0}, s{sJ}
    s_lshl_b32 s{sC}, s{t0}, 5
    s_lshl_b32 s{t0}, s{t0}, 12
    s_add_u32 s{sFY}, s{t0}, {WS_Y}
    s_add_u32 s{sFS}, s{t0}, {WS_S}
    s_waitcnt lgkmcnt(0)
    s_barrier                                    ; Bs
    """)
    a(f"buffer_load_dword v{vE}, v{aZero}, {srd(S_WS)}, 0 offen sc1")
    for _ in range(nbar): a("s_barrier")
    a("s_waitcnt vmcnt(0)")
    a(f"v_readfirstlane_b32 s{sT}, v{vE}")
    a("s_nop 0")
    a(f"s_add_u32 s{sT}, s{sT}, {TAGC}")
    a("s_barrier"); a("s_barrier"); a("s_barrier")
    TL = opts.get("tlate", "0")
    if TL != "0":
        if TL == "1":
            a(f"s_cmp_eq_u32 s{sR}, 0")
            a("s_cbranch_scc1 L_tl_go")
        tg = opts.get("tgate", "PO")
        spin({"PO": F_PO, "Q": F_Q, "M": F_M, "P": F_P, "O": F_O}[tg], {"PO": 2, "Q": 1, "M": 8, "P": 8, "O": 8}[tg], sleep=1)
        a.label("L_tl_go")
    tile_loads(S_WO, sB0, 8, 2, "wo")
    a.vmem(f"buffer_load_dword v{vXf}, v{aX4}, {srd(S_X)}, s{sC} offen", "xf")
    a.vmem(f"buffer_load_dword v{vB2}, v{aX4}, {srd(S_B2)}, s{sC} offen", "xf")
    zero(vAcc); zero(vAcc2)
    a("s_waitcnt vmcnt(0)")
    stamp("awo")
    spin(F_PO, 2, sleep=1)
    if int(opts.get("presleep", "0")): a(f"s_sleep {opts['presleep']}")
    otags = [vGa+4*i+k for i in range(4) for k in (1, 3)] + [vGa+17, vGa+19]
    a.label("L_oretry")
    for i in range(4):
        a(f"buffer_load_dwordx4 {q4(vGa+4*i)}, v{aG}, {srd(S_WS)}, s{sOg} offen offset:{2048*(i%2)} sc1" if i < 2 else f"buffer_load_dwordx4 {q4(vGa+4*i)}, v{aG}, {srd(S_WS)}, s{sOp} offen offset:{2048*(i%2)} sc1")
    a(f"buffer_load_dwordx4 {q4(vGa+16)}, v{aSt1}, {srd(S_WS)}, s{sSt} offen sc1")
    a(f"s_add_u32 s{sSpin}, s{sSpin}, 65536")
    a("s_waitcnt vmcnt(0)")
    check_mm(otags, T0, T1)
    a(f"s_cmp_gt_u32 s{sSpin}, 0x7f000000")
    a("s_cbranch_scc1 L_ook")
    a("s_cbranch_vccnz L_oretry")
    a.label("L_ook")
    a.vm = []
    stamp("pollo")
    if int(opts.get("tdelay", "0")): a(f"s_sleep {opts['tdelay']}")
    a("s_setprio 3")
    CM, CL = vGa+16, vGa+18
    a(f"v_mov_b32 v{T0}, v{CM}")
    for n in (4, 2, 1):
        a("s_nop 1")
        a(f"v_max_f32_dpp v{T0}, v{T0}, v{T0} row_ror:{n} {DPP}")
    a(f"""
    v_sub_f32 v{T1}, v{CM}, v{T0}
    v_mul_f32 v{T1}, s{sLog2e}, v{T1}
    v_exp_f32 v{T1}, v{T1}
    s_nop 0
    v_mul_f32 v{T2}, v{T1}, v{CL}
    """)
    for i in range(4):
        a(f"v_mov_b32_dpp v{vXq+i}, v{T1} row_newbcast:{2*i} row_mask:0x3 bank_mask:0xf")
        a(f"v_mov_b32_dpp v{vXq+i}, v{T1} row_newbcast:{2*i+1} row_mask:0xc bank_mask:0xf")
        if i < 3:
            a(f"v_add_f32_dpp v{T2}, v{T2}, v{T2} row_ror:{(4,2,1)[i]} {DPP}")
    a(f"""
    v_mul_f32 v{T3}, v{vGa}, v{vXq}
    v_mul_f32 v{T4}, v{vGa+2}, v{vXq}
    v_fmac_f32 v{T3}, v{vGa+4}, v{vXq+1}
    v_fmac_f32 v{T4}, v{vGa+6}, v{vXq+1}
    v_fmac_f32 v{T3}, v{vGa+8}, v{vXq+2}
    v_fmac_f32 v{T4}, v{vGa+10}, v{vXq+2}
    v_fmac_f32 v{T3}, v{vGa+12}, v{vXq+3}
    v_fmac_f32 v{T4}, v{vGa+14}, v{vXq+3}
    v_rcp_f32 v{T2}, v{T2}
    v_mov_b32 v{T0}, v{T3}
    v_mov_b32 v{T1}, v{T4}
    s_nop 1
    v_permlane32_swap_b32 v{T3}, v{T0}
    v_permlane32_swap_b32 v{T4}, v{T1}
    v_add_f32 v{T3}, v{T3}, v{T0}
    v_add_f32 v{T4}, v{T4}, v{T1}
    v_mul_f32 v{T3}, v{T3}, v{T2}
    v_mul_f32 v{T4}, v{T4}, v{T2}
    v_cvt_pk_bf16_f32 v{vHs}, v{T3}, v{T4}
    """)
    for i in range(8): a(f"ds_bpermute_b32 v{vXq+i}, v{aBm}, v{vHs} offset:{16*i}")
    for i in range(2): a(f"ds_bpermute_b32 v{vXq+8+i}, v{aLp}, v{vHs} offset:{64*i}")
    for i in range(8):
        B = vBa if i % 2 == 0 else vBb
        a(f"s_waitcnt lgkmcnt({9-i})")
        a(f"v_perm_b32 v{vXq+i}, v{vXq+i}, v{vXq+i}, v{aT}")
        for k in range(4): a(f"v_and_b32 v{B+k}, v{vXq+i}, v{vMsk+k}")
        a("s_nop 1")
        a(f"v_mfma_f32_16x16x32_bf16 {q4(vAcc)}, {q4(vW+4*i)}, {q4(B)}, {q4(vAcc)}")
    for i in range(8, 10):
        a(f"s_waitcnt lgkmcnt({9-i})")
        a(f"v_perm_b32 v{vXqh+i}, v{vXq+i}, v{vXq+i}, v{aXa}")
        a(f"v_perm_b32 v{vXq+i}, v{vXq+i}, v{vXq+i}, v{aLqr}")
        mac8(vAcc2, vW+4*i, vXq+i, vXqh+i)
    red8regs(vAcc2)
    a(f"""
    s_mov_b32 exec_lo, 0x00ff00ff
    s_mov_b32 exec_hi, 0xff00ff00
    ds_write2_b32 v{aLSm}, v{vAcc}, v{vAcc+1} offset0:{(L_SP)//4*0} offset1:8
    ds_write2_b32 v{aLSm}, v{vAcc+2}, v{vAcc+3} offset0:16 offset1:24
    s_mov_b64 exec, -1
    """)
    a("s_nop 0")
    for r in (vAcc2, vAcc2+1):
        a(f"v_add_f32_dpp v{r}, v{r}, v{r} row_ror:8 {DPP}")
    a("s_nop 0")
    for r in (vAcc2, vAcc2+1):
        a(f"v_add_f32_dpp v{r}, v{r}, v{r} row_ror:4 {DPP}")
    a("s_nop 0")
    for r in (vAcc2, vAcc2+1):
        a(f"v_add_f32_dpp v{r}, v{r}, v{r} quad_perm:[2,3,0,1] {DPP}")
    a(f"ds_write_b64 v{aLSe}, {q2(vAcc2)} offset:{L_SP}")
    signal(F_S)
    stamp("tdone")
    a(f"""
    s_cmp_lt_u32 s{sG}, 27
    s_cbranch_scc1 L_fin
    s_cmp_eq_u32 s{sR}, 1
    s_cbranch_scc0 L_fin
    v_mov_b32 v{vFF+28}, 0
    v_mov_b32 v{vFF+29}, s{sT}
    v_mov_b32 v{vFF+30}, 0
    v_mov_b32 v{vFF+31}, s{sT}
    """)
    vZ = vGa
    spin(F_PS, 1, sleep=1)
    a.label("L_polly")
    for i in range(3):
        a(f"buffer_load_dwordx4 {q4(vFF+16+4*i)}, v{aKV}, {srd(S_WS)}, s{sFY} offen offset:{1024*i} sc1")
    a("s_mov_b32 exec_lo, 0xffffff")
    a("s_mov_b32 exec_hi, 0")
    a(f"buffer_load_dwordx4 {q4(vFF+28)}, v{aKV}, {srd(S_WS)}, s{sFY} offen offset:3072 sc1")
    a("s_mov_b64 exec, -1")
    a(f"s_add_u32 s{sSpin}, s{sSpin}, 65536")
    a("s_waitcnt vmcnt(0)")
    check_mm([vFF+16+4*i+k for i in range(4) for k in (1, 3)], T0, T1)
    a(f"s_cmp_gt_u32 s{sSpin}, 0x7f000000")
    a("s_cbranch_scc1 L_polly_done")
    a("s_cbranch_vccnz L_polly")
    a.label("L_polly_done")
    base = vFF + 16
    a(f"v_add_f32 v{vZ+2}, v{base}, v{base+4}")
    a(f"v_add_f32 v{vZ+3}, v{base+2}, v{base+6}")
    a(f"v_add_f32 v{T2}, v{base+8}, v{base+12}")
    a(f"v_add_f32 v{T3}, v{base+10}, v{base+14}")
    a(f"v_add_f32 v{vZ+2}, v{vZ+2}, v{T2}")
    a(f"v_add_f32 v{vZ+3}, v{vZ+3}, v{T3}")
    a("s_nop 1")
    red32(vZ+2, vZ+3)
    a(f"v_mov_b32 v{T3}, v{vZ+2}"); a("s_nop 1")
    red16(vZ+2, T3)
    a("s_nop 1")
    a(f"v_add_f32_dpp v{vZ+2}, v{vZ+2}, v{vZ+2} row_ror:8 {DPP}")
    a(f"""
    v_lshrrev_b32 v{T4}, 5, v{vL}
    v_lshlrev_b32 v{T4}, 4, v{T4}
    v_lshrrev_b32 v{vB2}, v{T4}, v{vB2}
    v_lshlrev_b32 v{vB2}, 16, v{vB2}
    v_lshrrev_b32 v{vXf}, v{T4}, v{vXf}
    v_lshlrev_b32 v{vXf}, 16, v{vXf}
    """)
    rnd(vZ+2)
    a(f"v_add_f32 v{vZ+2}, v{vZ+2}, v{vB2}")
    rnd(vZ+2)
    a(f"""
    v_mul_f32 v{T2}, s{sLog2e}, v{vZ+2}
    v_sub_f32 v{T2}, 0, v{T2}
    v_exp_f32 v{T2}, v{T2}
    s_nop 0
    v_add_f32 v{T2}, 1.0, v{T2}
    v_rcp_f32 v{T2}, v{T2}
    s_nop 0
    v_mul_f32 v{vZ+2}, v{vZ+2}, v{T2}
    """)
    rnd(vZ+2)
    a(f"""
    v_lshrrev_b32 v{T4}, 5, v{vL}
    v_lshl_add_u32 v{aX4}, v{T4}, 1, v{aX4}
    """)
    a.label("L_pollf")
    for i in range(4):
        a(f"buffer_load_dwordx4 {q4(vFF+4*i)}, v{aKV}, {srd(S_WS)}, s{sFS} offen offset:{1024*i} sc1")
    a(f"s_add_u32 s{sSpin}, s{sSpin}, 65536")
    a("s_waitcnt vmcnt(0)")
    check_mm([vFF+4*i+k for i in range(4) for k in (1, 3)], T0, T1)
    base = vFF
    a(f"v_add_f32 v{vZ}, v{base}, v{base+4}")
    a(f"v_add_f32 v{vZ+1}, v{base+2}, v{base+6}")
    a(f"v_add_f32 v{T2}, v{base+8}, v{base+12}")
    a(f"v_add_f32 v{T3}, v{base+10}, v{base+14}")
    a(f"v_add_f32 v{vZ}, v{vZ}, v{T2}")
    a(f"v_add_f32 v{vZ+1}, v{vZ+1}, v{T3}")
    a(f"s_cmp_gt_u32 s{sSpin}, 0x7f000000")
    a("s_cbranch_scc1 L_pollf_done")
    a("s_cbranch_vccnz L_pollf")
    a.label("L_pollf_done")
    red32(vZ, vZ+1)
    a(f"v_mov_b32 v{T2}, v{vZ}"); a("s_nop 1")
    red16(vZ, T2)
    a("s_nop 1")
    a(f"v_add_f32_dpp v{vZ}, v{vZ}, v{vZ} row_ror:8 {DPP}")
    rnd(vZ)
    a(f"v_mul_f32 v{vZ}, v{vZ}, v{vZ+2}")
    rnd(vZ)
    a(f"""
    v_add_f32 v{vZ}, v{vZ}, v{vXf}
    v_cvt_pk_bf16_f32 v{vZ}, v{vZ}, v{vZ}
    s_mov_b32 exec_lo, 0xff
    s_mov_b32 exec_hi, 0xff
    buffer_store_short v{vZ}, v{aX4}, {srd(S_OUT)}, s{sC} offen
    s_cmp_eq_u32 s{sC}, 0
    s_cbranch_scc0 L_fin0
    v_mov_b32 v{T2}, s{sT}
    s_mov_b64 exec, 1
    buffer_store_dword v{T2}, v{aZero}, {srd(S_WS)}, 0 offen sc1
    """)
    a.label("L_fin0")
    a("s_mov_b64 exec, -1")
    a("s_branch L_fin")
    a.label("L_kv")
    a.vm = []
    kload(S_K, S_V)
    kconst(S_K, S_V, S_WS)
    a(f"""
    s_sub_u32 s{sR}, s{sW}, 4
    s_lshl_b32 s{sK}, s{sG}, 20
    s_lshl_b32 s{t2}, s{sJ}, 15
    s_add_u32 s{sK}, s{sK}, s{t2}
    s_lshl_b32 s{t2}, s{sR}, 12
    s_add_u32 s{sK}, s{sK}, s{t2}
    s_add_u32 s{sK}, s{sK}, {3072*256}
    v_and_b32 v{T3}, 7, v{vL}
    v_lshlrev_b32 v{aLq}, 5, v{T0}
    v_add_lshl_u32 v{aLq}, v{aLq}, v{T3}, 2          ; (32 rho + c3)*4
    s_lshl_b32 s{t0}, s{sR}, 9
    v_add_u32 v{aLq}, s{t0}, v{aLq}
    v_add_u32 v{aLq}, {L_OP}, v{aLq}
    v_and_b32 v{vMsk}, 1, v{T3}
    v_mov_b32 v{vMsk+1}, 0xffff
    v_mov_b32 v{vMsk+2}, 0xffff0000
    v_cmp_eq_u32 vcc, 0, v{vMsk}
    v_lshrrev_b32 v{T2}, 1, v{T3}
    s_nop 0
    v_cndmask_b32 v{T4}, v{vMsk+2}, v{vMsk+1}, vcc
    v_cmp_eq_u32 vcc, 0, v{T2}
    v_cmp_eq_u32 s[{sM}:{sM+1}], 1, v{T2}
    s_nop 1
    v_cndmask_b32 v{vMsk}, 0, v{T4}, vcc
    v_cndmask_b32 v{vMsk+1}, 0, v{T4}, s[{sM}:{sM+1}]
    v_cmp_eq_u32 vcc, 2, v{T2}
    v_cmp_eq_u32 s[{sM}:{sM+1}], 3, v{T2}
    s_nop 1
    v_cndmask_b32 v{vMsk+2}, 0, v{T4}, vcc
    v_cndmask_b32 v{vMsk+3}, 0, v{T4}, s[{sM}:{sM+1}]
    v_lshlrev_b32 v{aLqr}, 4, v{T1}
    v_lshrrev_b32 v{aLp}, 2, v{vL}
    v_lshlrev_b32 v{aLp}, 2, v{aLp}
    s_lshl_b32 s{t0}, s{sR}, 6
    v_add_u32 v{aLp}, s{t0}, v{aLp}               ; (kw*16 + (l>>2))*4
    s_mov_b32 s{sScale}, 0x3db504f3
    s_mov_b32 s{sM}, 0x00010001
    s_mov_b32 s{sM+1}, 0x00010001
    s_waitcnt lgkmcnt(0)
    s_barrier                                    ; Bs
    """)
    def ldkv(x):
        if x[0] == "k": a.vmem(f"buffer_load_dwordx4 {q4(vK+4*int(x[1]))}, v{aKV}, {srd(S_K)}, s{sK} offen offset:{1024*int(x[1])}{NT}", x)
        elif x[0] == "v": a.vmem(f"buffer_load_dwordx4 {q4(vV+4*int(x[1]))}, v{aKV}, {srd(S_V)}, s{sK} offen offset:{1024*int(x[1])}{NT}", x)
        elif x[0] == "W": a.wait_vm(x[1:])
        elif x == "bar": a("s_barrier")
    for x in kvseq: ldkv(x)
    for i in range(4): a(f"v_mov_b32 v{vSc+i}, 0")
    zero(vAcc)
    a("s_barrier")
    a("s_barrier")
    for x in kvpost: ldkv(x)
    a("s_barrier")
    a.wait_vm("k0", "k1", "k2", "k3")
    a.label("L_wq")
    a(f"ds_read_b32 v{T4}, v{aZero} offset:{F_Q}")
    a(f"ds_read_b128 {q4(vQ)}, v{aLqr} offset:{L_Q}")
    a("s_waitcnt lgkmcnt(0)")
    a(f"v_readfirstlane_b32 s{t0}, v{T4}")
    a("s_nop 0")
    a(f"s_cmp_eq_u32 s{t0}, 0")
    a("s_cbranch_scc0 L_wq_ok")
    if opts.get("wqsleep", "1") == "1": a("s_sleep 1")
    a("s_branch L_wq")
    a.label("L_wq_ok")
    stamp("pollq")
    a("s_setprio 2")
    for k in range(4):
        for i in range(4):
            a(f"v_dot2c_f32_bf16 v{vSc+i}, v{vK+4*i+k}, v{vQ+k}")
    a("s_nop 2")
    D = "row_mask:0xf"
    a(f"v_add_f32_dpp v{T0}, v{vSc+0}, v{vSc+0} row_ror:8 {D} bank_mask:0x3")
    a(f"v_add_f32_dpp v{T1}, v{vSc+1}, v{vSc+1} row_ror:8 {D} bank_mask:0x3")
    a(f"v_add_f32_dpp v{T0}, v{vSc+2}, v{vSc+2} row_ror:8 {D} bank_mask:0xc")
    a(f"v_add_f32_dpp v{T1}, v{vSc+3}, v{vSc+3} row_ror:8 {D} bank_mask:0xc")
    a("s_nop 0")
    a(f"v_add_f32_dpp v{T2}, v{T0}, v{T0} row_shl:4 {D} bank_mask:0x5")
    a(f"v_add_f32_dpp v{T2}, v{T1}, v{T1} row_shr:4 {D} bank_mask:0xa")
    a("s_nop 1")
    a(f"v_add_f32_dpp v{T2}, v{T2}, v{T2} quad_perm:[2,3,0,1] {DPP}")
    a("s_nop 1")
    a(f"v_add_f32_dpp v{T2}, v{T2}, v{T2} quad_perm:[1,0,3,2] {DPP}")
    rnd(T2)
    a(f"v_mul_f32 v{T2}, s{sScale}, v{T2}")
    rnd(T2)
    a("s_nop 1")
    a(f"v_max_f32_dpp v{T0}, v{T2}, v{T2} row_ror:8 {DPP}")
    a("s_nop 1")
    a(f"v_max_f32_dpp v{T0}, v{T0}, v{T0} row_ror:4 {DPP}")
    a(f"s_mov_b64 exec, s[{sM}:{sM+1}]")
    a(f"ds_max_f32 v{aZero}, v{T0} offset:{F_MX}")
    a("s_mov_b64 exec, 1")
    a(f"ds_add_u32 v{aZero}, v{vOne} offset:{F_M}")
    a("s_mov_b64 exec, -1")
    a.label("L_wm")
    a(f"""
    ds_read_b32 v{T4}, v{aZero} offset:{F_M}
    ds_read_b32 v{vMj}, v{aZero} offset:{F_MX}
    s_waitcnt lgkmcnt(0)
    v_readfirstlane_b32 s{t0}, v{T4}
    v_sub_f32 v{T0}, v{T2}, v{vMj}
    s_cmp_lt_u32 s{t0}, 8
    s_cbranch_scc1 L_wm
    v_mul_f32 v{T0}, s{sLog2e}, v{T0}
    v_exp_f32 v{T0}, v{T0}
    s_nop 0
    v_cvt_pk_bf16_f32 v{vPl}, v{T0}, v{T0}
    ds_write_b32 v{aLp}, v{T0} offset:{L_P}
    """)
    signal(F_P)
    stamp("smax")
    if int(opts.get("kvdelay", "0")): a(f"s_sleep {opts['kvdelay']}")
    for i in range(4):
        B = 60 if i % 2 == 0 else 64
        for k in range(4): a(f"v_and_b32_dpp v{B+k}, v{vPl}, v{vMsk+k} row_newbcast:{4*i} {DPP}")
        a.wait_vm(f"v{i}")
        a("s_nop 0")
        a(f"v_mfma_f32_16x16x32_bf16 {q4(vAcc)}, {q4(vV+4*i)}, {q4(B)}, {q4(vAcc)}")
    a("s_nop 7")
    a(f"ds_write2_b32 v{aLq}, v{vAcc}, v{vAcc+1} offset0:0 offset1:8")
    a(f"ds_write2_b32 v{aLq}, v{vAcc+2}, v{vAcc+3} offset0:16 offset1:24")
    signal(F_O)
    stamp("b4")
    a.label("L_fin")
    if stamps:
        stamp("end")
        a("s_waitcnt lgkmcnt(0)")
        a(f"""
        s_lshl_b32 s{t0}, s2, 4
        s_add_u32 s{t0}, s{t0}, s{sW}
        s_lshl_b32 s{t0}, s{t0}, 7
        s_add_u32 s{t0}, s{t0}, {WS_TS}
        """)
        for k in range(len(SP)):
            a(f"v_mov_b32 v{140+k}, s{SP[k]}")
        a(f"v_mov_b32 v{140+len(SP)}, s{sSpin}")
        a("s_mov_b64 exec, 1")
        for k in range(3):
            a(f"buffer_store_dwordx4 {q4(140+4*k)}, v{aZero}, {srd(S_WS)}, s{t0} offen offset:{16*k}")
    a.label("L_end")
    a("s_endpgm")
    body = "\n".join(a.l) + "\n"
    src = HDR_COMMENT + f"""; Override launch geometry by editing the next line (default: block=256,
; grid=ceil(out_elems/256), lds=0). Harness parses it; keep it on one line.
; @launch grid=(256,1,1) block=({NW*64},1,1) lds={LDS}
.amdgcn_target "amdgcn-amd-amdhsa--gfx950"
.text
.globl {KN}
.p2align 8
.type {KN},@function
{KN}:
{body}
.section .rodata,"a"
.p2align 6
.amdhsa_kernel {KN}
  .amdhsa_next_free_vgpr {NV}
  .amdhsa_next_free_sgpr 102
  .amdhsa_accum_offset {NV}
  .amdhsa_group_segment_fixed_size 0
  .amdhsa_kernarg_size 104
  .amdhsa_user_sgpr_count 2
  .amdhsa_user_sgpr_kernarg_segment_ptr 1
  .amdhsa_system_sgpr_workgroup_id_x 1
.end_amdhsa_kernel
"""
    return src

if __name__ == "__main__":
    import argparse
    p = argparse.ArgumentParser()
    p.add_argument("-o", default="k13.s")
    p.add_argument("--stamps", action="store_true")
    p.add_argument("--no-nt", action="store_true")
    p.add_argument("--opt", action="append", default=[])
    args = p.parse_args()
    opts = dict(o.split("=") for o in args.opt)
    open(args.o, "w").write(gen(nt=not args.no_nt, stamps=args.stamps, opts=opts))
```
